```python
import torch

def _softmax(x, axis=-1):
    return torch.softmax(x, dim=axis)
def _gelu(x):
    return torch.nn.functional.gelu(x, approximate="tanh")
def _silu(x):
    return torch.nn.functional.silu(x)
def _sigmoid(x):
    return torch.sigmoid(x)
def _layernorm(x, axis=-1, eps=1e-5):
    m = x.mean(dim=axis, keepdim=True)
    v = x.var(dim=axis, keepdim=True, unbiased=False)
    return (x - m) / torch.sqrt(v + eps)
def _scatter_add(tgt, idx, src, axis=0):
    return tgt.clone().index_add_(axis, idx, src)
def _segment_sum(src, seg, n):
    out = torch.zeros((n,) + src.shape[1:], dtype=src.dtype)
    return out.index_add_(0, seg, src)
def _pad(x, pw):
    flat = tuple(v for pair in reversed(pw) for v in pair)
    return torch.nn.functional.pad(x, flat)

kernel_name = 'recurrent_scan__spectral_fnet__geglu_ffn__prompt'

def setup_inputs():

    _w = (lambda a: (lambda t: t.to(torch.bfloat16) if t.is_floating_point() else t)(torch.as_tensor(a)))
    def _A_setup():
        B, S, D = 1, 2048, 512
        ns = torch.arange(S)[:, None] * torch.arange(S)[None, :]
        nd = torch.arange(D)[:, None] * torch.arange(D)[None, :]
        Ws_re = torch.cos(-2.0 * torch.pi * ns / S).to(float)
        Ws_im = torch.sin(-2.0 * torch.pi * ns / S).to(float)
        Wd_re = torch.cos(-2.0 * torch.pi * nd / D).to(float)
        Wd_im = torch.sin(-2.0 * torch.pi * nd / D).to(float)
        return {
            "x": _w((lambda *s: torch.randn(*s, dtype=torch.bfloat16) * 0.05)(B, S, D)),
            "dft_seq_re": _w(Ws_re),
            "dft_seq_im": _w(Ws_im),
            "dft_hid_re": _w(Wd_re),
            "dft_hid_im": _w(Wd_im),
        }
    _A_in = _A_setup()

    def _B_setup():
        B, S, D, F = 1, 2048, 512, 1376
        return {
            "x": _w((lambda *s: torch.randn(*s, dtype=torch.bfloat16) * 0.05)(B, S, D)),
            "w_gate": _w((lambda *s: torch.randn(*s, dtype=torch.bfloat16) * 0.05)(D, F)),
            "w_up": _w((lambda *s: torch.randn(*s, dtype=torch.bfloat16) * 0.05)(D, F)),
            "w_down": _w((lambda *s: torch.randn(*s, dtype=torch.bfloat16) * 0.05)(F, D)),
        }
    _B_in = _B_setup()

    return {
        "A_x": _A_in["x"],
        "A_dft_seq_re": _A_in["dft_seq_re"],
        "A_dft_seq_im": _A_in["dft_seq_im"],
        "A_dft_hid_re": _A_in["dft_hid_re"],
        "A_dft_hid_im": _A_in["dft_hid_im"],
        "B_x": _B_in["x"],
        "B_w_gate": _B_in["w_gate"],
        "B_w_up": _B_in["w_up"],
        "B_w_down": _B_in["w_down"],
    }

def reference(A_x, A_dft_seq_re, A_dft_seq_im, A_dft_hid_re, A_dft_hid_im, B_x, B_w_gate, B_w_up, B_w_down):
    def _A_ref(x, dft_seq_re, dft_seq_im, dft_hid_re, dft_hid_im):
        a = torch.einsum("bsd,ed->bse", x, dft_hid_re)
        b = torch.einsum("bsd,ed->bse", x, dft_hid_im)
        y = torch.einsum("ts,bse->bte", dft_seq_re, a) - torch.einsum("ts,bse->bte", dft_seq_im, b)
        return y

    def _B_ref(x, w_gate, w_up, w_down):
        return (_gelu(x @ w_gate) * (x @ w_up)) @ w_down

    x = A_x
    xn = _layernorm(x, axis=-1)
    s = _A_ref(xn, A_dft_seq_re, A_dft_seq_im, A_dft_hid_re, A_dft_hid_im)
    g = _silu(_B_ref(xn, B_w_gate, B_w_up, B_w_down))
    return x + s * g
```

```python
class Asm:
    def __init__(self):
        self.lines = []
        self.lds_q = []
        self.vm_q = []
    def __call__(self, s):
        for l in s.split("\n"):
            l = l.strip()
            if l: self.lines.append("    " + l if not l.endswith(":") else l)
    def label(self, n): self.lines.append(n + ":")
    def c(self, s): self.lines.append("    ; " + s)
    def lds(self, s, tag=None):
        self(s); self.lds_q.append(tag)
    def wait_lds(self, tags):
        if not isinstance(tags, (list, tuple, set)): tags = [tags]
        idx = [i for i, t in enumerate(self.lds_q) if t in tags]
        if not idx: return
        last = max(idx); n = len(self.lds_q) - 1 - last
        assert n <= 15, n
        self(f"s_waitcnt lgkmcnt({n})")
        self.lds_q = self.lds_q[last + 1:]
    def wait_lds_all(self):
        self("s_waitcnt lgkmcnt(0)"); self.lds_q = []
    def vm(self, s, tag=None):
        self(s)
        if "store" not in s: self.vm_q.append(tag)
    def wait_vm(self, tags):
        if not isinstance(tags, (list, tuple, set)): tags = [tags]
        idx = [i for i, t in enumerate(self.vm_q) if t in tags]
        if not idx: return
        last = max(idx); n = len(self.vm_q) - 1 - last
        assert n <= 63, n
        self(f"s_waitcnt vmcnt({n})")
        self.vm_q = self.vm_q[last + 1:]
    def wait_vm_all(self):
        self("s_waitcnt vmcnt(0)"); self.vm_q = []
    def text(self): return "\n".join(self.lines) + "\n"

def v(a, n=1): return f"v{a}" if n == 1 else f"v[{a}:{a+n-1}]"
def s(a, n=1): return f"s{a}" if n == 1 else f"s[{a}:{a+n-1}]"

def kernel(name, body, vgpr, sgpr=102, accum=None):
    accum = accum or min(256, (vgpr + 3) // 4 * 4)
    return f""".text
.globl {name}
.p2align 8
.type {name},@function
{name}:
{body}
.section .rodata,"a"
.p2align 6
.amdhsa_kernel {name}
  .amdhsa_next_free_vgpr {vgpr}
  .amdhsa_next_free_sgpr {sgpr}
  .amdhsa_accum_offset {accum}
  .amdhsa_group_segment_fixed_size 0
  .amdhsa_kernarg_size 96
  .amdhsa_user_sgpr_count 2
  .amdhsa_user_sgpr_kernarg_segment_ptr 1
  .amdhsa_system_sgpr_workgroup_id_x 1
.end_amdhsa_kernel
"""
import struct
def f2u(x): return struct.unpack("<I", struct.pack("<f", x))[0]
def fhex(x): return "0x%08x" % f2u(x)
```

```python
from dsl import *
import math
H_BYTES = 64 * 86 * 1024
Z_OFF = 0x600000
Z_BYTES = 32 * 33 * 2048
OOB = 0x7F000000
LDS_X = 0
LDS_W = 49152
LDS_AUX = 147456
LDS_CS = LDS_AUX + 2048
K1_LDS = LDS_AUX + 4096
GC = -2.0 * math.sqrt(2.0 / math.pi) * math.log2(math.e)

sWAVE, sTYPE, sR, sC = 20, 21, 22, 23
SRD_X, SRD_W, SRD_O = 24, 28, 32

def stamp(a, cfg, idx):
    if cfg.get("prof"):
        a(f"s_memrealtime s[40:41]\ns_waitcnt lgkmcnt(0)\ns_mov_b32 s{60+idx}, s40")

def prof_flush(a, cfg, n, base):
    if not cfg.get("prof"): return
    a(f"s_lshl_b32 s42, s2, 3\ns_add_u32 s42, s42, s{sWAVE}\ns_lshl_b32 s42, s42, 6\ns_add_u32 s42, s42, {base}")
    a("s_mov_b32 s44, s16\ns_mov_b32 s45, s17\ns_mov_b32 s46, 0x10000000\ns_mov_b32 s47, 0x00020000")
    a("s_mov_b64 exec, 1\nv_mov_b32 v1, 0")
    for i in range(n):
        a(f"v_mov_b32 v2, s{60+i}\nbuffer_store_dword v2, v1, s[44:47], s42 offen offset:{4*i}")
    a("s_waitcnt vmcnt(0)\ns_mov_b64 exec, -1")

def entry(a, cfg):
    a("""
    s_cmp_ge_u32 s2, 256
    s_cbranch_scc1 K1_END
    s_load_dwordx2 s[4:5], s[0:1], 0
    s_load_dwordx4 s[8:11], s[0:1], 24
    s_load_dwordx4 s[12:15], s[0:1], 48
    s_load_dwordx2 s[16:17], s[0:1], 88
    s_load_dwordx2 s[18:19], s[0:1], 64
    v_lshrrev_b32 v1, 6, v0
    v_and_b32 v0, 63, v0
    s_and_b32 s3, s2, 7
    v_readfirstlane_b32 s20, v1
    s_lshr_b32 s6, s2, 3          ; loc
    s_lshr_b32 s7, s3, 1          ; a
    s_and_b32 s3, s3, 1           ; b
    s_lshl_b32 s36, s7, 2         ; 4a
    s_sub_u32 s37, 6, s3          ; nc
    s_lshl_b32 s38, s37, 2        ; nffn
    s_cmp_lt_u32 s6, s38
    s_cbranch_scc0 K1_ROLE2
    s_mul_i32 s39, s3, 9
    s_add_u32 s39, s39, 43
    s_mul_i32 s39, s39, s6
    s_lshr_b32 s39, s39, 8        ; q
    s_add_u32 s22, s36, s39       ; rho
    s_mul_i32 s39, s39, s37
    s_sub_u32 s23, s6, s39
    s_mul_i32 s39, s3, 6
    s_add_u32 s23, s23, s39       ; cg
    s_mov_b32 s21, 0
    s_branch K1_ROLED
K1_ROLE2:
    s_sub_u32 s6, s6, s38         ; l2
    s_cmp_lt_u32 s6, 8
    s_cbranch_scc0 K1_ROLE3
    s_and_b32 s39, s6, 3
    s_add_u32 s22, s36, s39       ; w
    s_lshr_b32 s39, s6, 2
    s_lshl_b32 s23, s3, 1
    s_add_u32 s23, s23, s39       ; eq
    s_mov_b32 s21, 1
    s_branch K1_ROLED
K1_ROLE3:
    s_sub_u32 s6, s6, 8
    s_cmp_ge_u32 s6, 3
    s_cbranch_scc1 K1_END
    s_mul_i32 s23, s7, 3
    s_add_u32 s23, s23, s6
    s_cmp_ge_u32 s23, 11
    s_cbranch_scc1 K1_END
    s_mov_b32 s22, 16
    s_mov_b32 s21, 0
K1_ROLED:
    """)
    stamp_pre = cfg.get("prof")
    a("s_cmp_lt_u32 s20, 4\ns_cbranch_scc1 K1_MMA")

def x_voffsets(a, base):
    a(f"""
    v_lshrrev_b32 v2, 3, v0           ; l>>3
    v_lshrrev_b32 v3, 4, v0           ; l>>4
    v_and_b32 v4, 7, v0
    v_xor_b32 v4, v4, v3
    v_xor_b32 v5, 4, v4
    v_lshlrev_b32 v4, 4, v4
    v_lshlrev_b32 v5, 4, v5
    s_lshr_b32 s37, s36, 1
    s_and_b32 s38, s36, 1
    s_lshl_b32 s38, s38, 5
    s_add_u32 s37, s37, s38
    s_lshl_b32 s38, s22, 1
    s_add_u32 s37, s37, s38
    s_lshl_b32 s37, s37, 10
    v_lshlrev_b32 v6, 16, v2
    v_add_u32 v6, s37, v6
    v_add_u32 v{base}, v6, v4
    v_add_u32 v{base+1}, v6, v5
    v_add_u32 v{base+1}, 0x80000, v{base+1}
    v_add_u32 v{base+2}, 0x100000, v{base}
    v_add_u32 v{base+3}, 0x100000, v{base+1}
    s_cmp_lt_u32 s22, 16
    s_cbranch_scc1 K1_XOK
    v_lshlrev_b32 v6, 11, v2
    v_add_u32 v6, {2017*1024}, v6
    v_add_u32 v{base}, v6, v4
    v_add_u32 v{base+1}, v6, v5
    v_add_u32 v{base+1}, {16*1024}, v{base+1}
    v_mov_b32 v{base+2}, {OOB}
    v_mov_b32 v{base+3}, {OOB}
    s_cmp_eq_u32 s36, 0
    s_cbranch_scc1 K1_XOK
    v_mov_b32 v{base}, {OOB}
    v_mov_b32 v{base+1}, {OOB}
K1_XOK:
    """)

def loader(a, cfg):
    shape = cfg["shape"]
    VX, VW = 10, 14
    VA = 18
    a("s_sub_u32 s36, s20, 4")
    x_voffsets(a, VX)
    a(f"""
    v_and_b32 v7, 31, v0
    v_lshrrev_b32 v8, 5, v0
    v_bfe_u32 v9, v0, 1, 3
    v_xor_b32 v8, v8, v9
    v_lshlrev_b32 v8, 4, v8
    v_lshl_add_u32 v8, v7, 7, v8
    s_lshl_b32 s37, s36, 12
    v_add_u32 v{VA}, s37, v8
    v_xor_b32 v{VA+1}, 32, v{VA}
    v_xor_b32 v{VA+2}, 64, v{VA}
    v_xor_b32 v{VA+3}, 96, v{VA}
    s_mov_b32 s48, 0xffff0000
    s_lshl_b32 s49, s36, 12
    s_cmp_eq_u32 s21, 0
    s_cbranch_scc0 K1_LD_DFT
    """)
    for typ in ("F", "D"):
        L = "K1_L" + typ
        if typ == "D": a.label("K1_LD_DFT")
        nW = 8 if typ == "F" else 4
        per = 4 + nW
        if typ == "F":
            a(f"""
            v_lshrrev_b32 v3, 4, v0
            v_bfe_u32 v4, v0, 1, 3
            v_lshlrev_b32 v5, 1, v3
            s_and_b32 s37, s36, 1             ; mat
            s_lshr_b32 s38, s36, 1
            v_xor_b32 v4, v4, v5
            v_xor_b32 v4, {'s37' if shape == 32 else 's38'}, v4
            v_lshlrev_b32 v4, 5, v4
            v_and_b32 v5, 1, v0
            v_lshl_add_u32 v4, v5, 4, v4
            v_mul_u32_u24 v3, 2752, v3
            s_lshl_b32 s39, s23, 8
            v_add3_u32 v{VW}, v3, v4, s39
            s_mul_i32 s50, s38, {2*11008}
            s_lshl_b32 s51, s37, 14
            s_lshl_b32 s39, s38, 11
            s_add_u32 s51, s51, s39
            s_add_u32 s51, s51, {LDS_W}
            s_cmp_eq_u32 s36, 3
            s_cselect_b32 s55, 0x00ffffff, -1
            s_mov_b32 s54, -1
            s_cmp_eq_u32 s37, 0
            s_waitcnt lgkmcnt(0)
            s_cselect_b32 s28, s12, s14
            s_cselect_b32 s29, s13, s15
            s_mov_b32 s30, 1409024
            """)
        else:
            a(f"""
            v_lshrrev_b32 v2, 3, v0
            v_lshrrev_b32 v3, 4, v0
            v_and_b32 v4, 7, v0
            v_xor_b32 v4, v4, v3
            v_lshlrev_b32 v4, 4, v4
            s_and_b32 s37, s36, 1
            s_lshl_b32 s37, s37, 5
            s_lshl_b32 s38, s23, 6
            s_add_u32 s37, s37, s38
            v_add_u32 v2, s37, v2
            v_lshl_add_u32 v{VW}, v2, 10, v4
            v_xor_b32 v5, 64, v{VW}
            v_add_u32 v{VW+1}, 0x2000, v5
            v_add_u32 v{VW+2}, 0x4000, v{VW}
            v_add_u32 v{VW+3}, 0x6000, v5
            s_cmp_lt_u32 s36, 2
            s_cselect_b32 s38, 0x40000, 0
            v_cmp_eq_u32 vcc, 0, v2
            v_mov_b32 v5, s38
            s_nop 0
            v_cndmask_b32 v5, 0, v5, vcc
            v_add_u32 v{VW}, v{VW}, v5
            s_lshl_b32 s51, s36, 12
            s_add_u32 s51, s51, {LDS_W}
            s_cmp_lt_u32 s36, 2
            s_waitcnt lgkmcnt(0)
            s_cselect_b32 s28, s8, s10
            s_cselect_b32 s29, s9, s11
            s_mov_b32 s30, 524288
            """)
        a(f"""
        s_mov_b32 s31, 0x00020000
        s_mov_b32 s24, s4
        s_mov_b32 s25, s5
        s_mov_b32 s26, 2097152
        s_mov_b32 s27, 0x00020000
        s_mov_b32 s52, 0
        """)
        wstage = 32768 if typ == "F" else 16384
        def issue():
            order = []
            for i in range(4): order.append(("x", i))
            for i in range(nW): order.append(("w", i))
            if typ == "F": order = [("x", 0), ("w", 0), ("x", 1), ("w", 1), ("x", 2), ("w", 2), ("x", 3), ("w", 3)] + [("w", i) for i in range(4, 8)]
            else: order = [("x", 0), ("w", 0), ("x", 1), ("w", 1), ("x", 2), ("w", 2), ("x", 3), ("w", 3)]
            for kind, i in order:
                if kind == "x":
                    a(f"s_add_u32 m0, s49, {i*1024}")
                    if i == 3 and typ == "F": a("s_mov_b64 exec, s[54:55]")
                    else: a("s_nop 0")
                    a(f"buffer_load_dwordx4 v{VX+i}, s[24:27], s52 offen lds")
                    if i == 3 and typ == "F": a("s_mov_b64 exec, -1")
                elif typ == "F":
                    kq = 4 * (i >> 1) + (i & 1)
                    a(f"s_add_u32 m0, s51, {kq*1024}")
                    a(f"s_add_u32 s53, s50, {kq*11008}")
                    a(f"buffer_load_dwordx4 v{VW}, s[28:31], s53 offen lds")
                else:
                    a(f"s_add_u32 m0, s51, {i*1024}\ns_nop 0")
                    a(f"buffer_load_dwordx4 v{VW+i}, s[28:31], s52 offen lds")
            a("s_add_u32 s52, s52, 128")
            if typ == "F": a("s_add_u32 s50, s50, 176128")
            a(f"s_add_u32 s49, s49, 16384\ns_add_u32 s51, s51, {wstage}")
            a(f"s_cmp_ge_u32 s49, 49152\ns_cselect_b32 s53, 49152, 0\ns_sub_u32 s49, s49, s53")
            a(f"s_cmp_ge_u32 s51, {LDS_W + 3*wstage}\ns_cselect_b32 s53, {3*wstage}, 0\ns_sub_u32 s51, s51, s53")
        stamp(a, cfg, 0)
        a(f"s_mov_b32 s56, 0\n{L}_PRO:")
        issue()
        a(f"s_add_u32 s56, s56, 1\ns_cmp_lt_u32 s56, 3\ns_cbranch_scc1 {L}_PRO")
        if typ == "F":
            a(f"""
            s_cmp_eq_u32 s36, 3
            s_cbranch_scc0 {L}_NOONES
            v_lshrrev_b32 v2, 3, v0
            v_and_b32 v3, 7, v0
            v_lshlrev_b32 v2, 14, v2
            v_lshl_add_u32 v2, v3, 4, v2
            v_mov_b32 v4, 0x3f803f80
            v_mov_b32 v5, v4
            v_mov_b32 v6, v4
            v_mov_b32 v7, v4
            s_mov_b64 exec, 0xffffff
            ds_write_b128 v2, v[4:7] offset:{127*128}
            s_mov_b64 exec, -1
{L}_NOONES:
            """)
        a("v_mov_b32 v24, 0\nv_mov_b32 v25, 0\nv_mov_b32 v26, 0\nv_mov_b32 v27, 0\nv_mov_b32 v28, 0\nv_mov_b32 v29, 0")
        a(f"s_mov_b32 s56, 0\ns_mov_b32 s57, 0\ns_waitcnt vmcnt({2*per}) lgkmcnt(0)")
        stamp(a, cfg, 1)
        a(f"{L}_LOOP:\ns_barrier")
        for i in range(4): a(f"v_add_u32 v{32+i}, s57, v{VA+i}")
        for i in range(4): a(f"ds_read_b128 {v(40+4*i,4)}, v{32+i}")
        if typ == "D":
            for i in range(4): a(f"ds_read_b128 {v(56+4*i,4)}, v{32+i} offset:{LDS_W}")
        a(f"s_sub_u32 s53, s56, 1\ns_cmp_lt_u32 s53, 5\ns_cbranch_scc0 {L}_NOISS")
        issue()
        a(f"{L}_NOISS:\ns_waitcnt lgkmcnt(0)")
        for i in range(16):
            d = 40 + i
            a(f"""v_and_b32 v30, s48, v{d}
            v_lshlrev_b32 v31, 16, v{d}
            v_add_f32 v24, v24, v30
            v_add_f32 v25, v25, v31
            v_fmac_f32 v26, v30, v30
            v_fmac_f32 v27, v31, v31""")
        if typ == "D":
            for i in range(16):
                d = 56 + i
                a(f"""v_and_b32 v30, s48, v{d}
                v_lshlrev_b32 v31, 16, v{d}
                v_add_f32 v28, v28, v30
                v_add_f32 v29, v29, v31""")
        a(f"""
        s_add_u32 s57, s57, 16384
        s_cmp_ge_u32 s57, 49152
        s_cselect_b32 s57, 0, s57
        s_add_u32 s56, s56, 1
        s_cmp_lt_u32 s56, 7
        s_cbranch_scc0 {L}_LAST
        s_waitcnt vmcnt({per})
        s_branch {L}_LOOP
{L}_LAST:
        s_waitcnt vmcnt(0)
        s_cmp_eq_u32 s56, 7
        s_cbranch_scc1 {L}_LOOP
        """)
        a(f"""
        v_add_f32 v24, v24, v25
        v_add_f32 v26, v26, v27
        v_add_f32 v28, v28, v29
        v_mov_b32 v25, v24
        v_mov_b32 v27, v26
        v_mov_b32 v29, v28
        s_nop 1
        v_permlane32_swap_b32 v24, v25
        v_permlane32_swap_b32 v26, v27
        v_permlane32_swap_b32 v28, v29
        s_nop 1
        v_add_f32 v24, v24, v25
        v_add_f32 v26, v26, v27
        v_add_f32 v28, v28, v29
        v_mul_f32 v24, {fhex(1/512)}, v24          ; mean
        v_mul_f32 v26, {fhex(1/512)}, v26
        v_fma_f32 v26, -v24, v24, v26              ; var
        v_max_f32 v26, 0, v26
        v_cvt_pk_bf16_f32 v30, v24, v26
        v_lshlrev_b32 v24, 16, v30                 ; bf16(mean)
        v_and_b32 v26, s48, v30                    ; bf16(var)
        v_add_f32 v26, {fhex(1e-5)}, v26
        v_cvt_pk_bf16_f32 v26, v26, v26
        v_and_b32 v26, s48, v26
        v_sqrt_f32 v26, v26
        s_nop 0
        v_cvt_pk_bf16_f32 v26, v26, v26
        v_and_b32 v26, s48, v26                    ; sd
        v_rcp_f32 v27, v26                         ; r
        v_and_b32 v7, 31, v0
        s_lshl_b32 s37, s36, 5
        v_add_u32 v7, s37, v7                      ; row
        """)
        if typ == "F":
            a(f"""
            v_sub_f32 v32, 0, v24
            v_mul_f32 v33, {fhex(GC)}, v27
            v_mul_f32 v34, v27, v27
            v_mul_f32 v34, {fhex(0.044715)}, v34
            v_mul_f32 v34, v34, v33
            v_mul_f32 v35, v26, v26
            v_lshlrev_b32 v7, 4, v7
            ds_write_b128 v7, v[32:35] offset:{LDS_AUX & 0xffff}
            """.replace(f"offset:{LDS_AUX & 0xffff}", "offset:0").replace("v_lshlrev_b32 v7, 4, v7", f"v_lshlrev_b32 v7, 4, v7\nv_add_u32 v7, {LDS_AUX}, v7"))
        else:
            a(f"""
            v_sub_f32 v32, 0, v24
            v_lshlrev_b32 v7, 2, v7
            v_add_u32 v7, {LDS_AUX}, v7
            ds_write_b32 v7, v32
            ds_write_b32 v7, v27 offset:512
            ds_write_b32 v7, v28 offset:1024
            """)
        a("s_waitcnt lgkmcnt(0)\ns_barrier")
        stamp(a, cfg, 2)
        prof_flush(a, cfg, 3, cfg.get("prof_base", 0x1000000))
        a("s_endpgm")

def mma_ffn(a, cfg):
    shape = cfg["shape"]
    ACC = 128
    VXA, VWA = 8, 12
    XF, WF = 16, 48
    a("s_lshr_b32 s36, s20, 1\ns_and_b32 s37, s20, 1")
    if shape == 32:
        a(f"""
        v_and_b32 v1, 31, v0
        v_lshrrev_b32 v2, 5, v0
        v_bfe_u32 v3, v0, 1, 3
        v_xor_b32 v3, v3, v2
        v_lshlrev_b32 v3, 4, v3
        v_lshl_add_u32 v3, v1, 7, v3
        s_lshl_b32 s38, s36, 13
        v_add_u32 v{VXA}, s38, v3
        v_xor_b32 v{VXA+1}, 32, v{VXA}
        v_xor_b32 v{VXA+2}, 64, v{VXA}
        v_xor_b32 v{VXA+3}, 96, v{VXA}
        v_bfe_u32 v3, v0, 2, 2            ; r
        v_bfe_u32 v4, v0, 4, 1            ; mat
        v_lshl_add_u32 v5, v2, 3, v3      ; 8h + r
        v_lshlrev_b32 v5, 8, v5
        v_lshl_add_u32 v5, v4, 14, v5
        v_lshl_or_b32 v3, v3, 1, v4       ; g = r<<1 | mat
        """)
        nxa = 4
    else:
        a(f"""
        v_and_b32 v1, 15, v0
        v_lshrrev_b32 v2, 4, v0           ; g
        v_bfe_u32 v3, v0, 1, 3
        v_xor_b32 v3, v3, v2
        v_lshlrev_b32 v3, 4, v3
        v_lshl_add_u32 v3, v1, 7, v3
        s_lshl_b32 s38, s36, 13
        v_add_u32 v{VXA}, s38, v3
        v_xor_b32 v{VXA+1}, 64, v{VXA}
        v_bfe_u32 v3, v0, 2, 2            ; r
        v_and_b32 v4, 1, v2
        v_lshl_add_u32 v5, v2, 3, v3      ; 8g + r
        v_lshlrev_b32 v5, 8, v5
        v_lshl_or_b32 v3, v3, 1, v4       ; (r<<1) | (g&1)
        """)
        nxa = 2
    a(f"""
    s_lshl_b32 s38, s37, 2
    v_xor_b32 v3, s38, v3             ; u ^ g for j = 0
    v_lshl_add_u32 v5, v3, 5, v5
    v_and_b32 v4, 3, v0
    v_lshl_add_u32 v5, v4, 3, v5
    v_add_u32 v{VWA}, {LDS_W}, v5
    v_xor_b32 v{VWA+1}, 32, v{VWA}
    v_xor_b32 v{VWA+2}, 64, v{VWA}
    v_xor_b32 v{VWA+3}, 96, v{VWA}
    """)
    for i in range(128): a(f"v_mov_b32 v{ACC+i}, 0")
    a("s_mov_b32 s56, 0\ns_mov_b32 s57, 0\ns_setprio 2")
    stamp(a, cfg, 0)
    if shape == 32:
        nstep, nA, nB = 4, 4, 2
        def xread(st, t, set_): return f"ds_read_b128 {v(XF + set_*8 + t*4, 4)}, v{VXA+st} offset:{t*4096}"
        def wread(st, p, q): return f"ds_read_b64_tr_b16 {v(WF + (p%4)*4 + q*2, 2)}, v{VWA+p} offset:{st*4096 + q*1024}"
        def mfma(st, p, t):
            c = ACC + (p * 2 + t) * 16
            return f"v_mfma_f32_32x32x16_bf16 {v(c,16)}, {v(WF+(p%4)*4,4)}, {v(XF+(st&1)*8+t*4,4)}, {v(c,16)}"
    else:
        nstep, nA, nB = 2, 8, 4
        def xread(st, t, set_): return f"ds_read_b128 {v(XF + set_*16 + t*4, 4)}, v{VXA+st} offset:{t*2048}"
        def wread(st, p, q): return f"ds_read_b64_tr_b16 {v(WF + (p%4)*4 + q*2, 2)}, v{VWA+(p>>1)} offset:{(p&1)*16384 + st*8192 + q*1024}"
        def mfma(st, p, t):
            c = ACC + (p * 4 + t) * 4
            return f"v_mfma_f32_16x16x32_bf16 {v(c,4)}, {v(WF+(p%4)*4,4)}, {v(XF+(st&1)*16+t*4,4)}, {v(c,4)}"
    def rd_x(st, t): a.lds(xread(st % nstep, t, st & 1), ("x", st % nstep, t))
    def rd_w(gp):
        st, p = (gp // nA) % nstep, gp % nA
        for q in range(2): a.lds(wread(st, p, q), ("w", st, p))
    NP = nstep * nA
    def head_reads(k):
        if k == 0:
            rd_x(0, 0); rd_w(0)
            for t in range(1, nB): rd_x(0, t)
        else: rd_w(k)
    a("s_barrier")
    stamp(a, cfg, 1)
    for k in range(4): head_reads(k)
    entry_q = list(a.lds_q)
    a(".p2align 3\nK1_FLOOP:")
    for gp in range(NP):
        st, p = gp // nA, gp % nA
        for t in range(nB):
            a.wait_lds([("w", st, p), ("x", st, t)])
            a(mfma(st, p, t))
            if st + 1 < nstep and p < nB and t == 0: rd_x(st + 1, p)
            if gp == NP - 5 and t == 0:
                pass
        nxt = gp + 4
        if nxt < NP: rd_w(nxt)
        else:
            k = nxt - NP
            if k == 0:
                a.wait_lds_all()
                a("s_barrier")
            head_reads(k)
        if nxt == NP - 1:
            a("s_add_u32 s57, s57, 1\ns_cmp_eq_u32 s57, 3\ns_cselect_b32 s58, -2, 1\ns_cselect_b32 s57, 0, s57\ns_lshl_b32 s59, s58, 15\ns_lshl_b32 s58, s58, 14")
            for i in range(nxa): a(f"v_add_u32 v{VXA+i}, s58, v{VXA+i}")
            for i in range(4): a(f"v_add_u32 v{VWA+i}, s59, v{VWA+i}")
    assert a.lds_q == entry_q, (a.lds_q, entry_q)
    a("s_add_u32 s56, s56, 1\ns_cmp_lt_u32 s56, 8\ns_cbranch_scc1 K1_FLOOP")
    a.lds_q = []
    stamp(a, cfg, 2)
    a("s_setprio 0")
    a(f"""
    s_mov_b32 s32, s16
    s_mov_b32 s33, s17
    s_mov_b32 s34, {H_BYTES}
    s_mov_b32 s35, 0x00020000
    s_waitcnt lgkmcnt(0)
    """)
    ST, CS, T, O, VH = 16, 32, 64, 72, 80
    if shape == 32:
        a(f"""
        v_lshrrev_b32 v2, 5, v0
        s_lshl_b32 s38, s37, 9
        s_add_u32 s38, s38, {LDS_CS}
        v_lshlrev_b32 v3, 6, v2
        v_add_u32 v3, s38, v3
        s_cmp_eq_u32 s36, 1
        s_cbranch_scc0 K1_NOCS
        s_mov_b32 exec_lo, 0x80000000
        s_mov_b32 exec_hi, 0x80000000
        s_nop 7
        """)
        for j in range(4):
            for q in range(4): a(f"ds_write_b128 v3, {v(ACC + (j*2+1)*16 + q*4, 4)} offset:{j*128 + q*16}")
        a("s_mov_b64 exec, -1\nK1_NOCS:")
        a(f"""
        v_and_b32 v1, 31, v0
        s_lshl_b32 s38, s36, 10
        s_add_u32 s38, s38, {LDS_AUX}
        v_lshlrev_b32 v4, 4, v1
        v_add_u32 v4, s38, v4
        s_lshl_b32 s38, s22, 2
        s_lshl_b32 s39, s36, 1
        s_add_u32 s38, s38, s39
        s_mul_i32 s38, s38, 88064
        v_lshlrev_b32 v5, 4, v0
        v_add_u32 v{VH}, s38, v5
        v_add_u32 v{VH+1}, 88064, v{VH}
        v_cmp_eq_u32 vcc, 31, v1
        s_cmp_eq_u32 s36, 1
        s_nop 3
        s_cselect_b64 vcc, vcc, 0
        v_mov_b32 v6, {OOB}
        s_nop 0
        v_cndmask_b32 v{VH+1}, v{VH+1}, v6, vcc
        s_cmp_lt_u32 s22, 16
        s_cbranch_scc1 K1_HOK
        v_mul_u32_u24 v5, {4*88064}, v1
        v_lshlrev_b32 v7, 9, v2
        v_add_u32 v5, v5, v7
        v_add_u32 v5, {3*88064 + 31*16}, v5
        v_cmp_gt_u32 vcc, 16, v1
        s_cmp_eq_u32 s36, 0
        s_nop 3
        s_cselect_b64 vcc, vcc, 0
        v_mov_b32 v{VH+1}, v6
        s_nop 0
        v_cndmask_b32 v{VH}, v6, v5, vcc
K1_HOK:
        s_lshl_b32 s38, s23, 3
        s_lshl_b32 s39, s37, 2
        s_add_u32 s38, s38, s39           ; step0
        s_waitcnt lgkmcnt(0)
        s_barrier
        """)
        stamp(a, cfg, 3)
        for rt in range(2): a.lds(f"ds_read_b128 {v(ST+rt*4,4)}, v4 offset:{rt*512}", "st")
        def rd_cs(j):
            for q in range(4): a.lds(f"ds_read_b128 {v(CS+(j&1)*16+q*4,4)}, v3 offset:{j*128+q*16}", ("cs", j))
        rd_cs(0)
        for j in range(4):
            if j + 1 < 4: rd_cs(j + 1)
            a.wait_lds(["st", ("cs", j)])
            a(f"s_add_u32 s39, s38, {j}\ns_cmp_ge_u32 s39, 86\ns_cbranch_scc1 K1_FDONE\ns_lshl_b32 s39, s39, 10")
            for rt in range(2):
                c = ACC + (j * 2 + rt) * 16
                geglu(a, [(c + 2*p, c + 8 + 2*p, CS + (j&1)*16 + 2*p, CS + (j&1)*16 + 8 + 2*p, ST + rt*4) for p in range(4)], T, O + rt*4)
                a(f"buffer_store_dwordx4 {v(O+rt*4,4)}, v{VH+rt}, s[32:35], s39 offen")
    else:
        a(f"""
        v_lshrrev_b32 v2, 4, v0           ; g
        s_lshl_b32 s38, s37, 9
        s_add_u32 s38, s38, {LDS_CS}
        v_lshlrev_b32 v3, 4, v2
        v_add_u32 v3, s38, v3
        s_cmp_eq_u32 s36, 1
        s_cbranch_scc0 K1_NOCS
        s_mov_b32 exec_lo, 0x80008000
        s_mov_b32 exec_hi, 0x80008000
        s_nop 7
        """)
        for p in range(8): a(f"ds_write_b128 v3, {v(ACC + (p*4+3)*4, 4)} offset:{p*64}")
        a("s_mov_b64 exec, -1\nK1_NOCS:")
        a(f"""
        v_and_b32 v1, 15, v0
        s_lshl_b32 s38, s36, 10
        s_add_u32 s38, s38, {LDS_AUX}
        v_lshlrev_b32 v4, 4, v1
        v_add_u32 v4, s38, v4
        s_lshl_b32 s38, s22, 2
        s_lshl_b32 s39, s36, 1
        s_add_u32 s38, s38, s39
        s_mul_i32 s38, s38, 88064
        v_lshrrev_b32 v5, 1, v2
        v_lshlrev_b32 v5, 9, v5
        v_and_b32 v7, 1, v2
        v_lshl_add_u32 v7, v7, 3, v5      ; (g>>1)*512 + (g&1)*8
        v_lshl_add_u32 v5, v1, 4, v7
        v_add_u32 v{VH}, s38, v5
        v_add_u32 v{VH+1}, 256, v{VH}
        v_add_u32 v{VH+2}, 88064, v{VH}
        v_add_u32 v{VH+3}, {88064+256}, v{VH}
        v_cmp_eq_u32 vcc, 15, v1
        s_cmp_eq_u32 s36, 1
        s_nop 3
        s_cselect_b64 vcc, vcc, 0
        v_mov_b32 v6, {OOB}
        s_nop 0
        v_cndmask_b32 v{VH+3}, v{VH+3}, v6, vcc
        s_cmp_lt_u32 s22, 16
        s_cbranch_scc1 K1_HOK
        v_mul_u32_u24 v5, {4*88064}, v1
        v_add_u32 v5, v5, v7
        v_add_u32 v{VH}, {3*88064 + 31*16}, v5
        v_mov_b32 v{VH+1}, v6
        v_mov_b32 v{VH+2}, v6
        v_mov_b32 v{VH+3}, v6
        s_cmp_eq_u32 s36, 0
        s_cbranch_scc1 K1_HOK
        v_mov_b32 v{VH}, v6
K1_HOK:
        s_lshl_b32 s38, s23, 3
        s_lshl_b32 s39, s37, 2
        s_add_u32 s38, s38, s39           ; step0
        s_waitcnt lgkmcnt(0)
        s_barrier
        """)
        stamp(a, cfg, 3)
        for t in range(4): a.lds(f"ds_read_b128 {v(ST+t*4,4)}, v4 offset:{t*256}", "st")
        for p in range(8): a.lds(f"ds_read_b128 {v(CS+p*4,4)}, v3 offset:{p*64}", ("cs", p >> 1))
        for j in range(4):
            a.wait_lds(["st", ("cs", j)])
            a(f"s_add_u32 s39, s38, {j}\ns_cmp_ge_u32 s39, 86\ns_cbranch_scc1 K1_FDONE\ns_lshl_b32 s39, s39, 10")
            for tt in range(2):
                items = []
                for t in (2 * tt, 2 * tt + 1):
                    cg_, cu_ = ACC + ((2*j) * 4 + t) * 4, ACC + ((2*j+1) * 4 + t) * 4
                    for p in range(2): items.append((cg_ + 2*p, cu_ + 2*p, CS + 8*j + 2*p, CS + 8*j + 4 + 2*p, ST + t*4))
                geglu(a, items, T, O + tt*4)
                a(f"buffer_store_dwordx2 {v(O+tt*4,2)}, v{VH+2*tt}, s[32:35], s39 offen")
                a(f"buffer_store_dwordx2 {v(O+tt*4+2,2)}, v{VH+2*tt+1}, s[32:35], s39 offen")
    a.lds_q = []
    a("K1_FDONE:")
    stamp(a, cfg, 4)
    if cfg.get("prof"): a("s_waitcnt vmcnt(0)")
    stamp(a, cfg, 5)
    prof_flush(a, cfg, 6, cfg.get("prof_base", 0x1000000))
    a("s_endpgm")

def geglu(a, items, T, O):
    for g, u, cg, cu, st in items: a(f"v_pk_fma_f32 {v(g,2)}, {v(st,2)}, {v(cg,2)}, {v(g,2)} op_sel_hi:[0,1,1]")
    for i, (g, u, cg, cu, st) in enumerate(items): a(f"v_pk_mul_f32 {v(T+2*i,2)}, {v(g,2)}, {v(g,2)}")
    for i, (g, u, cg, cu, st) in enumerate(items): a(f"v_pk_fma_f32 {v(T+2*i,2)}, {v(T+2*i,2)}, {v(st+2,2)}, {v(st,2)} op_sel:[0,0,1] op_sel_hi:[1,0,1]")
    for i, (g, u, cg, cu, st) in enumerate(items): a(f"v_pk_mul_f32 {v(T+2*i,2)}, {v(T+2*i,2)}, {v(g,2)}")
    for i in range(8): a(f"v_exp_f32 v{T+i}, v{T+i}")
    for g, u, cg, cu, st in items: a(f"v_pk_fma_f32 {v(u,2)}, {v(st,2)}, {v(cu,2)}, {v(u,2)} op_sel_hi:[0,1,1]")
    for i, (g, u, cg, cu, st) in enumerate(items): a(f"v_pk_fma_f32 {v(T+2*i,2)}, {v(T+2*i,2)}, {v(st+2,2)}, {v(st+2,2)} op_sel:[0,1,1] op_sel_hi:[1,1,1]")
    for i in range(8): a(f"v_rcp_f32 v{T+i}, v{T+i}")
    for g, u, cg, cu, st in items: a(f"v_pk_mul_f32 {v(u,2)}, {v(u,2)}, {v(g,2)}")
    for i, (g, u, cg, cu, st) in enumerate(items): a(f"v_pk_mul_f32 {v(u,2)}, {v(u,2)}, {v(T+2*i,2)}")
    for i, (g, u, cg, cu, st) in enumerate(items): a(f"v_cvt_pk_bf16_f32 v{O+i}, v{u}, v{u+1}")

def mma_dft(a, cfg):
    ACC, OUT, FF, BF = 128, 192, 64, 96
    VXA, VWA = 8, 12
    XF, WF = 16, 32
    a("s_lshr_b32 s36, s20, 1\ns_and_b32 s37, s20, 1")
    a(f"""
    v_and_b32 v1, 31, v0
    v_lshrrev_b32 v2, 5, v0
    v_bfe_u32 v3, v0, 1, 3
    v_xor_b32 v3, v3, v2
    v_lshlrev_b32 v3, 4, v3
    v_lshl_add_u32 v3, v1, 7, v3
    s_lshl_b32 s38, s36, 13
    v_add_u32 v{VXA}, s38, v3
    s_lshl_b32 s38, s37, 12
    s_add_u32 s38, s38, {LDS_W}
    v_add_u32 v{VWA}, s38, v3
    """)
    for i in range(1, 4): a(f"v_xor_b32 v{VXA+i}, {32*i}, v{VXA}\nv_xor_b32 v{VWA+i}, {32*i}, v{VWA}")
    for i in range(64): a(f"v_mov_b32 v{ACC+i}, 0")
    a(f"""
    s_lshl_b32 s38, s22, 1
    s_add_u32 s38, s38, s36           ; s0
    v_cvt_f32_u32 v4, v1
    v_mul_f32 v4, {fhex(1/2048)}, v4  ; t1/2048
    v_lshlrev_b32 v5, 8, v2
    v_add_u32 v5, s38, v5
    v_cvt_f32_u32 v5, v5              ; s0 + 256h
    v_mul_f32 v5, v5, v4
    v_cmp_eq_u32 vcc, 0, v1
    """)
    for q in range(4):
        for d in range(4):
            for e in range(2):
                i = 2 * d + e
                k = 32 * (q >> 1) + 64 * (16 * (q & 1) + 8 * (i >> 2) + (i & 3))
                a(f"v_fmamk_f32 v{48+e}, v4, {fhex(float(k))}, v5")
            a(f"""v_cos_f32 v50, v48
            v_cos_f32 v51, v49
            v_sin_f32 v52, v48
            v_sin_f32 v53, v49
            v_cvt_pk_bf16_f32 v{FF+q*4+d}, v50, v51
            v_mov_b32 v54, {'0x3f803f80' if q < 2 else '0xbf80bf80'}
            v_cvt_pk_bf16_f32 v55, v52, v53
            v_cndmask_b32 v{FF+16+q*4+d}, v55, v54, vcc""")
    a("s_mov_b32 s56, 0\ns_mov_b32 s57, 0\ns_setprio 2")
    stamp(a, cfg, 0)
    def rd(st):
        s_ = st % 4
        a.lds(f"ds_read_b128 {v(XF+(st&1)*8,4)}, v{VXA+s_}", ("x", s_, 0))
        a.lds(f"ds_read_b128 {v(WF+(st&1)*8,4)}, v{VWA+s_}", ("w", s_, 0))
        a.lds(f"ds_read_b128 {v(WF+(st&1)*8+4,4)}, v{VWA+s_} offset:8192", ("w", s_, 1))
        a.lds(f"ds_read_b128 {v(XF+(st&1)*8+4,4)}, v{VXA+s_} offset:4096", ("x", s_, 1))
    a("s_barrier")
    stamp(a, cfg, 1)
    rd(0)
    entry_q = list(a.lds_q)
    a(".p2align 3\nK1_DLOOP:")
    for st in range(4):
        for n, (rt, cs) in enumerate([(0, 0), (0, 1), (1, 0), (1, 1)]):
            a.wait_lds([("x", st, rt), ("w", st, cs)])
            c = ACC + (rt * 2 + cs) * 16
            a(f"v_mfma_f32_32x32x16_bf16 {v(c,16)}, {v(XF+(st&1)*8+rt*4,4)}, {v(WF+(st&1)*8+cs*4,4)}, {v(c,16)}")
            if n == 0 and st < 3:
                rd(st + 1)
                if st == 2:
                    a("s_add_u32 s57, s57, 1\ns_cmp_eq_u32 s57, 3\ns_cselect_b32 s58, -2, 1\ns_cselect_b32 s57, 0, s57\ns_lshl_b32 s58, s58, 14")
                    for i in range(4): a(f"v_add_u32 v{VXA+i}, s58, v{VXA+i}\nv_add_u32 v{VWA+i}, s58, v{VWA+i}")
            if n == 0 and st == 3:
                a.wait_lds_all(); a("s_barrier"); rd(4)
    assert a.lds_q == entry_q
    a("s_add_u32 s56, s56, 1\ns_cmp_lt_u32 s56, 8\ns_cbranch_scc1 K1_DLOOP")
    a.lds_q = []
    stamp(a, cfg, 2)
    NM, RR, CSV = 16, 48, 6
    a(f"""
    s_setprio 0
    s_waitcnt lgkmcnt(0)
    s_lshl_b32 s39, s36, 8
    s_add_u32 s39, s39, {LDS_AUX}
    v_lshlrev_b32 v3, 4, v2
    v_add_u32 v3, s39, v3
    s_lshl_b32 s39, s37, 7
    s_add_u32 s39, s39, {LDS_AUX + 1024}
    v_lshlrev_b32 v4, 2, v1
    v_add_u32 v4, s39, v4
    ds_read_b32 v6, v4
    ds_read_b32 v7, v4 offset:256
    """)
    for rt in range(2):
        for Q in range(4): a(f"ds_read_b128 {v(16+Q*4,4)}, v3 offset:{rt*128 + Q*32}")
        for Q in range(4): a(f"ds_read_b128 {v(32+Q*4,4)}, v3 offset:{512 + rt*128 + Q*32}")
        a("s_waitcnt lgkmcnt(0)")
        for cs in range(2):
            c = ACC + (rt * 2 + cs) * 16
            sel = "op_sel_hi:[1,0,1]" if cs == 0 else "op_sel:[0,1,0] op_sel_hi:[1,1,1]"
            for p in range(8): a(f"v_pk_fma_f32 {v(c+2*p,2)}, {v(16+2*p,2)}, v[6:7], {v(c+2*p,2)} {sel}")
            for p in range(8): a(f"v_pk_mul_f32 {v(c+2*p,2)}, {v(c+2*p,2)}, {v(32+2*p,2)}")
            for p in range(8): a(f"v_cvt_pk_bf16_f32 v{BF + cs*16 + rt*8 + p}, v{c+2*p}, v{c+2*p+1}")
    a("s_nop 1")
    for q in range(4):
        for CN in range(2):
            for ab in range(2):
                c = OUT + (CN * 2 + ab) * 16
                a(f"v_mfma_f32_32x32x16_bf16 {v(c,16)}, {v(FF+CN*16+q*4,4)}, {v(BF+ab*16+q*4,4)}, {'0' if q == 0 else v(c,16)}")
    P, R, T, Q = OUT, OUT + 16, OUT + 32, OUT + 48
    a(f"""
    s_add_u32 s32, s16, {Z_OFF}
    s_addc_u32 s33, s17, 0
    s_mov_b32 s34, {Z_BYTES}
    s_mov_b32 s35, 0x00020000
    s_lshl_b32 s39, s23, 6
    s_lshl_b32 s40, s37, 5
    s_add_u32 s39, s39, s40
    v_add_u32 v8, s39, v1             ; e
    v_sub_u32 v9, 512, v8
    v_and_b32 v9, 511, v9             ; col2
    v_cmp_eq_u32 vcc, 0, v8
    v_mov_b32 v10, 256
    v_mov_b32 v11, -1
    v_cndmask_b32 v8, v8, v10, vcc    ; col1
    v_cndmask_b32 v11, v11, 0, vcc    ; mask for out2
    v_lshlrev_b32 v10, 13, v2
    v_lshl_add_u32 v12, v8, 2, v10    ; Z1 offset
    v_lshl_add_u32 v13, v9, 2, v10    ; Z2 offset
    v_lshlrev_b32 v8, 2, v8
    v_lshlrev_b32 v9, 2, v9
    v_cvt_f32_u32 v10, v2             ; h as float
    s_mul_i32 s38, s38, {33*2048}
    s_add_u32 s39, s38, {32*2048}
    s_nop 3
    v_cvt_pk_bf16_f32 v14, v{T}, v{Q}
    v_cvt_pk_bf16_f32 v15, v{T}, -v{Q}
    v_mul_f32 v{T}, v{T}, v10
    v_mul_f32 v{Q}, v{Q}, v10
    v_and_b32 v15, v15, v11
    s_mov_b32 exec_hi, 0
    buffer_store_dword v14, v8, s[32:35], s39 offen
    buffer_store_dword v15, v9, s[32:35], s39 offen
    s_mov_b64 exec, -1
    """.replace("v_cndmask_b32 v11, v11, 0, vcc", "v_cndmask_b32_e64 v11, v11, 0, vcc"))
    for p in range(8):
        r0 = 2 * p
        a(f"""v_pk_add_f32 v[16:17], {v(P+r0,2)}, {v(Q+r0,2)}
        v_pk_add_f32 v[18:19], {v(R+r0,2)}, {v(T+r0,2)} neg_lo:[0,1] neg_hi:[0,1]
        v_pk_add_f32 v[20:21], {v(P+r0,2)}, {v(Q+r0,2)} neg_lo:[0,1] neg_hi:[0,1]
        v_pk_add_f32 v[22:23], {v(R+r0,2)}, {v(T+r0,2)} neg_lo:[1,1] neg_hi:[1,1]""")
        o = 24 + (p & 3) * 4
        a(f"""v_cvt_pk_bf16_f32 v{o}, v16, v18
        v_cvt_pk_bf16_f32 v{o+1}, v17, v19
        v_cvt_pk_bf16_f32 v{o+2}, v20, v22
        v_cvt_pk_bf16_f32 v{o+3}, v21, v23
        s_add_u32 s39, s38, {(8*(r0>>2) + (r0&3))*2048}
        v_and_b32 v{o+2}, v{o+2}, v11
        v_and_b32 v{o+3}, v{o+3}, v11
        buffer_store_dword v{o}, v12, s[32:35], s39 offen
        buffer_store_dword v{o+1}, v12, s[32:35], s39 offen offset:2048
        buffer_store_dword v{o+2}, v13, s[32:35], s39 offen
        buffer_store_dword v{o+3}, v13, s[32:35], s39 offen offset:2048""")
    stamp(a, cfg, 3); stamp(a, cfg, 4)
    if cfg.get("prof"): a("s_waitcnt vmcnt(0)")
    stamp(a, cfg, 5)
    prof_flush(a, cfg, 6, cfg.get("prof_base", 0x1000000))
    a("s_endpgm")

def gen_k1(cfg):
    a = Asm()
    entry(a, cfg)
    loader(a, cfg)
    a("K1_MMA:\ns_waitcnt lgkmcnt(0)\ns_cmp_eq_u32 s21, 0\ns_cbranch_scc0 K1_MMA_DFT")
    mma_ffn(a, cfg)
    a("K1_MMA_DFT:")
    mma_dft(a, cfg)
    a("K1_END:\ns_endpgm")
    return kernel("k1_kernel", a.text(), 256)
```

```python
from dsl import *
from k1 import H_BYTES, Z_OFF, Z_BYTES, OOB, stamp, prof_flush
import math
NS = 22
K2_RING = 12
K2_RED = 4 * K2_RING * 2048
K2_LDS = K2_RED + 12 * 4096

def gen_k2(cfg):
    shape = cfg["shape"]
    PD = cfg.get("k2_pd", 10)
    HR = PD + 1
    assert HR * 8 <= 96 and PD + 1 <= K2_RING
    a = Asm()
    ACC, Y, HF, AF, ZF, GF, XR = 192, 176, 64, 48, 16, 32, 160
    VH, VWD, VTR = 4, 6, 8
    a(f"""
    s_cmp_ge_u32 s2, 256
    s_cbranch_scc1 K2_END
    s_load_dwordx2 s[4:5], s[0:1], 0
    s_load_dwordx4 s[8:11], s[0:1], 64
    s_load_dwordx2 s[16:17], s[0:1], 88
    v_lshrrev_b32 v1, 6, v0
    v_and_b32 v0, 63, v0
    s_and_b32 s3, s2, 7
    v_readfirstlane_b32 s20, v1
    s_lshr_b32 s6, s2, 3
    s_lshl_b32 s21, s3, 2
    s_lshr_b32 s7, s6, 3
    s_add_u32 s21, s21, s7            ; g
    s_and_b32 s22, s6, 7              ; cg
    s_mul_i32 s36, s21, {2*88064}
    v_lshlrev_b32 v1, 4, v0
    v_add_u32 v{VH}, s36, v1
    v_add_u32 v{VH+1}, 88064, v{VH}
    v_lshrrev_b32 v2, 3, v0           ; k'
    v_and_b32 v3, 7, v0
    v_bfe_u32 v7, v0, 4, 1            ; (k'>>1)&1
    v_lshlrev_b32 v7, 2, v7
    v_xor_b32 v3, v3, v7
    v_lshlrev_b32 v3, 4, v3
    v_lshl_add_u32 v3, v2, 10, v3
    s_lshl_b32 s36, s22, 7
    v_add_u32 v{VWD}, s36, v3
    s_mul_i32 s37, s20, {NS*1024}
    s_mul_i32 s38, s20, {NS*16384}
    s_mul_i32 s39, s20, {K2_RING*2048}
    s_cmp_eq_u32 s20, 3
    s_cselect_b32 s43, {OOB}, 0
    s_waitcnt lgkmcnt(0)
    s_mov_b32 s24, s16
    s_mov_b32 s25, s17
    s_mov_b32 s26, {H_BYTES}
    s_mov_b32 s27, 0x00020000
    s_mov_b32 s28, s8
    s_mov_b32 s29, s9
    s_mov_b32 s30, 1409024
    s_mov_b32 s31, 0x00020000
    """)
    stamp(a, cfg, 0)
    def issue(st):
        slot = st % K2_RING
        h = HF + (st % HR) * 8
        a(f"s_add_u32 m0, s39, {slot*2048}")
        if st >= 20: a(f"s_add_u32 s44, s37, s43")
        so = "s44" if st >= 20 else "s37"
        a.vm(f"buffer_load_dwordx4 {v(h,4)}, v{VH}, s[24:27], {so} offen", ("h", st))
        a.vm(f"buffer_load_dwordx4 v{VWD}, s[28:31], s38 offen lds", ("w", st))
        a(f"s_add_u32 m0, s39, {slot*2048 + 1024}\ns_add_u32 s38, s38, 8192")
        a.vm(f"buffer_load_dwordx4 {v(h+4,4)}, v{VH+1}, s[24:27], {so} offen", ("h", st))
        a.vm(f"buffer_load_dwordx4 v{VWD}, s[28:31], s38 offen lds", ("w", st))
        a("s_add_u32 s38, s38, 8192\ns_add_u32 s37, s37, 1024")
    for st in range(PD): issue(st)
    a(f"""
    s_and_b32 s45, s20, 1             ; ct
    s_lshr_b32 s46, s20, 1            ; rt
    v_and_b32 v1, 31, v0
    v_lshrrev_b32 v2, 5, v0           ; h
    s_lshl_b32 s47, s22, 6
    s_lshl_b32 s48, s45, 5
    s_add_u32 s47, s47, s48
    s_cmp_lg_u32 s21, 0
    s_cselect_b32 s49, s46, 0         ; mirror
    s_sub_u32 s50, s46, s49           ; delta
    s_sub_u32 s51, 32, s21
    s_cmp_eq_u32 s46, 0
    s_cselect_b32 s51, s21, s51       ; tz
    v_add_u32 v3, s47, v1             ; c
    v_sub_u32 v7, 512, v3
    v_and_b32 v7, 511, v7
    v_sub_u32 v10, 31, v1
    s_cmp_eq_u32 s49, 1
    s_cselect_b64 vcc, -1, 0
    v_cndmask_b32 v3, v3, v7, vcc
    v_cndmask_b32 v10, v1, v10, vcc   ; t2 eff
    v_mul_u32_u24 v7, {4*33*2048}, v2
    v_lshl_add_u32 v3, v3, 2, v7
    s_lshl_b32 s51, s51, 11
    s_add_u32 s32, s16, {Z_OFF}
    s_addc_u32 s33, s17, 0
    s_mov_b32 s34, {Z_BYTES}
    s_mov_b32 s35, 0x00020000
    """)
    for q in range(4):
        for d in range(4):
            a(f"s_add_u32 s52, s51, {(8*q + d)*33*2048}")
            a.vm(f"buffer_load_dword v{ZF+q*4+d}, v3, s[32:35], s52 offen", "z")
    a(f"""
    s_mov_b32 s52, s4
    s_mov_b32 s53, s5
    s_mov_b32 s54, 2097152
    s_mov_b32 s55, 0x00020000
    s_lshl_b32 s48, s46, 5
    s_add_u32 s48, s48, s21           ; residue
    s_lshl_b32 s48, s48, 10
    s_lshl_b32 s47, s47, 1
    s_add_u32 s48, s48, s47
    v_lshlrev_b32 v11, 16, v1
    v_lshl_add_u32 v11, v2, 4, v11
    v_add_u32 v11, s48, v11
    """)
    a.vm(f"buffer_load_dwordx4 {v(XR,4)}, v11, s[52:55], 0 offen", "x")
    a.vm(f"buffer_load_dwordx4 {v(XR+4,4)}, v11, s[52:55], 0 offen offset:32", "x")
    a(f"""
    v_lshlrev_b32 v10, 1, v10
    v_add_u32 v10, s50, v10
    v_cvt_f32_u32 v10, v10
    v_mul_f32 v10, {fhex(1/64)}, v10
    v_cvt_f32_u32 v12, v2
    v_mul_f32 v12, 4.0, v12
    v_mul_f32 v12, v12, v10
    """)
    for q in range(4):
        for d in range(4):
            a(f"""v_fmamk_f32 v13, v10, {fhex(float(8*q+d))}, v12
            v_cos_f32 v14, v13
            v_sin_f32 v15, v13
            s_nop 0
            v_cvt_pk_bf16_f32 v{GF+q*4+d}, v14, v15""")
    a(f"""
    v_bfe_u32 v12, v0, 2, 2           ; r
    v_lshl_add_u32 v13, v2, {2 if shape == 32 else 3}, v12
    v_lshlrev_b32 v13, 7, v13
    v_lshrrev_b32 v12, 1, v12
    v_lshl_add_u32 v13, v12, 6, v13
    v_bfe_u32 v12, v0, 4, 1
    v_lshl_add_u32 v13, v12, 5, v13
    v_and_b32 v12, 3, v0
    v_lshl_add_u32 v13, v12, 3, v13
    v_add_u32 v{VTR}, s39, v13
    v_xor_b32 v{VTR+1}, 64, v{VTR}
    """)
    qoff = 1024 if shape == 32 else 512
    def trread(st):
        slot = st % K2_RING
        for ct in range(2):
            for q in range(2):
                a.lds(f"ds_read_b64_tr_b16 {v(AF+(st&1)*8+ct*4+q*2,2)}, v{VTR+ct} offset:{slot*2048 + q*qoff}", ("a", st, ct))
    stamp(a, cfg, 1)
    a.wait_vm([("w", 0)])
    trread(0)
    for st in range(NS):
        if st + 1 < NS:
            a.wait_vm([("w", st + 1), ("h", st)])
            trread(st + 1)
        else:
            a.wait_vm([("h", st)])
        h = HF + (st % HR) * 8
        for ct in range(2):
            a.wait_lds([("a", st, ct)])
            for rt in range(2):
                c = ACC + (rt * 2 + ct) * 16
                a(f"v_mfma_f32_32x32x16_bf16 {v(c,16)}, {v(AF+(st&1)*8+ct*4,4)}, {v(h+rt*4,4)}, {'0' if st == 0 else v(c,16)}")
        if st + PD < NS: issue(st + PD)
        if st == 12:
            a.wait_vm(["z", "x"])
            for q in range(4):
                a(f"v_mfma_f32_32x32x16_bf16 {v(Y,16)}, {v(ZF+q*4,4)}, {v(GF+q*4,4)}, {'0' if q == 0 else v(Y,16)}")
    stamp(a, cfg, 2)
    a(f"""
    v_lshlrev_b32 v12, 4, v0
    v_add_u32 v12, {K2_RED}, v12
    v_permlane32_swap_b32 v{XR}, v{XR+2}
    v_permlane32_swap_b32 v{XR+1}, v{XR+3}
    v_permlane32_swap_b32 v{XR+4}, v{XR+6}
    v_permlane32_swap_b32 v{XR+5}, v{XR+7}
    s_nop 7
    """)
    for w in range(4):
        a(f"s_cmp_eq_u32 s20, {w}\ns_cbranch_scc0 K2_W{w}")
        for o in range(4):
            if o == w: continue
            k = (w - o - 1) % 4
            for q in range(4): a(f"ds_write_b128 v12, {v(ACC+o*16+q*4,4)} offset:{(o*3+k)*4096 + q*1024}")
        if w != 0:
            for i in range(0, 16, 2): a(f"v_pk_mov_b32 {v(ACC+i,2)}, {v(ACC+w*16+i,2)}, {v(ACC+w*16+i,2)} op_sel:[0,1]" if False else f"v_mov_b32 v{64+i}, v{ACC+w*16+i}\nv_mov_b32 v{64+i+1}, v{ACC+w*16+i+1}")
        else:
            for i in range(16): a(f"v_mov_b32 v{64+i}, v{ACC+i}")
        a(f"K2_W{w}:")
    a(f"""
    s_mul_i32 s48, s20, {3*4096}
    v_add_u32 v12, s48, v12
    s_mov_b32 s52, s10
    s_mov_b32 s53, s11
    s_mov_b32 s48, 0xffff0000
    s_waitcnt lgkmcnt(0)
    s_barrier
    """)
    for k in range(3):
        for q in range(4): a.lds(f"ds_read_b128 {v(80+k*16+q*4,4)}, v12 offset:{k*4096 + q*1024}", ("r", k))
    for Q in range(4):
        for e in range(2):
            src = XR + Q * 2 + e
            a(f"v_lshlrev_b32 v{128+Q*4+2*e}, 16, v{src}\nv_and_b32 v{128+Q*4+2*e+1}, s48, v{src}")
    for k in range(3):
        a.wait_lds([("r", k)])
        for i in range(0, 16, 2): a(f"v_pk_add_f32 {v(64+i,2)}, {v(64+i,2)}, {v(80+k*16+i,2)}")
    stamp(a, cfg, 3)
    for i in range(16): a(f"v_mul_f32 v{80+i}, {fhex(-math.log2(math.e))}, v{64+i}")
    for i in range(16): a(f"v_exp_f32 v{80+i}, v{80+i}")
    for i in range(0, 16, 2): a(f"v_pk_mul_f32 {v(64+i,2)}, {v(64+i,2)}, {v(Y+i,2)}")
    for i in range(16): a(f"v_add_f32 v{80+i}, 1.0, v{80+i}")
    for i in range(16): a(f"v_rcp_f32 v{80+i}, v{80+i}")
    a("s_nop 0")
    for i in range(0, 16, 2): a(f"v_pk_fma_f32 {v(64+i,2)}, {v(64+i,2)}, {v(80+i,2)}, {v(128+i,2)}")
    for i in range(8): a(f"v_cvt_pk_bf16_f32 v{96+i}, v{64+2*i}, v{64+2*i+1}")
    a("""s_nop 1
    v_permlane32_swap_b32 v96, v98
    v_permlane32_swap_b32 v97, v99
    v_permlane32_swap_b32 v100, v102
    v_permlane32_swap_b32 v101, v103
    buffer_store_dwordx4 v[96:99], v11, s[52:55], 0 offen
    buffer_store_dwordx4 v[100:103], v11, s[52:55], 0 offen offset:32""")
    stamp(a, cfg, 4)
    if cfg.get("prof"): a("s_waitcnt vmcnt(0)")
    stamp(a, cfg, 5)
    prof_flush(a, cfg, 6, cfg.get("prof_base2", 0x1100000))
    a("K2_END:\ns_endpgm")
    return kernel("k2_kernel", a.text(), 256)
```

```python
import sys, json
from k1 import *
from k2 import *
HEAD = open("recurrent_scan__spectral_fnet__geglu_ffn__prompt.s.ref").read().split("; Override launch")[0]
def build(cfg):
    s = HEAD
    s += f"; @launch kernel=k1_kernel grid=(256,1,1) block=(512,1,1) lds={K1_LDS}\n"
    s += f"; @launch kernel=k2_kernel grid=(256,1,1) block=(256,1,1) lds={K2_LDS}\n"
    if cfg.get('dup'):
        l = s.split('\n'); s = '\n'.join(l[:-3] + [l[-3], l[-3], l[-2], l[-2], ''])
    s += '.amdgcn_target "amdgcn-amd-amdhsa--gfx950"\n'
    s += gen_k1(cfg) + gen_k2(cfg)
    return s
if __name__ == "__main__":
    out = sys.argv[1]
    cfg = {"shape": 32}
    for kv in sys.argv[2:]:
        k, val = kv.split("="); cfg[k] = int(val, 0)
    open(out, "w").write(build(cfg))
```

```python
from dsl import *
import math
H_BYTES = 64 * 86 * 1024
Z_OFF = 0x600000
Z_BYTES = 32 * 33 * 2048
OOB = 0x7F000000
LDS_X = 0
LDS_W = 49152
LDS_AUX = 147456
LDS_CS = LDS_AUX + 2048
K1_LDS = LDS_AUX + 4096
GC = -2.0 * math.sqrt(2.0 / math.pi) * math.log2(math.e)

sWAVE, sTYPE, sR, sC = 20, 21, 22, 23
SRD_X, SRD_W, SRD_O = 24, 28, 32

def stamp(a, cfg, idx):
    if cfg.get("prof") or cfg.get("dbgp"):
        a(f"s_memrealtime s[40:41]\ns_waitcnt lgkmcnt(0)\ns_mov_b32 s{60+idx}, s40")

def acc_stamp(a, cfg, idx):
    if cfg.get("prof2"):
        a(f"s_memtime s[40:41]\ns_waitcnt lgkmcnt(0)\ns_sub_u32 s41, s40, s78\ns_mov_b32 s78, s40\ns_add_u32 s{66+idx}, s{66+idx}, s41")

def dbg_flush(a, cfg, items, back):
    if not cfg.get("dbgp"): return
    a(f"s_load_dwordx2 s[44:45], s[0:1], 80\ns_waitcnt lgkmcnt(0)\ns_sub_u32 s44, s44, {back}\ns_subb_u32 s45, s45, 0\ns_mov_b32 s46, 256\ns_mov_b32 s47, 0x00020000")
    a("s_mov_b64 exec, 1\nv_mov_b32 v1, 0")
    for slot, idx, neg in items:
        a(f"s_not_b32 s42, s{60+idx}" if neg else f"s_mov_b32 s42, s{60+idx}")
        a(f"v_mov_b32 v2, s42\nbuffer_atomic_umax v2, v1, s[44:47], 0 offen offset:{4*slot}")
    a("s_waitcnt vmcnt(0)\ns_mov_b64 exec, -1")

def prof_flush(a, cfg, n, base):
    if cfg.get("prof2"): n = 12
    if not cfg.get("prof"): return
    a(f"s_lshl_b32 s42, s2, 3\ns_add_u32 s42, s42, s{sWAVE}\ns_lshl_b32 s42, s42, 6\ns_add_u32 s42, s42, {base}")
    a("s_mov_b32 s44, s16\ns_mov_b32 s45, s17\ns_mov_b32 s46, 0x10000000\ns_mov_b32 s47, 0x00020000")
    a("s_mov_b64 exec, 1\nv_mov_b32 v1, 0")
    for i in range(n):
        a(f"v_mov_b32 v2, s{60+i}\nbuffer_store_dword v2, v1, s[44:47], s42 offen offset:{4*i}")
    a("s_waitcnt vmcnt(0)\ns_mov_b64 exec, -1")

def entry(a, cfg):
    a("""
    s_cmp_ge_u32 s2, 256
    s_cbranch_scc1 K1_END
    s_load_dwordx2 s[4:5], s[0:1], 0
    s_load_dwordx4 s[8:11], s[0:1], 24
    s_load_dwordx4 s[12:15], s[0:1], 48
    s_load_dwordx2 s[16:17], s[0:1], 88
    s_load_dwordx2 s[18:19], s[0:1], 64
    v_lshrrev_b32 v1, 6, v0
    v_and_b32 v0, 63, v0
    s_and_b32 s3, s2, 7
    v_readfirstlane_b32 s20, v1
    s_lshr_b32 s6, s2, 3          ; loc
    s_lshr_b32 s7, s3, 1          ; a
    s_and_b32 s3, s3, 1           ; b
    s_lshl_b32 s36, s7, 2         ; 4a
    s_sub_u32 s37, 6, s3          ; nc
    s_lshl_b32 s38, s37, 2        ; nffn
    s_cmp_lt_u32 s6, s38
    s_cbranch_scc0 K1_ROLE2
    s_mul_i32 s39, s3, 9
    s_add_u32 s39, s39, 43
    s_mul_i32 s39, s39, s6
    s_lshr_b32 s39, s39, 8        ; q
    s_add_u32 s22, s36, s39       ; rho
    s_mul_i32 s39, s39, s37
    s_sub_u32 s23, s6, s39
    s_mul_i32 s39, s3, 6
    s_add_u32 s23, s23, s39       ; cg
    s_mov_b32 s21, 0
    s_branch K1_ROLED
K1_ROLE2:
    s_sub_u32 s6, s6, s38         ; l2
    s_cmp_lt_u32 s6, 8
    s_cbranch_scc0 K1_ROLE3
    s_and_b32 s39, s6, 3
    s_add_u32 s22, s36, s39       ; w
    s_lshr_b32 s39, s6, 2
    s_lshl_b32 s23, s3, 1
    s_add_u32 s23, s23, s39       ; eq
    s_mov_b32 s21, 1
    s_branch K1_ROLED
K1_ROLE3:
    s_sub_u32 s6, s6, 8
    s_cmp_ge_u32 s6, 3
    s_cbranch_scc1 K1_END
    s_mul_i32 s23, s7, 3
    s_add_u32 s23, s23, s6
    s_cmp_ge_u32 s23, 11
    s_cbranch_scc1 K1_END
    s_mov_b32 s22, 16
    s_mov_b32 s21, 0
K1_ROLED:
    """)
    stamp(a, cfg, 9)
    a("s_cmp_lt_u32 s20, 4\ns_cbranch_scc1 K1_MMA")

def x_voffsets(a, base):
    a(f"""
    v_lshrrev_b32 v2, 3, v0           ; l>>3
    v_lshrrev_b32 v3, 4, v0           ; l>>4
    v_and_b32 v4, 7, v0
    v_xor_b32 v4, v4, v3
    v_xor_b32 v5, 4, v4
    v_lshlrev_b32 v4, 4, v4
    v_lshlrev_b32 v5, 4, v5
    s_lshr_b32 s37, s36, 1
    s_and_b32 s38, s36, 1
    s_lshl_b32 s38, s38, 5
    s_add_u32 s37, s37, s38
    s_lshl_b32 s38, s22, 1
    s_add_u32 s37, s37, s38
    s_lshl_b32 s37, s37, 10
    v_lshlrev_b32 v6, 16, v2
    v_add_u32 v6, s37, v6
    v_add_u32 v{base}, v6, v4
    v_add_u32 v{base+1}, v6, v5
    v_add_u32 v{base+1}, 0x80000, v{base+1}
    v_add_u32 v{base+2}, 0x100000, v{base}
    v_add_u32 v{base+3}, 0x100000, v{base+1}
    s_cmp_lt_u32 s22, 16
    s_cbranch_scc1 K1_XOK
    v_lshlrev_b32 v6, 11, v2
    v_add_u32 v6, {2017*1024}, v6
    v_add_u32 v{base}, v6, v4
    v_add_u32 v{base+1}, v6, v5
    v_add_u32 v{base+1}, {16*1024}, v{base+1}
    v_mov_b32 v{base+2}, {OOB}
    v_mov_b32 v{base+3}, {OOB}
    s_cmp_eq_u32 s36, 0
    s_cbranch_scc1 K1_XOK
    v_mov_b32 v{base}, {OOB}
    v_mov_b32 v{base+1}, {OOB}
K1_XOK:
    """)

def loader(a, cfg):
    shape = cfg["shape"]
    VX, VW = 10, 14
    VA = 18
    a(f"s_sub_u32 s36, s20, 4\ns_setprio {cfg.get('pl', 0)}")
    x_voffsets(a, VX)
    a(f"""
    v_and_b32 v7, 31, v0
    v_lshrrev_b32 v8, 5, v0
    v_bfe_u32 v9, v0, 1, 3
    v_xor_b32 v8, v8, v9
    v_lshlrev_b32 v8, 4, v8
    v_lshl_add_u32 v8, v7, 7, v8
    s_lshl_b32 s37, s36, 12
    v_add_u32 v{VA}, s37, v8
    v_xor_b32 v{VA+1}, 32, v{VA}
    v_xor_b32 v{VA+2}, 64, v{VA}
    v_xor_b32 v{VA+3}, 96, v{VA}
    s_mov_b32 s48, 0xffff0000
    s_lshl_b32 s49, s36, 12
    s_cmp_eq_u32 s21, 0
    s_cbranch_scc0 K1_LD_DFT
    """)
    for typ in ("F", "D"):
        L = "K1_L" + typ
        if typ == "D": a.label("K1_LD_DFT")
        nW = 8 if typ == "F" else 4
        per = 4 + nW
        if typ == "F":
            a(f"""
            v_lshrrev_b32 v3, 4, v0
            v_bfe_u32 v4, v0, 1, 3
            v_lshlrev_b32 v5, 1, v3
            s_and_b32 s37, s36, 1             ; mat
            s_lshr_b32 s38, s36, 1
            v_xor_b32 v4, v4, v5
            v_xor_b32 v4, {'s37' if shape == 32 else 's38'}, v4
            v_lshlrev_b32 v4, 5, v4
            v_and_b32 v5, 1, v0
            v_lshl_add_u32 v4, v5, 4, v4
            v_mul_u32_u24 v3, 2752, v3
            s_lshl_b32 s39, s23, 8
            v_add3_u32 v{VW}, v3, v4, s39
            s_mul_i32 s50, s38, {2*11008}
            s_lshl_b32 s51, s37, 14
            s_lshl_b32 s39, s38, 11
            s_add_u32 s51, s51, s39
            s_add_u32 s51, s51, {LDS_W}
            s_cmp_eq_u32 s36, 3
            s_cselect_b32 s55, 0x00ffffff, -1
            s_mov_b32 s54, -1
            s_cmp_eq_u32 s37, 0
            s_waitcnt lgkmcnt(0)
            s_cselect_b32 s28, s12, s14
            s_cselect_b32 s29, s13, s15
            s_mov_b32 s30, 1409024
            """)
        else:
            a(f"""
            v_lshrrev_b32 v2, 3, v0
            v_lshrrev_b32 v3, 4, v0
            v_and_b32 v4, 7, v0
            v_xor_b32 v4, v4, v3
            v_lshlrev_b32 v4, 4, v4
            s_and_b32 s37, s36, 1
            s_lshl_b32 s37, s37, 5
            s_lshl_b32 s38, s23, 6
            s_add_u32 s37, s37, s38
            v_add_u32 v2, s37, v2
            v_lshl_add_u32 v{VW}, v2, 10, v4
            v_xor_b32 v5, 64, v{VW}
            v_add_u32 v{VW+1}, 0x2000, v5
            v_add_u32 v{VW+2}, 0x4000, v{VW}
            v_add_u32 v{VW+3}, 0x6000, v5
            s_cmp_lt_u32 s36, 2
            s_cselect_b32 s38, 0x40000, 0
            v_cmp_eq_u32 vcc, 0, v2
            v_mov_b32 v5, s38
            s_nop 0
            v_cndmask_b32 v5, 0, v5, vcc
            v_add_u32 v{VW}, v{VW}, v5
            s_lshl_b32 s51, s36, 12
            s_add_u32 s51, s51, {LDS_W}
            s_cmp_lt_u32 s36, 2
            s_waitcnt lgkmcnt(0)
            s_cselect_b32 s28, s8, s10
            s_cselect_b32 s29, s9, s11
            s_mov_b32 s30, 524288
            """)
        a(f"""
        s_mov_b32 s31, 0x00020000
        s_mov_b32 s24, s4
        s_mov_b32 s25, s5
        s_mov_b32 s26, 2097152
        s_mov_b32 s27, 0x00020000
        """)
        a(f's_mov_b32 s59, {OOB}')
        rot = cfg.get("rot", 0)
        if rot == 0: a("s_mov_b32 s53, 0")
        elif rot == 1: a("s_add_u32 s53, s22, s23\ns_and_b32 s53, s53, 7")
        elif rot == 2: a("s_lshr_b32 s53, s2, 3\ns_and_b32 s53, s53, 7")
        elif rot == 3: a("s_lshl_b32 s53, s22, 1\ns_add_u32 s53, s53, s23\ns_and_b32 s53, s53, 7")
        a("s_lshl_b32 s52, s53, 7")
        if typ == "F": a("s_mul_i32 s53, s53, 176128\ns_add_u32 s50, s50, s53")
        wstage = 32768 if typ == "F" else 16384
        def issue_list():
            if typ == "F": order = [("x", 0), ("w", 0), ("x", 1), ("w", 1), ("x", 2), ("w", 2), ("x", 3), ("w", 3)] + [("w", i) for i in range(4, 8)]
            else: order = [("x", 0), ("w", 0), ("x", 1), ("w", 1), ("x", 2), ("w", 2), ("x", 3), ("w", 3)]
            out = []
            for kind, i in order:
                g = ""
                if kind == "x":
                    g += f"s_add_u32 m0, s49, {i*1024}\n"
                    g += "s_mov_b64 exec, s[54:55]\n" if (i == 3 and typ == "F") else "s_nop 0\n"
                    g += f"buffer_load_dwordx4 v{VX+i}, s[24:27], s52 offen lds\n"
                    if i == 3 and typ == "F": g += "s_mov_b64 exec, -1\n"
                elif typ == "F":
                    kq = 4 * (i >> 1) + (i & 1)
                    g += f"s_add_u32 m0, s51, {kq*1024}\ns_add_u32 s53, s50, {kq*11008}\nbuffer_load_dwordx4 v{VW}, s[28:31], s53 offen lds\n"
                else:
                    g += f"s_add_u32 m0, s51, {i*1024}\ns_nop 0\nbuffer_load_dwordx4 v{VW+i}, s[28:31], s52 offen lds\n"
                if cfg.get('nox') and kind == 'x': g = g.replace('s52 offen', 's59 offen')
                if cfg.get('now') and kind == 'w': g = g.replace('s53 offen', 's59 offen').replace('s52 offen', 's59 offen')
                out.append(g)
            return out
        def rotate():
            a("s_add_u32 s52, s52, 128\ns_and_b32 s52, s52, 1023")
            if typ == "F": a(f"s_cselect_b32 s53, 0, {8*176128}\ns_add_u32 s50, s50, 176128\ns_sub_u32 s50, s50, s53")
            a(f"s_add_u32 s49, s49, 16384\ns_add_u32 s51, s51, {wstage}")
            a(f"s_cmp_ge_u32 s49, 49152\ns_cselect_b32 s53, 49152, 0\ns_sub_u32 s49, s49, s53")
            a(f"s_cmp_ge_u32 s51, {LDS_W + 3*wstage}\ns_cselect_b32 s53, {3*wstage}, 0\ns_sub_u32 s51, s51, s53")
        def issue():
            for g in issue_list(): a(g)
            rotate()
        stamp(a, cfg, 0)
        a(f"s_mov_b32 s56, 0\n{L}_PRO:")
        issue()
        a(f"s_add_u32 s56, s56, 1\ns_cmp_lt_u32 s56, 2\ns_cbranch_scc1 {L}_PRO")
        if typ == "F":
            a(f"""
            s_cmp_eq_u32 s36, 3
            s_cbranch_scc0 {L}_NOONES
            v_lshrrev_b32 v2, 3, v0
            v_and_b32 v3, 7, v0
            v_lshlrev_b32 v2, 14, v2
            v_lshl_add_u32 v2, v3, 4, v2
            v_mov_b32 v4, 0x3f803f80
            v_mov_b32 v5, v4
            v_mov_b32 v6, v4
            v_mov_b32 v7, v4
            s_mov_b64 exec, 0xffffff
            ds_write_b128 v2, v[4:7] offset:{127*128}
            s_mov_b64 exec, -1
{L}_NOONES:
            """)
        a("v_mov_b32 v24, 0\nv_mov_b32 v25, 0\nv_mov_b32 v26, 0\nv_mov_b32 v27, 0\nv_mov_b32 v28, 0\nv_mov_b32 v29, 0")
        a(f"s_mov_b32 s56, 0\ns_mov_b32 s57, 0\ns_waitcnt vmcnt({per}) lgkmcnt(0)")
        stamp(a, cfg, 1)
        if cfg.get("prof2"):
            for i in range(6): a(f"s_mov_b32 s{66+i}, 0")
            acc_stamp(a, cfg, 5)
        a(f"{L}_LOOP:")
        acc_stamp(a, cfg, 0)
        a("s_barrier")
        acc_stamp(a, cfg, 1)
        for i in range(4): a(f"v_add_u32 v{32+i}, s57, v{VA+i}")
        for i in range(4): a(f"ds_read_b128 {v(40+4*i,4)}, v{32+i}")
        if typ == "D":
            for i in range(4): a(f"ds_read_b128 {v(56+4*i,4)}, v{32+i} offset:{LDS_W}")
        def stat_ops():
            ops = []
            for i in range(16):
                d = 40 + i
                ops += [f"v_and_b32 v30, s48, v{d}", f"v_lshlrev_b32 v31, 16, v{d}", "v_add_f32 v24, v24, v30", "v_add_f32 v25, v25, v31", "v_fmac_f32 v26, v30, v30", "v_fmac_f32 v27, v31, v31"]
            if typ == "D":
                for i in range(16):
                    d = 56 + i
                    ops += [f"v_and_b32 v30, s48, v{d}", f"v_lshlrev_b32 v31, 16, v{d}", "v_add_f32 v28, v28, v30", "v_add_f32 v29, v29, v31"]
            return ops
        ops = stat_ops(); gl = issue_list()
        if cfg.get('nostats'): ops = ops[:12]
        a(f"s_cmp_lt_u32 s56, 6\ns_cbranch_scc0 {L}_NOISS")
        a(gl[0]); a(gl[1])
        a("s_waitcnt lgkmcnt(0)")
        rest = gl[2:]; step = len(ops) // (len(rest) + 1)
        k = 0
        for n, g in enumerate(rest):
            for o in ops[k:k + step]: a(o)
            k += step
            a(g)
        for o in ops[k:]: a(o)
        rotate()
        a(f"s_branch {L}_JOIN\n{L}_NOISS:\ns_waitcnt lgkmcnt(0)")
        for o in ops: a(o)
        a(f"{L}_JOIN:")
        acc_stamp(a, cfg, 3)
        a(f"""
        s_add_u32 s57, s57, 16384
        s_cmp_ge_u32 s57, 49152
        s_cselect_b32 s57, 0, s57
        s_add_u32 s56, s56, 1
        s_cmp_lt_u32 s56, 7
        s_cbranch_scc0 {L}_LAST
        s_waitcnt vmcnt({per})
        s_branch {L}_LOOP
{L}_LAST:
        s_waitcnt vmcnt(0)
        s_cmp_eq_u32 s56, 7
        s_cbranch_scc1 {L}_LOOP
        """)
        a(f"""
        v_add_f32 v24, v24, v25
        v_add_f32 v26, v26, v27
        v_add_f32 v28, v28, v29
        v_mov_b32 v25, v24
        v_mov_b32 v27, v26
        v_mov_b32 v29, v28
        s_nop 1
        v_permlane32_swap_b32 v24, v25
        v_permlane32_swap_b32 v26, v27
        v_permlane32_swap_b32 v28, v29
        s_nop 1
        v_add_f32 v24, v24, v25
        v_add_f32 v26, v26, v27
        v_add_f32 v28, v28, v29
        v_mul_f32 v24, {fhex(1/512)}, v24          ; mean
        v_mul_f32 v26, {fhex(1/512)}, v26
        v_fma_f32 v26, -v24, v24, v26              ; var
        v_max_f32 v26, 0, v26
        v_cvt_pk_bf16_f32 v30, v24, v26
        v_lshlrev_b32 v24, 16, v30                 ; bf16(mean)
        v_and_b32 v26, s48, v30                    ; bf16(var)
        v_add_f32 v26, {fhex(1e-5)}, v26
        v_cvt_pk_bf16_f32 v26, v26, v26
        v_and_b32 v26, s48, v26
        v_sqrt_f32 v26, v26
        s_nop 0
        v_cvt_pk_bf16_f32 v26, v26, v26
        v_and_b32 v26, s48, v26                    ; sd
        v_rcp_f32 v27, v26                         ; r
        v_and_b32 v7, 31, v0
        s_lshl_b32 s37, s36, 5
        v_add_u32 v7, s37, v7                      ; row
        """)
        if typ == "F":
            a(f"""
            v_sub_f32 v32, 0, v24
            v_mul_f32 v33, {fhex(GC)}, v27
            v_mul_f32 v34, v27, v27
            v_mul_f32 v34, {fhex(0.044715)}, v34
            v_mul_f32 v34, v34, v33
            v_mul_f32 v35, v26, v26
            v_lshlrev_b32 v7, 4, v7
            ds_write_b128 v7, v[32:35] offset:{LDS_AUX & 0xffff}
            """.replace(f"offset:{LDS_AUX & 0xffff}", "offset:0").replace("v_lshlrev_b32 v7, 4, v7", f"v_lshlrev_b32 v7, 4, v7\nv_add_u32 v7, {LDS_AUX}, v7"))
        else:
            a(f"""
            v_sub_f32 v32, 0, v24
            v_lshlrev_b32 v7, 2, v7
            v_add_u32 v7, {LDS_AUX}, v7
            ds_write_b32 v7, v32
            ds_write_b32 v7, v27 offset:512
            ds_write_b32 v7, v28 offset:1024
            """)
        a("s_waitcnt lgkmcnt(0)\ns_barrier")
        stamp(a, cfg, 2)
        prof_flush(a, cfg, 3, cfg.get("prof_base", 0x1000000))
        a("s_endpgm")

def mma_ffn(a, cfg):
    shape = cfg["shape"]
    ACC = 128
    VXA, VWA = 8, 12
    XF, WF = 16, 48
    a("s_lshr_b32 s36, s20, 1\ns_and_b32 s37, s20, 1")
    if shape == 32:
        a(f"""
        v_and_b32 v1, 31, v0
        v_lshrrev_b32 v2, 5, v0
        v_bfe_u32 v3, v0, 1, 3
        v_xor_b32 v3, v3, v2
        v_lshlrev_b32 v3, 4, v3
        v_lshl_add_u32 v3, v1, 7, v3
        s_lshl_b32 s38, s36, 13
        v_add_u32 v{VXA}, s38, v3
        v_xor_b32 v{VXA+1}, 32, v{VXA}
        v_xor_b32 v{VXA+2}, 64, v{VXA}
        v_xor_b32 v{VXA+3}, 96, v{VXA}
        v_bfe_u32 v3, v0, 2, 2            ; r
        v_bfe_u32 v4, v0, 4, 1            ; mat
        v_lshl_add_u32 v5, v2, 3, v3      ; 8h + r
        v_lshlrev_b32 v5, 8, v5
        v_lshl_add_u32 v5, v4, 14, v5
        v_lshl_or_b32 v3, v3, 1, v4       ; g = r<<1 | mat
        """)
        nxa = 4
    else:
        a(f"""
        v_and_b32 v1, 15, v0
        v_lshrrev_b32 v2, 4, v0           ; g
        v_bfe_u32 v3, v0, 1, 3
        v_xor_b32 v3, v3, v2
        v_lshlrev_b32 v3, 4, v3
        v_lshl_add_u32 v3, v1, 7, v3
        s_lshl_b32 s38, s36, 13
        v_add_u32 v{VXA}, s38, v3
        v_xor_b32 v{VXA+1}, 64, v{VXA}
        v_bfe_u32 v3, v0, 2, 2            ; r
        v_and_b32 v4, 1, v2
        v_lshl_add_u32 v5, v2, 3, v3      ; 8g + r
        v_lshlrev_b32 v5, 8, v5
        v_lshl_or_b32 v3, v3, 1, v4       ; (r<<1) | (g&1)
        """)
        nxa = 2
    a(f"""
    s_lshl_b32 s38, s37, 2
    v_xor_b32 v3, s38, v3             ; u ^ g for j = 0
    v_lshl_add_u32 v5, v3, 5, v5
    v_and_b32 v4, 3, v0
    v_lshl_add_u32 v5, v4, 3, v5
    v_add_u32 v{VWA}, {LDS_W}, v5
    v_xor_b32 v{VWA+1}, 32, v{VWA}
    v_xor_b32 v{VWA+2}, 64, v{VWA}
    v_xor_b32 v{VWA+3}, 96, v{VWA}
    """)
    for i in range(128): a(f"v_mov_b32 v{ACC+i}, 0")
    a(f"s_mov_b32 s56, 0\ns_mov_b32 s57, 0\ns_setprio {cfg.get('pm', 0)}")
    stamp(a, cfg, 0)
    if shape == 32:
        nstep, nA, nB = 4, 4, 2
        def xread(st, t, set_): return f"ds_read_b128 {v(XF + set_*8 + t*4, 4)}, v{VXA+st} offset:{t*4096}"
        def wread(st, p, q): return f"ds_read_b64_tr_b16 {v(WF + (p%4)*4 + q*2, 2)}, v{VWA+p} offset:{st*4096 + q*1024}"
        def mfma(st, p, t):
            c = ACC + (p * 2 + t) * 16
            return f"v_mfma_f32_32x32x16_bf16 {v(c,16)}, {v(WF+(p%4)*4,4)}, {v(XF+(st&1)*8+t*4,4)}, {v(c,16)}"
    else:
        nstep, nA, nB = 2, 8, 4
        def xread(st, t, set_): return f"ds_read_b128 {v(XF + set_*16 + t*4, 4)}, v{VXA+st} offset:{t*2048}"
        def wread(st, p, q): return f"ds_read_b64_tr_b16 {v(WF + (p%4)*4 + q*2, 2)}, v{VWA+(p>>1)} offset:{(p&1)*16384 + st*8192 + q*1024}"
        def mfma(st, p, t):
            c = ACC + (p * 4 + t) * 4
            return f"v_mfma_f32_16x16x32_bf16 {v(c,4)}, {v(WF+(p%4)*4,4)}, {v(XF+(st&1)*16+t*4,4)}, {v(c,4)}"
    def rd_x(st, t): a.lds(xread(st % nstep, t, st & 1), ("x", st % nstep, t))
    def rd_w(gp):
        st, p = (gp // nA) % nstep, gp % nA
        for q in range(2): a.lds(wread(st, p, q), ("w", st, p))
    NP = nstep * nA
    def head_reads(k):
        if k == 0:
            rd_x(0, 0); rd_w(0)
            for t in range(1, nB): rd_x(0, t)
        else: rd_w(k)
    a("s_barrier")
    stamp(a, cfg, 1)
    for k in range(4): head_reads(k)
    entry_q = list(a.lds_q)
    a(".p2align 3\nK1_FLOOP:")
    for gp in range(NP):
        st, p = gp // nA, gp % nA
        for t in range(nB):
            a.wait_lds([("w", st, p), ("x", st, t)])
            if not cfg.get('nomfma'): a(mfma(st, p, t))
            if st + 1 < nstep and p < nB and t == 0: rd_x(st + 1, p)
            if gp == NP - 5 and t == 0:
                pass
        nxt = gp + 4
        if nxt < NP: rd_w(nxt)
        else:
            k = nxt - NP
            if k == 0:
                a.wait_lds_all()
                a("s_barrier")
            head_reads(k)
        if nxt == NP - 1:
            a("s_add_u32 s57, s57, 1\ns_cmp_eq_u32 s57, 3\ns_cselect_b32 s58, -2, 1\ns_cselect_b32 s57, 0, s57\ns_lshl_b32 s59, s58, 15\ns_lshl_b32 s58, s58, 14")
            for i in range(nxa): a(f"v_add_u32 v{VXA+i}, s58, v{VXA+i}")
            for i in range(4): a(f"v_add_u32 v{VWA+i}, s59, v{VWA+i}")
    assert a.lds_q == entry_q, (a.lds_q, entry_q)
    a("s_add_u32 s56, s56, 1\ns_cmp_lt_u32 s56, 8\ns_cbranch_scc1 K1_FLOOP")
    a.lds_q = []
    stamp(a, cfg, 2)
    a("s_setprio 0")
    a(f"""
    s_mov_b32 s32, s16
    s_mov_b32 s33, s17
    s_mov_b32 s34, {H_BYTES}
    s_mov_b32 s35, 0x00020000
    s_waitcnt lgkmcnt(0)
    """)
    ST, CS, T, O, VH = 16, 32, 64, 72, 80
    if shape == 32:
        a(f"""
        v_lshrrev_b32 v2, 5, v0
        s_lshl_b32 s38, s37, 9
        s_add_u32 s38, s38, {LDS_CS}
        v_lshlrev_b32 v3, 6, v2
        v_add_u32 v3, s38, v3
        s_cmp_eq_u32 s36, 1
        s_cbranch_scc0 K1_NOCS
        s_mov_b32 exec_lo, 0x80000000
        s_mov_b32 exec_hi, 0x80000000
        s_nop 7
        """)
        for j in range(4):
            for q in range(4): a(f"ds_write_b128 v3, {v(ACC + (j*2+1)*16 + q*4, 4)} offset:{j*128 + q*16}")
        a("s_mov_b64 exec, -1\nK1_NOCS:")
        a(f"""
        v_and_b32 v1, 31, v0
        s_lshl_b32 s38, s36, 10
        s_add_u32 s38, s38, {LDS_AUX}
        v_lshlrev_b32 v4, 4, v1
        v_add_u32 v4, s38, v4
        s_lshl_b32 s38, s22, 2
        s_lshl_b32 s39, s36, 1
        s_add_u32 s38, s38, s39
        s_mul_i32 s38, s38, 88064
        v_lshlrev_b32 v5, 4, v0
        v_add_u32 v{VH}, s38, v5
        v_add_u32 v{VH+1}, 88064, v{VH}
        v_cmp_eq_u32 vcc, 31, v1
        s_cmp_eq_u32 s36, 1
        s_nop 3
        s_cselect_b64 vcc, vcc, 0
        v_mov_b32 v6, {OOB}
        s_nop 0
        v_cndmask_b32 v{VH+1}, v{VH+1}, v6, vcc
        s_cmp_lt_u32 s22, 16
        s_cbranch_scc1 K1_HOK
        v_mul_u32_u24 v5, {4*88064}, v1
        v_lshlrev_b32 v7, 9, v2
        v_add_u32 v5, v5, v7
        v_add_u32 v5, {3*88064 + 31*16}, v5
        v_cmp_gt_u32 vcc, 16, v1
        s_cmp_eq_u32 s36, 0
        s_nop 3
        s_cselect_b64 vcc, vcc, 0
        v_mov_b32 v{VH+1}, v6
        s_nop 0
        v_cndmask_b32 v{VH}, v6, v5, vcc
K1_HOK:
        s_lshl_b32 s38, s23, 3
        s_lshl_b32 s39, s37, 2
        s_add_u32 s38, s38, s39           ; step0
        s_waitcnt lgkmcnt(0)
        s_barrier
        """)
        stamp(a, cfg, 3)
        for rt in range(2): a.lds(f"ds_read_b128 {v(ST+rt*4,4)}, v4 offset:{rt*512}", "st")
        def rd_cs(j):
            for q in range(4): a.lds(f"ds_read_b128 {v(CS+(j&1)*16+q*4,4)}, v3 offset:{j*128+q*16}", ("cs", j))
        rd_cs(0)
        for j in range(4):
            if j + 1 < 4: rd_cs(j + 1)
            a.wait_lds(["st", ("cs", j)])
            a(f"s_add_u32 s39, s38, {j}\ns_cmp_ge_u32 s39, 86\ns_cbranch_scc1 K1_FDONE\ns_lshl_b32 s39, s39, 10")
            for rt in range(2):
                c = ACC + (j * 2 + rt) * 16
                geglu(a, [(c + 2*p, c + 8 + 2*p, CS + (j&1)*16 + 2*p, CS + (j&1)*16 + 8 + 2*p, ST + rt*4) for p in range(4)], T, O + rt*4)
                a(f"buffer_store_dwordx4 {v(O+rt*4,4)}, v{VH+rt}, s[32:35], s39 offen")
    else:
        a(f"""
        v_lshrrev_b32 v2, 4, v0           ; g
        s_lshl_b32 s38, s37, 9
        s_add_u32 s38, s38, {LDS_CS}
        v_lshlrev_b32 v3, 4, v2
        v_add_u32 v3, s38, v3
        s_cmp_eq_u32 s36, 1
        s_cbranch_scc0 K1_NOCS
        s_mov_b32 exec_lo, 0x80008000
        s_mov_b32 exec_hi, 0x80008000
        s_nop 7
        """)
        for p in range(8): a(f"ds_write_b128 v3, {v(ACC + (p*4+3)*4, 4)} offset:{p*64}")
        a("s_mov_b64 exec, -1\nK1_NOCS:")
        a(f"""
        v_and_b32 v1, 15, v0
        s_lshl_b32 s38, s36, 10
        s_add_u32 s38, s38, {LDS_AUX}
        v_lshlrev_b32 v4, 4, v1
        v_add_u32 v4, s38, v4
        s_lshl_b32 s38, s22, 2
        s_lshl_b32 s39, s36, 1
        s_add_u32 s38, s38, s39
        s_mul_i32 s38, s38, 88064
        v_lshrrev_b32 v5, 1, v2
        v_lshlrev_b32 v5, 9, v5
        v_and_b32 v7, 1, v2
        v_lshl_add_u32 v7, v7, 3, v5      ; (g>>1)*512 + (g&1)*8
        v_lshl_add_u32 v5, v1, 4, v7
        v_add_u32 v{VH}, s38, v5
        v_add_u32 v{VH+1}, 256, v{VH}
        v_add_u32 v{VH+2}, 88064, v{VH}
        v_add_u32 v{VH+3}, {88064+256}, v{VH}
        v_cmp_eq_u32 vcc, 15, v1
        s_cmp_eq_u32 s36, 1
        s_nop 3
        s_cselect_b64 vcc, vcc, 0
        v_mov_b32 v6, {OOB}
        s_nop 0
        v_cndmask_b32 v{VH+3}, v{VH+3}, v6, vcc
        s_cmp_lt_u32 s22, 16
        s_cbranch_scc1 K1_HOK
        v_mul_u32_u24 v5, {4*88064}, v1
        v_add_u32 v5, v5, v7
        v_add_u32 v{VH}, {3*88064 + 31*16}, v5
        v_mov_b32 v{VH+1}, v6
        v_mov_b32 v{VH+2}, v6
        v_mov_b32 v{VH+3}, v6
        s_cmp_eq_u32 s36, 0
        s_cbranch_scc1 K1_HOK
        v_mov_b32 v{VH}, v6
K1_HOK:
        s_lshl_b32 s38, s23, 3
        s_lshl_b32 s39, s37, 2
        s_add_u32 s38, s38, s39           ; step0
        s_waitcnt lgkmcnt(0)
        s_barrier
        """)
        stamp(a, cfg, 3)
        for t in range(4): a.lds(f"ds_read_b128 {v(ST+t*4,4)}, v4 offset:{t*256}", "st")
        for p in range(8): a.lds(f"ds_read_b128 {v(CS+p*4,4)}, v3 offset:{p*64}", ("cs", p >> 1))
        for j in range(4):
            a.wait_lds(["st", ("cs", j)])
            a(f"s_add_u32 s39, s38, {j}\ns_cmp_ge_u32 s39, 86\ns_cbranch_scc1 K1_FDONE\ns_lshl_b32 s39, s39, 10")
            for tt in range(2):
                items = []
                for t in (2 * tt, 2 * tt + 1):
                    cg_, cu_ = ACC + ((2*j) * 4 + t) * 4, ACC + ((2*j+1) * 4 + t) * 4
                    for p in range(2): items.append((cg_ + 2*p, cu_ + 2*p, CS + 8*j + 2*p, CS + 8*j + 4 + 2*p, ST + t*4))
                geglu(a, items, T, O + tt*4)
                a(f"buffer_store_dwordx2 {v(O+tt*4,2)}, v{VH+2*tt}, s[32:35], s39 offen")
                a(f"buffer_store_dwordx2 {v(O+tt*4+2,2)}, v{VH+2*tt+1}, s[32:35], s39 offen")
    a.lds_q = []
    a("K1_FDONE:")
    stamp(a, cfg, 4)
    if cfg.get("prof") or cfg.get("dbgp"): a("s_waitcnt vmcnt(0)")
    stamp(a, cfg, 5)
    prof_flush(a, cfg, 6, cfg.get("prof_base", 0x1000000))
    dbg_flush(a, cfg, [(0, 9, 1), (1, 9, 0), (2, 1, 1), (3, 1, 0), (4, 2, 0), (5, 5, 0)], 0)
    a("s_endpgm")

def geglu(a, items, T, O):
    for g, u, cg, cu, st in items: a(f"v_pk_fma_f32 {v(g,2)}, {v(st,2)}, {v(cg,2)}, {v(g,2)} op_sel_hi:[0,1,1]")
    for i, (g, u, cg, cu, st) in enumerate(items): a(f"v_pk_mul_f32 {v(T+2*i,2)}, {v(g,2)}, {v(g,2)}")
    for i, (g, u, cg, cu, st) in enumerate(items): a(f"v_pk_fma_f32 {v(T+2*i,2)}, {v(T+2*i,2)}, {v(st+2,2)}, {v(st,2)} op_sel:[0,0,1] op_sel_hi:[1,0,1]")
    for i, (g, u, cg, cu, st) in enumerate(items): a(f"v_pk_mul_f32 {v(T+2*i,2)}, {v(T+2*i,2)}, {v(g,2)}")
    for i in range(8): a(f"v_exp_f32 v{T+i}, v{T+i}")
    for g, u, cg, cu, st in items: a(f"v_pk_fma_f32 {v(u,2)}, {v(st,2)}, {v(cu,2)}, {v(u,2)} op_sel_hi:[0,1,1]")
    for i, (g, u, cg, cu, st) in enumerate(items): a(f"v_pk_fma_f32 {v(T+2*i,2)}, {v(T+2*i,2)}, {v(st+2,2)}, {v(st+2,2)} op_sel:[0,1,1] op_sel_hi:[1,1,1]")
    for i in range(8): a(f"v_rcp_f32 v{T+i}, v{T+i}")
    for g, u, cg, cu, st in items: a(f"v_pk_mul_f32 {v(u,2)}, {v(u,2)}, {v(g,2)}")
    for i, (g, u, cg, cu, st) in enumerate(items): a(f"v_pk_mul_f32 {v(u,2)}, {v(u,2)}, {v(T+2*i,2)}")
    for i, (g, u, cg, cu, st) in enumerate(items): a(f"v_cvt_pk_bf16_f32 v{O+i}, v{u}, v{u+1}")

def mma_dft(a, cfg):
    ACC, OUT, FF, BF = 128, 192, 64, 96
    VXA, VWA = 8, 12
    XF, WF = 16, 32
    a("s_lshr_b32 s36, s20, 1\ns_and_b32 s37, s20, 1")
    a(f"""
    v_and_b32 v1, 31, v0
    v_lshrrev_b32 v2, 5, v0
    v_bfe_u32 v3, v0, 1, 3
    v_xor_b32 v3, v3, v2
    v_lshlrev_b32 v3, 4, v3
    v_lshl_add_u32 v3, v1, 7, v3
    s_lshl_b32 s38, s36, 13
    v_add_u32 v{VXA}, s38, v3
    s_lshl_b32 s38, s37, 12
    s_add_u32 s38, s38, {LDS_W}
    v_add_u32 v{VWA}, s38, v3
    """)
    for i in range(1, 4): a(f"v_xor_b32 v{VXA+i}, {32*i}, v{VXA}\nv_xor_b32 v{VWA+i}, {32*i}, v{VWA}")
    for i in range(64): a(f"v_mov_b32 v{ACC+i}, 0")
    a(f"""
    s_lshl_b32 s38, s22, 1
    s_add_u32 s38, s38, s36           ; s0
    v_cvt_f32_u32 v4, v1
    v_mul_f32 v4, {fhex(1/2048)}, v4  ; t1/2048
    v_lshlrev_b32 v5, 8, v2
    v_add_u32 v5, s38, v5
    v_cvt_f32_u32 v5, v5              ; s0 + 256h
    v_mul_f32 v5, v5, v4
    v_cmp_eq_u32 vcc, 0, v1
    """)
    for q in range(4):
        for d in range(4):
            for e in range(2):
                i = 2 * d + e
                k = 32 * (q >> 1) + 64 * (16 * (q & 1) + 8 * (i >> 2) + (i & 3))
                a(f"v_fmamk_f32 v{48+e}, v4, {fhex(float(k))}, v5")
            a(f"""v_cos_f32 v50, v48
            v_cos_f32 v51, v49
            v_sin_f32 v52, v48
            v_sin_f32 v53, v49
            v_cvt_pk_bf16_f32 v{FF+q*4+d}, v50, v51
            v_mov_b32 v54, {'0x3f803f80' if q < 2 else '0xbf80bf80'}
            v_cvt_pk_bf16_f32 v55, v52, v53
            v_cndmask_b32 v{FF+16+q*4+d}, v55, v54, vcc""")
    a(f"s_mov_b32 s56, 0\ns_mov_b32 s57, 0\ns_setprio {cfg.get('pm', 0)}")
    stamp(a, cfg, 0)
    def rd(st):
        s_ = st % 4
        a.lds(f"ds_read_b128 {v(XF+(st&1)*8,4)}, v{VXA+s_}", ("x", s_, 0))
        a.lds(f"ds_read_b128 {v(WF+(st&1)*8,4)}, v{VWA+s_}", ("w", s_, 0))
        a.lds(f"ds_read_b128 {v(WF+(st&1)*8+4,4)}, v{VWA+s_} offset:8192", ("w", s_, 1))
        a.lds(f"ds_read_b128 {v(XF+(st&1)*8+4,4)}, v{VXA+s_} offset:4096", ("x", s_, 1))
    a("s_barrier")
    stamp(a, cfg, 1)
    rd(0)
    entry_q = list(a.lds_q)
    a(".p2align 3\nK1_DLOOP:")
    for st in range(4):
        for n, (rt, cs) in enumerate([(0, 0), (0, 1), (1, 0), (1, 1)]):
            a.wait_lds([("x", st, rt), ("w", st, cs)])
            c = ACC + (rt * 2 + cs) * 16
            if not cfg.get('nomfma'): a(f"v_mfma_f32_32x32x16_bf16 {v(c,16)}, {v(XF+(st&1)*8+rt*4,4)}, {v(WF+(st&1)*8+cs*4,4)}, {v(c,16)}")
            if n == 0 and st < 3:
                rd(st + 1)
                if st == 2:
                    a("s_add_u32 s57, s57, 1\ns_cmp_eq_u32 s57, 3\ns_cselect_b32 s58, -2, 1\ns_cselect_b32 s57, 0, s57\ns_lshl_b32 s58, s58, 14")
                    for i in range(4): a(f"v_add_u32 v{VXA+i}, s58, v{VXA+i}\nv_add_u32 v{VWA+i}, s58, v{VWA+i}")
            if n == 0 and st == 3:
                a.wait_lds_all(); a("s_barrier"); rd(4)
    assert a.lds_q == entry_q
    a("s_add_u32 s56, s56, 1\ns_cmp_lt_u32 s56, 8\ns_cbranch_scc1 K1_DLOOP")
    a.lds_q = []
    stamp(a, cfg, 2)
    NM, RR, CSV = 16, 48, 6
    a(f"""
    s_setprio 0
    s_waitcnt lgkmcnt(0)
    s_lshl_b32 s39, s36, 8
    s_add_u32 s39, s39, {LDS_AUX}
    v_lshlrev_b32 v3, 4, v2
    v_add_u32 v3, s39, v3
    s_lshl_b32 s39, s37, 7
    s_add_u32 s39, s39, {LDS_AUX + 1024}
    v_lshlrev_b32 v4, 2, v1
    v_add_u32 v4, s39, v4
    ds_read_b32 v6, v4
    ds_read_b32 v7, v4 offset:256
    """)
    for rt in range(2):
        for Q in range(4): a(f"ds_read_b128 {v(16+Q*4,4)}, v3 offset:{rt*128 + Q*32}")
        for Q in range(4): a(f"ds_read_b128 {v(32+Q*4,4)}, v3 offset:{512 + rt*128 + Q*32}")
        a("s_waitcnt lgkmcnt(0)")
        for cs in range(2):
            c = ACC + (rt * 2 + cs) * 16
            sel = "op_sel_hi:[1,0,1]" if cs == 0 else "op_sel:[0,1,0] op_sel_hi:[1,1,1]"
            for p in range(8): a(f"v_pk_fma_f32 {v(c+2*p,2)}, {v(16+2*p,2)}, v[6:7], {v(c+2*p,2)} {sel}")
            for p in range(8): a(f"v_pk_mul_f32 {v(c+2*p,2)}, {v(c+2*p,2)}, {v(32+2*p,2)}")
            for p in range(8): a(f"v_cvt_pk_bf16_f32 v{BF + cs*16 + rt*8 + p}, v{c+2*p}, v{c+2*p+1}")
    a("s_nop 1")
    for q in range(4):
        for CN in range(2):
            for ab in range(2):
                c = OUT + (CN * 2 + ab) * 16
                a(f"v_mfma_f32_32x32x16_bf16 {v(c,16)}, {v(FF+CN*16+q*4,4)}, {v(BF+ab*16+q*4,4)}, {'0' if q == 0 else v(c,16)}")
    P, R, T, Q = OUT, OUT + 16, OUT + 32, OUT + 48
    a(f"""
    s_add_u32 s32, s16, {Z_OFF}
    s_addc_u32 s33, s17, 0
    s_mov_b32 s34, {Z_BYTES}
    s_mov_b32 s35, 0x00020000
    s_lshl_b32 s39, s23, 6
    s_lshl_b32 s40, s37, 5
    s_add_u32 s39, s39, s40
    v_add_u32 v8, s39, v1             ; e
    v_sub_u32 v9, 512, v8
    v_and_b32 v9, 511, v9             ; col2
    v_cmp_eq_u32 vcc, 0, v8
    v_mov_b32 v10, 256
    v_mov_b32 v11, -1
    v_cndmask_b32 v8, v8, v10, vcc    ; col1
    v_cndmask_b32 v11, v11, 0, vcc    ; mask for out2
    v_lshlrev_b32 v10, 13, v2
    v_lshl_add_u32 v12, v8, 2, v10    ; Z1 offset
    v_lshl_add_u32 v13, v9, 2, v10    ; Z2 offset
    v_lshlrev_b32 v8, 2, v8
    v_lshlrev_b32 v9, 2, v9
    v_cvt_f32_u32 v10, v2             ; h as float
    s_mul_i32 s38, s38, {33*2048}
    s_add_u32 s39, s38, {32*2048}
    s_nop 3
    v_cvt_pk_bf16_f32 v14, v{T}, v{Q}
    v_cvt_pk_bf16_f32 v15, v{T}, -v{Q}
    v_mul_f32 v{T}, v{T}, v10
    v_mul_f32 v{Q}, v{Q}, v10
    v_and_b32 v15, v15, v11
    s_mov_b32 exec_hi, 0
    buffer_store_dword v14, v8, s[32:35], s39 offen
    buffer_store_dword v15, v9, s[32:35], s39 offen
    s_mov_b64 exec, -1
    """.replace("v_cndmask_b32 v11, v11, 0, vcc", "v_cndmask_b32_e64 v11, v11, 0, vcc"))
    for p in range(8):
        r0 = 2 * p
        a(f"""v_pk_add_f32 v[16:17], {v(P+r0,2)}, {v(Q+r0,2)}
        v_pk_add_f32 v[18:19], {v(R+r0,2)}, {v(T+r0,2)} neg_lo:[0,1] neg_hi:[0,1]
        v_pk_add_f32 v[20:21], {v(P+r0,2)}, {v(Q+r0,2)} neg_lo:[0,1] neg_hi:[0,1]
        v_pk_add_f32 v[22:23], {v(R+r0,2)}, {v(T+r0,2)} neg_lo:[1,1] neg_hi:[1,1]""")
        o = 24 + (p & 3) * 4
        a(f"""v_cvt_pk_bf16_f32 v{o}, v16, v18
        v_cvt_pk_bf16_f32 v{o+1}, v17, v19
        v_cvt_pk_bf16_f32 v{o+2}, v20, v22
        v_cvt_pk_bf16_f32 v{o+3}, v21, v23
        s_add_u32 s39, s38, {(8*(r0>>2) + (r0&3))*2048}
        v_and_b32 v{o+2}, v{o+2}, v11
        v_and_b32 v{o+3}, v{o+3}, v11
        buffer_store_dword v{o}, v12, s[32:35], s39 offen
        buffer_store_dword v{o+1}, v12, s[32:35], s39 offen offset:2048
        buffer_store_dword v{o+2}, v13, s[32:35], s39 offen
        buffer_store_dword v{o+3}, v13, s[32:35], s39 offen offset:2048""")
    stamp(a, cfg, 3); stamp(a, cfg, 4)
    if cfg.get("prof"): a("s_waitcnt vmcnt(0)")
    stamp(a, cfg, 5)
    prof_flush(a, cfg, 6, cfg.get("prof_base", 0x1000000))
    a("s_endpgm")

def gen_k1(cfg):
    a = Asm()
    entry(a, cfg)
    loader(a, cfg)
    a("K1_MMA:\ns_waitcnt lgkmcnt(0)\ns_cmp_eq_u32 s21, 0\ns_cbranch_scc0 K1_MMA_DFT")
    mma_ffn(a, cfg)
    a("K1_MMA_DFT:")
    mma_dft(a, cfg)
    a("K1_END:\ns_endpgm")
    return kernel("k1_kernel", a.text(), 256)
```

```python
from dsl import *
from k1 import H_BYTES, Z_OFF, Z_BYTES, OOB, stamp, prof_flush, dbg_flush
import math
NS = 22
K2_RING = 12
K2_RED = 4 * K2_RING * 2048
K2_LDS = K2_RED + 12 * 4096

def gen_k2(cfg):
    shape = cfg["shape"]
    PD = cfg.get("k2_pd", 10)
    HR = PD + 1
    assert HR * 8 <= 96 and PD + 1 <= K2_RING
    a = Asm()
    ACC, Y, HF, AF, ZF, GF, XR = 192, 176, 64, 48, 16, 32, 160
    VH, VWD, VTR = 4, 6, 8
    a(f"""
    s_cmp_ge_u32 s2, 256
    s_cbranch_scc1 K2_END
    s_load_dwordx2 s[4:5], s[0:1], 0
    s_load_dwordx4 s[8:11], s[0:1], 64
    s_load_dwordx2 s[16:17], s[0:1], 88
    v_lshrrev_b32 v1, 6, v0
    v_and_b32 v0, 63, v0
    s_and_b32 s3, s2, 7
    v_readfirstlane_b32 s20, v1
    s_lshr_b32 s6, s2, 3
    s_lshl_b32 s21, s3, 2
    s_lshr_b32 s7, s6, 3
    s_add_u32 s21, s21, s7            ; g
    s_and_b32 s22, s6, 7              ; cg
    s_mul_i32 s36, s21, {2*88064}
    v_lshlrev_b32 v1, 4, v0
    v_add_u32 v{VH}, s36, v1
    v_add_u32 v{VH+1}, 88064, v{VH}
    v_lshrrev_b32 v2, 3, v0           ; k'
    v_and_b32 v3, 7, v0
    v_bfe_u32 v7, v0, 4, 1            ; (k'>>1)&1
    v_lshlrev_b32 v7, 2, v7
    v_xor_b32 v3, v3, v7
    v_lshlrev_b32 v3, 4, v3
    v_lshl_add_u32 v3, v2, 10, v3
    s_lshl_b32 s36, s22, 7
    v_add_u32 v{VWD}, s36, v3
    s_mul_i32 s37, s20, {NS*1024}
    s_mul_i32 s38, s20, {NS*16384}
    s_mul_i32 s39, s20, {K2_RING*2048}
    s_cmp_eq_u32 s20, 3
    s_cselect_b32 s43, {OOB}, 0
    s_waitcnt lgkmcnt(0)
    s_mov_b32 s24, s16
    s_mov_b32 s25, s17
    s_mov_b32 s26, {H_BYTES}
    s_mov_b32 s27, 0x00020000
    s_mov_b32 s28, s8
    s_mov_b32 s29, s9
    s_mov_b32 s30, 1409024
    s_mov_b32 s31, 0x00020000
    """)
    stamp(a, cfg, 0)
    def issue(st):
        slot = st % K2_RING
        h = HF + (st % HR) * 8
        a(f"s_add_u32 m0, s39, {slot*2048}")
        if st >= 20: a(f"s_add_u32 s44, s37, s43")
        so = "s44" if st >= 20 else "s37"
        a.vm(f"buffer_load_dwordx4 {v(h,4)}, v{VH}, s[24:27], {so} offen", ("h", st))
        a.vm(f"buffer_load_dwordx4 v{VWD}, s[28:31], s38 offen lds", ("w", st))
        a(f"s_add_u32 m0, s39, {slot*2048 + 1024}\ns_add_u32 s38, s38, 8192")
        a.vm(f"buffer_load_dwordx4 {v(h+4,4)}, v{VH+1}, s[24:27], {so} offen", ("h", st))
        a.vm(f"buffer_load_dwordx4 v{VWD}, s[28:31], s38 offen lds", ("w", st))
        a("s_add_u32 s38, s38, 8192\ns_add_u32 s37, s37, 1024")
    for st in range(PD): issue(st)
    a(f"""
    s_and_b32 s45, s20, 1             ; ct
    s_lshr_b32 s46, s20, 1            ; rt
    v_and_b32 v1, 31, v0
    v_lshrrev_b32 v2, 5, v0           ; h
    s_lshl_b32 s47, s22, 6
    s_lshl_b32 s48, s45, 5
    s_add_u32 s47, s47, s48
    s_cmp_lg_u32 s21, 0
    s_cselect_b32 s49, s46, 0         ; mirror
    s_sub_u32 s50, s46, s49           ; delta
    s_sub_u32 s51, 32, s21
    s_cmp_eq_u32 s46, 0
    s_cselect_b32 s51, s21, s51       ; tz
    v_add_u32 v3, s47, v1             ; c
    v_sub_u32 v7, 512, v3
    v_and_b32 v7, 511, v7
    v_sub_u32 v10, 31, v1
    s_cmp_eq_u32 s49, 1
    s_cselect_b64 vcc, -1, 0
    v_cndmask_b32 v3, v3, v7, vcc
    v_cndmask_b32 v10, v1, v10, vcc   ; t2 eff
    v_mul_u32_u24 v7, {4*33*2048}, v2
    v_lshl_add_u32 v3, v3, 2, v7
    s_lshl_b32 s51, s51, 11
    s_add_u32 s32, s16, {Z_OFF}
    s_addc_u32 s33, s17, 0
    s_mov_b32 s34, {Z_BYTES}
    s_mov_b32 s35, 0x00020000
    """)
    for q in range(4):
        for d in range(4):
            a(f"s_add_u32 s52, s51, {(8*q + d)*33*2048}")
            if not cfg.get("k2_noz"): a.vm(f"buffer_load_dword v{ZF+q*4+d}, v3, s[32:35], s52 offen", "z")
    a(f"""
    s_mov_b32 s52, s4
    s_mov_b32 s53, s5
    s_mov_b32 s54, 2097152
    s_mov_b32 s55, 0x00020000
    s_lshl_b32 s48, s46, 5
    s_add_u32 s48, s48, s21           ; residue
    s_lshl_b32 s48, s48, 10
    s_lshl_b32 s47, s47, 1
    s_add_u32 s48, s48, s47
    v_lshlrev_b32 v11, 16, v1
    v_lshl_add_u32 v11, v2, 4, v11
    v_add_u32 v11, s48, v11
    """)
    a.vm(f"buffer_load_dwordx4 {v(XR,4)}, v11, s[52:55], 0 offen", "x")
    a.vm(f"buffer_load_dwordx4 {v(XR+4,4)}, v11, s[52:55], 0 offen offset:32", "x")
    a(f"""
    v_lshlrev_b32 v10, 1, v10
    v_add_u32 v10, s50, v10
    v_cvt_f32_u32 v10, v10
    v_mul_f32 v10, {fhex(1/64)}, v10
    v_cvt_f32_u32 v12, v2
    v_mul_f32 v12, 4.0, v12
    v_mul_f32 v12, v12, v10
    """)
    for q in range(4):
        for d in range(4):
            a(f"""v_fmamk_f32 v13, v10, {fhex(float(8*q+d))}, v12
            v_cos_f32 v14, v13
            v_sin_f32 v15, v13
            s_nop 0
            v_cvt_pk_bf16_f32 v{GF+q*4+d}, v14, v15""")
    a(f"""
    v_bfe_u32 v12, v0, 2, 2           ; r
    v_lshl_add_u32 v13, v2, {2 if shape == 32 else 3}, v12
    v_lshlrev_b32 v13, 7, v13
    v_lshrrev_b32 v12, 1, v12
    v_lshl_add_u32 v13, v12, 6, v13
    v_bfe_u32 v12, v0, 4, 1
    v_lshl_add_u32 v13, v12, 5, v13
    v_and_b32 v12, 3, v0
    v_lshl_add_u32 v13, v12, 3, v13
    v_add_u32 v{VTR}, s39, v13
    v_xor_b32 v{VTR+1}, 64, v{VTR}
    """)
    qoff = 1024 if shape == 32 else 512
    def trread(st):
        slot = st % K2_RING
        for ct in range(2):
            for q in range(2):
                a.lds(f"ds_read_b64_tr_b16 {v(AF+(st&1)*8+ct*4+q*2,2)}, v{VTR+ct} offset:{slot*2048 + q*qoff}", ("a", st, ct))
    stamp(a, cfg, 1)
    a.wait_vm([("w", 0)])
    trread(0)
    for st in range(NS):
        if st + 1 < NS:
            a.wait_vm([("w", st + 1), ("h", st)])
            trread(st + 1)
        else:
            a.wait_vm([("h", st)])
        h = HF + (st % HR) * 8
        for ct in range(2):
            a.wait_lds([("a", st, ct)])
            for rt in range(2):
                c = ACC + (rt * 2 + ct) * 16
                if not cfg.get("k2_nomfma") or st == 0: a(f"v_mfma_f32_32x32x16_bf16 {v(c,16)}, {v(AF+(st&1)*8+ct*4,4)}, {v(h+rt*4,4)}, {'0' if st == 0 else v(c,16)}")
        if st + PD < NS: issue(st + PD)
        if st == 12:
            a.wait_vm(["z", "x"])
            for q in range(4):
                a(f"v_mfma_f32_32x32x16_bf16 {v(Y,16)}, {v(ZF+q*4,4)}, {v(GF+q*4,4)}, {'0' if q == 0 else v(Y,16)}")
    stamp(a, cfg, 2)
    a(f"""
    v_lshlrev_b32 v12, 4, v0
    v_add_u32 v12, {K2_RED}, v12
    v_permlane32_swap_b32 v{XR}, v{XR+2}
    v_permlane32_swap_b32 v{XR+1}, v{XR+3}
    v_permlane32_swap_b32 v{XR+4}, v{XR+6}
    v_permlane32_swap_b32 v{XR+5}, v{XR+7}
    s_nop 7
    """)
    for w in range(4):
        a(f"s_cmp_eq_u32 s20, {w}\ns_cbranch_scc0 K2_W{w}")
        for o in range(4):
            if o == w: continue
            k = (w - o - 1) % 4
            for q in range(4): a(f"ds_write_b128 v12, {v(ACC+o*16+q*4,4)} offset:{(o*3+k)*4096 + q*1024}")
        if w != 0:
            for i in range(0, 16, 2): a(f"v_pk_mov_b32 {v(ACC+i,2)}, {v(ACC+w*16+i,2)}, {v(ACC+w*16+i,2)} op_sel:[0,1]" if False else f"v_mov_b32 v{64+i}, v{ACC+w*16+i}\nv_mov_b32 v{64+i+1}, v{ACC+w*16+i+1}")
        else:
            for i in range(16): a(f"v_mov_b32 v{64+i}, v{ACC+i}")
        a(f"K2_W{w}:")
    a(f"""
    s_mul_i32 s48, s20, {3*4096}
    v_add_u32 v12, s48, v12
    s_mov_b32 s52, s10
    s_mov_b32 s53, s11
    s_mov_b32 s48, 0xffff0000
    s_waitcnt lgkmcnt(0)
    s_barrier
    """)
    for k in range(3):
        for q in range(4): a.lds(f"ds_read_b128 {v(80+k*16+q*4,4)}, v12 offset:{k*4096 + q*1024}", ("r", k))
    for Q in range(4):
        for e in range(2):
            src = XR + Q * 2 + e
            a(f"v_lshlrev_b32 v{128+Q*4+2*e}, 16, v{src}\nv_and_b32 v{128+Q*4+2*e+1}, s48, v{src}")
    for k in range(3):
        a.wait_lds([("r", k)])
        for i in range(0, 16, 2): a(f"v_pk_add_f32 {v(64+i,2)}, {v(64+i,2)}, {v(80+k*16+i,2)}")
    stamp(a, cfg, 3)
    for i in range(16): a(f"v_mul_f32 v{80+i}, {fhex(-math.log2(math.e))}, v{64+i}")
    for i in range(16): a(f"v_exp_f32 v{80+i}, v{80+i}")
    for i in range(0, 16, 2): a(f"v_pk_mul_f32 {v(64+i,2)}, {v(64+i,2)}, {v(Y+i,2)}")
    for i in range(16): a(f"v_add_f32 v{80+i}, 1.0, v{80+i}")
    for i in range(16): a(f"v_rcp_f32 v{80+i}, v{80+i}")
    a("s_nop 0")
    for i in range(0, 16, 2): a(f"v_pk_fma_f32 {v(64+i,2)}, {v(64+i,2)}, {v(80+i,2)}, {v(128+i,2)}")
    for i in range(8): a(f"v_cvt_pk_bf16_f32 v{96+i}, v{64+2*i}, v{64+2*i+1}")
    a("""s_nop 1
    v_permlane32_swap_b32 v96, v98
    v_permlane32_swap_b32 v97, v99
    v_permlane32_swap_b32 v100, v102
    v_permlane32_swap_b32 v101, v103
    buffer_store_dwordx4 v[96:99], v11, s[52:55], 0 offen
    buffer_store_dwordx4 v[100:103], v11, s[52:55], 0 offen offset:32""")
    stamp(a, cfg, 4)
    if cfg.get("prof") or cfg.get("dbgp"): a("s_waitcnt vmcnt(0)")
    stamp(a, cfg, 5)
    dbg_flush(a, cfg, [(8, 0, 1), (9, 0, 0), (10, 1, 0), (11, 2, 0), (12, 5, 0)], 512)
    prof_flush(a, cfg, 6, cfg.get("prof_base2", 0x1100000))
    a("K2_END:\ns_endpgm")
    return kernel("k2_kernel", a.text(), 256)
```

```python
from dsl import *
import math
H_BYTES = 64 * 86 * 1024
Z_OFF = 0x600000
Z_BYTES = 32 * 33 * 2048
OOB = 0x7F000000
LDS_X = 0
LDS_W = 49152
LDS_AUX = 147456
LDS_CS = LDS_AUX + 2048
K1_LDS = LDS_AUX + 4096
GC = -2.0 * math.sqrt(2.0 / math.pi) * math.log2(math.e)

sWAVE, sTYPE, sR, sC = 20, 21, 22, 23
SRD_X, SRD_W, SRD_O = 24, 28, 32

def stamp(a, cfg, idx):
    if cfg.get("prof") or cfg.get("dbgp"):
        a(f"s_memrealtime s[40:41]\ns_waitcnt lgkmcnt(0)\ns_mov_b32 s{60+idx}, s40")

def acc_stamp(a, cfg, idx):
    if cfg.get("prof2"):
        a(f"s_memtime s[40:41]\ns_waitcnt lgkmcnt(0)\ns_sub_u32 s41, s40, s78\ns_mov_b32 s78, s40\ns_add_u32 s{66+idx}, s{66+idx}, s41")

def dbg_flush(a, cfg, items, back):
    if not cfg.get("dbgp") or back == 0: return
    a("s_or_b32 s42, s2, s20\ns_cmp_eq_u32 s42, 0\ns_cbranch_scc0 K2_END")
    a(f"s_load_dwordx2 s[48:49], s[0:1], 80\ns_waitcnt lgkmcnt(0)\ns_mov_b32 s50, 256\ns_mov_b32 s51, 0x00020000")
    a("s_mov_b32 s44, s16\ns_mov_b32 s45, s17\ns_mov_b32 s46, 0x10000000\ns_mov_b32 s47, 0x00020000")
    a("s_mov_b64 exec, 1\nv_mov_b32 v1, 0")
    n = 0
    for wg in (0, 77, 150):
        for idx in (9, 1, 2, 5):
            a(f"s_mov_b32 s42, {0x1000000 + wg*8*64 + idx*4}\nbuffer_load_dword v2, v1, s[44:47], s42 offen\ns_waitcnt vmcnt(0)\nbuffer_store_dword v2, v1, s[48:51], 0 offen offset:{4*n}")
            n += 1
    for idx in (0, 1, 2, 5):
        a(f"v_mov_b32 v2, s{60+idx}\nbuffer_store_dword v2, v1, s[48:51], 0 offen offset:{4*n}"); n += 1
    a("s_waitcnt vmcnt(0)")
    if cfg.get("spin"):
        a(f"s_mov_b32 s42, {0x1000000 + 9*4}\nbuffer_load_dword v2, v1, s[44:47], s42 offen\ns_waitcnt vmcnt(0)\nv_readfirstlane_b32 s42, v2\ns_nop 3\ns_add_u32 s42, s42, {cfg['spin']}")
        a("K2_SPIN:\ns_memrealtime s[40:41]\ns_waitcnt lgkmcnt(0)\ns_sub_u32 s41, s40, s42\ns_cmp_lt_i32 s41, 0\ns_cbranch_scc1 K2_SPIN")

def prof_flush(a, cfg, n, base):
    if cfg.get("prof2"): n = 12
    if cfg.get("dbgp"): n = 10
    if not cfg.get("prof"): return
    a(f"s_lshl_b32 s42, s2, 3\ns_add_u32 s42, s42, s{sWAVE}\ns_lshl_b32 s42, s42, 6\ns_add_u32 s42, s42, {base}")
    a("s_mov_b32 s44, s16\ns_mov_b32 s45, s17\ns_mov_b32 s46, 0x10000000\ns_mov_b32 s47, 0x00020000")
    a("s_mov_b64 exec, 1\nv_mov_b32 v1, 0")
    for i in range(n):
        a(f"v_mov_b32 v2, s{60+i}\nbuffer_store_dword v2, v1, s[44:47], s42 offen offset:{4*i}")
    a("s_waitcnt vmcnt(0)\ns_mov_b64 exec, -1")

def entry(a, cfg):
    if cfg.get("early"): a("s_memrealtime s[80:81]")
    a("""
    s_cmp_ge_u32 s2, 256
    s_cbranch_scc1 K1_END
    s_load_dwordx2 s[4:5], s[0:1], 0
    s_load_dwordx4 s[8:11], s[0:1], 24
    s_load_dwordx4 s[12:15], s[0:1], 48
    s_load_dwordx2 s[16:17], s[0:1], 88
    s_load_dwordx2 s[18:19], s[0:1], 64
    v_lshrrev_b32 v1, 6, v0
    v_and_b32 v0, 63, v0
    s_and_b32 s3, s2, 7
    v_readfirstlane_b32 s20, v1
    s_lshr_b32 s6, s2, 3          ; loc
    s_lshr_b32 s7, s3, 1          ; a
    s_and_b32 s3, s3, 1           ; b
    s_lshl_b32 s36, s7, 2         ; 4a
    s_sub_u32 s37, 6, s3          ; nc
    s_lshl_b32 s38, s37, 2        ; nffn
    s_cmp_lt_u32 s6, s38
    s_cbranch_scc0 K1_ROLE2
    s_mul_i32 s39, s3, 9
    s_add_u32 s39, s39, 43
    s_mul_i32 s39, s39, s6
    s_lshr_b32 s39, s39, 8        ; q
    s_add_u32 s22, s36, s39       ; rho
    s_mul_i32 s39, s39, s37
    s_sub_u32 s23, s6, s39
    s_mul_i32 s39, s3, 6
    s_add_u32 s23, s23, s39       ; cg
    s_mov_b32 s21, 0
    s_branch K1_ROLED
K1_ROLE2:
    s_sub_u32 s6, s6, s38         ; l2
    s_cmp_lt_u32 s6, 8
    s_cbranch_scc0 K1_ROLE3
    s_and_b32 s39, s6, 3
    s_add_u32 s22, s36, s39       ; w
    s_lshr_b32 s39, s6, 2
    s_lshl_b32 s23, s3, 1
    s_add_u32 s23, s23, s39       ; eq
    s_mov_b32 s21, 1
    s_branch K1_ROLED
K1_ROLE3:
    s_sub_u32 s6, s6, 8
    s_cmp_ge_u32 s6, 3
    s_cbranch_scc1 K1_END
    s_mul_i32 s23, s7, 3
    s_add_u32 s23, s23, s6
    s_cmp_ge_u32 s23, 11
    s_cbranch_scc1 K1_END
    s_mov_b32 s22, 16
    s_mov_b32 s21, 0
K1_ROLED:
    """)
    stamp(a, cfg, 9)
    if cfg.get("early"): a("s_mov_b32 s69, s80")
    a("s_cmp_lt_u32 s20, 4\ns_cbranch_scc1 K1_MMA")

def x_voffsets(a, base):
    a(f"""
    v_lshrrev_b32 v2, 3, v0           ; l>>3
    v_lshrrev_b32 v3, 4, v0           ; l>>4
    v_and_b32 v4, 7, v0
    v_xor_b32 v4, v4, v3
    v_xor_b32 v5, 4, v4
    v_lshlrev_b32 v4, 4, v4
    v_lshlrev_b32 v5, 4, v5
    s_lshr_b32 s37, s36, 1
    s_and_b32 s38, s36, 1
    s_lshl_b32 s38, s38, 5
    s_add_u32 s37, s37, s38
    s_lshl_b32 s38, s22, 1
    s_add_u32 s37, s37, s38
    s_lshl_b32 s37, s37, 10
    v_lshlrev_b32 v6, 16, v2
    v_add_u32 v6, s37, v6
    v_add_u32 v{base}, v6, v4
    v_add_u32 v{base+1}, v6, v5
    v_add_u32 v{base+1}, 0x80000, v{base+1}
    v_add_u32 v{base+2}, 0x100000, v{base}
    v_add_u32 v{base+3}, 0x100000, v{base+1}
    s_cmp_lt_u32 s22, 16
    s_cbranch_scc1 K1_XOK
    v_lshlrev_b32 v6, 11, v2
    v_add_u32 v6, {2017*1024}, v6
    v_add_u32 v{base}, v6, v4
    v_add_u32 v{base+1}, v6, v5
    v_add_u32 v{base+1}, {16*1024}, v{base+1}
    v_mov_b32 v{base+2}, {OOB}
    v_mov_b32 v{base+3}, {OOB}
    s_cmp_eq_u32 s36, 0
    s_cbranch_scc1 K1_XOK
    v_mov_b32 v{base}, {OOB}
    v_mov_b32 v{base+1}, {OOB}
K1_XOK:
    """)

def loader(a, cfg):
    shape = cfg["shape"]
    VX, VW = 10, 14
    VA = 18
    a(f"s_sub_u32 s36, s20, 4\ns_setprio {cfg.get('pl', 0)}")
    x_voffsets(a, VX)
    a(f"""
    v_and_b32 v7, 31, v0
    v_lshrrev_b32 v8, 5, v0
    v_bfe_u32 v9, v0, 1, 3
    v_xor_b32 v8, v8, v9
    v_lshlrev_b32 v8, 4, v8
    v_lshl_add_u32 v8, v7, 7, v8
    s_lshl_b32 s37, s36, 12
    v_add_u32 v{VA}, s37, v8
    v_xor_b32 v{VA+1}, 32, v{VA}
    v_xor_b32 v{VA+2}, 64, v{VA}
    v_xor_b32 v{VA+3}, 96, v{VA}
    s_mov_b32 s48, 0xffff0000
    s_lshl_b32 s49, s36, 12
    s_cmp_eq_u32 s21, 0
    s_cbranch_scc0 K1_LD_DFT
    """)
    for typ in ("F", "D"):
        L = "K1_L" + typ
        if typ == "D": a.label("K1_LD_DFT")
        nW = 8 if typ == "F" else 4
        per = 4 + nW
        if typ == "F":
            a(f"""
            v_lshrrev_b32 v3, 4, v0
            v_bfe_u32 v4, v0, 1, 3
            v_lshlrev_b32 v5, 1, v3
            s_and_b32 s37, s36, 1             ; mat
            s_lshr_b32 s38, s36, 1
            v_xor_b32 v4, v4, v5
            v_xor_b32 v4, {'s37' if shape == 32 else 's38'}, v4
            v_lshlrev_b32 v4, 5, v4
            v_and_b32 v5, 1, v0
            v_lshl_add_u32 v4, v5, 4, v4
            v_mul_u32_u24 v3, 2752, v3
            s_lshl_b32 s39, s23, 8
            v_add3_u32 v{VW}, v3, v4, s39
            s_mul_i32 s50, s38, {2*11008}
            s_lshl_b32 s51, s37, 14
            s_lshl_b32 s39, s38, 11
            s_add_u32 s51, s51, s39
            s_add_u32 s51, s51, {LDS_W}
            s_cmp_eq_u32 s36, 3
            s_cselect_b32 s55, 0x00ffffff, -1
            s_mov_b32 s54, -1
            s_cmp_eq_u32 s37, 0
            s_waitcnt lgkmcnt(0)
            s_cselect_b32 s28, s12, s14
            s_cselect_b32 s29, s13, s15
            s_mov_b32 s30, 1409024
            """)
        else:
            a(f"""
            v_lshrrev_b32 v2, 3, v0
            v_lshrrev_b32 v3, 4, v0
            v_and_b32 v4, 7, v0
            v_xor_b32 v4, v4, v3
            v_lshlrev_b32 v4, 4, v4
            s_and_b32 s37, s36, 1
            s_lshl_b32 s37, s37, 5
            s_lshl_b32 s38, s23, 6
            s_add_u32 s37, s37, s38
            v_add_u32 v2, s37, v2
            v_lshl_add_u32 v{VW}, v2, 10, v4
            v_xor_b32 v5, 64, v{VW}
            v_add_u32 v{VW+1}, 0x2000, v5
            v_add_u32 v{VW+2}, 0x4000, v{VW}
            v_add_u32 v{VW+3}, 0x6000, v5
            s_cmp_lt_u32 s36, 2
            s_cselect_b32 s38, 0x40000, 0
            v_cmp_eq_u32 vcc, 0, v2
            v_mov_b32 v5, s38
            s_nop 0
            v_cndmask_b32 v5, 0, v5, vcc
            v_add_u32 v{VW}, v{VW}, v5
            s_lshl_b32 s51, s36, 12
            s_add_u32 s51, s51, {LDS_W}
            s_cmp_lt_u32 s36, 2
            s_waitcnt lgkmcnt(0)
            s_cselect_b32 s28, s8, s10
            s_cselect_b32 s29, s9, s11
            s_mov_b32 s30, 524288
            """)
        a(f"""
        s_mov_b32 s31, 0x00020000
        s_mov_b32 s24, s4
        s_mov_b32 s25, s5
        s_mov_b32 s26, 2097152
        s_mov_b32 s27, 0x00020000
        """)
        a(f's_mov_b32 s59, {OOB}')
        rot = cfg.get("rot", 0)
        if rot == 0: a("s_mov_b32 s53, 0")
        elif rot == 1: a("s_add_u32 s53, s22, s23\ns_and_b32 s53, s53, 7")
        elif rot == 2: a("s_lshr_b32 s53, s2, 3\ns_and_b32 s53, s53, 7")
        elif rot == 3: a("s_lshl_b32 s53, s22, 1\ns_add_u32 s53, s53, s23\ns_and_b32 s53, s53, 7")
        a("s_lshl_b32 s52, s53, 7")
        if typ == "F": a("s_mul_i32 s53, s53, 176128\ns_add_u32 s50, s50, s53")
        wstage = 32768 if typ == "F" else 16384
        def issue_list():
            if typ == "F": order = [("x", 0), ("w", 0), ("x", 1), ("w", 1), ("x", 2), ("w", 2), ("x", 3), ("w", 3)] + [("w", i) for i in range(4, 8)]
            else: order = [("x", 0), ("w", 0), ("x", 1), ("w", 1), ("x", 2), ("w", 2), ("x", 3), ("w", 3)]
            out = []
            for kind, i in order:
                g = ""
                if kind == "x":
                    g += f"s_add_u32 m0, s49, {i*1024}\n"
                    g += "s_mov_b64 exec, s[54:55]\n" if (i == 3 and typ == "F") else "s_nop 0\n"
                    g += f"buffer_load_dwordx4 v{VX+i}, s[24:27], s52 offen lds\n"
                    if i == 3 and typ == "F": g += "s_mov_b64 exec, -1\n"
                elif typ == "F":
                    kq = 4 * (i >> 1) + (i & 1)
                    g += f"s_add_u32 m0, s51, {kq*1024}\ns_add_u32 s53, s50, {kq*11008}\nbuffer_load_dwordx4 v{VW}, s[28:31], s53 offen lds\n"
                else:
                    g += f"s_add_u32 m0, s51, {i*1024}\ns_nop 0\nbuffer_load_dwordx4 v{VW+i}, s[28:31], s52 offen lds\n"
                if cfg.get('nox') and kind == 'x': g = g.replace('s52 offen', 's59 offen')
                if cfg.get('now') and kind == 'w': g = g.replace('s53 offen', 's59 offen').replace('s52 offen', 's59 offen')
                out.append(g)
            return out
        def rotate():
            a("s_add_u32 s52, s52, 128\ns_and_b32 s52, s52, 1023")
            if typ == "F": a(f"s_cselect_b32 s53, 0, {8*176128}\ns_add_u32 s50, s50, 176128\ns_sub_u32 s50, s50, s53")
            a(f"s_add_u32 s49, s49, 16384\ns_add_u32 s51, s51, {wstage}")
            a(f"s_cmp_ge_u32 s49, 49152\ns_cselect_b32 s53, 49152, 0\ns_sub_u32 s49, s49, s53")
            a(f"s_cmp_ge_u32 s51, {LDS_W + 3*wstage}\ns_cselect_b32 s53, {3*wstage}, 0\ns_sub_u32 s51, s51, s53")
        def issue():
            for g in issue_list(): a(g)
            rotate()
        stamp(a, cfg, 0)
        a(f"s_mov_b32 s56, 0\n{L}_PRO:")
        issue()
        a(f"s_add_u32 s56, s56, 1\ns_cmp_lt_u32 s56, 2\ns_cbranch_scc1 {L}_PRO")
        if typ == "F":
            a(f"""
            s_cmp_eq_u32 s36, 3
            s_cbranch_scc0 {L}_NOONES
            v_lshrrev_b32 v2, 3, v0
            v_and_b32 v3, 7, v0
            v_lshlrev_b32 v2, 14, v2
            v_lshl_add_u32 v2, v3, 4, v2
            v_mov_b32 v4, 0x3f803f80
            v_mov_b32 v5, v4
            v_mov_b32 v6, v4
            v_mov_b32 v7, v4
            s_mov_b64 exec, 0xffffff
            ds_write_b128 v2, v[4:7] offset:{127*128}
            s_mov_b64 exec, -1
{L}_NOONES:
            """)
        a("v_mov_b32 v24, 0\nv_mov_b32 v25, 0\nv_mov_b32 v26, 0\nv_mov_b32 v27, 0\nv_mov_b32 v28, 0\nv_mov_b32 v29, 0")
        a(f"s_mov_b32 s56, 0\ns_mov_b32 s57, 0\ns_waitcnt vmcnt({per}) lgkmcnt(0)")
        stamp(a, cfg, 1)
        if cfg.get("prof2"):
            for i in range(6): a(f"s_mov_b32 s{66+i}, 0")
            acc_stamp(a, cfg, 5)
        a(f"{L}_LOOP:")
        acc_stamp(a, cfg, 0)
        a("s_barrier")
        acc_stamp(a, cfg, 1)
        for i in range(4): a(f"v_add_u32 v{32+i}, s57, v{VA+i}")
        for i in range(4): a(f"ds_read_b128 {v(40+4*i,4)}, v{32+i}")
        if typ == "D":
            for i in range(4): a(f"ds_read_b128 {v(56+4*i,4)}, v{32+i} offset:{LDS_W}")
        def stat_ops():
            ops = []
            for i in range(16):
                d = 40 + i
                ops += [f"v_and_b32 v30, s48, v{d}", f"v_lshlrev_b32 v31, 16, v{d}", "v_add_f32 v24, v24, v30", "v_add_f32 v25, v25, v31", "v_fmac_f32 v26, v30, v30", "v_fmac_f32 v27, v31, v31"]
            if typ == "D":
                for i in range(16):
                    d = 56 + i
                    ops += [f"v_and_b32 v30, s48, v{d}", f"v_lshlrev_b32 v31, 16, v{d}", "v_add_f32 v28, v28, v30", "v_add_f32 v29, v29, v31"]
            return ops
        ops = stat_ops(); gl = issue_list()
        if cfg.get('nostats'): ops = ops[:12]
        a(f"s_cmp_lt_u32 s56, 6\ns_cbranch_scc0 {L}_NOISS")
        a(gl[0]); a(gl[1])
        a("s_waitcnt lgkmcnt(0)")
        rest = gl[2:]; step = len(ops) // (len(rest) + 1)
        k = 0
        for n, g in enumerate(rest):
            for o in ops[k:k + step]: a(o)
            k += step
            a(g)
        for o in ops[k:]: a(o)
        rotate()
        a(f"s_branch {L}_JOIN\n{L}_NOISS:\ns_waitcnt lgkmcnt(0)")
        for o in ops: a(o)
        a(f"{L}_JOIN:")
        acc_stamp(a, cfg, 3)
        a(f"""
        s_add_u32 s57, s57, 16384
        s_cmp_ge_u32 s57, 49152
        s_cselect_b32 s57, 0, s57
        s_add_u32 s56, s56, 1
        s_cmp_lt_u32 s56, 7
        s_cbranch_scc0 {L}_LAST
        s_waitcnt vmcnt({per})
        s_branch {L}_LOOP
{L}_LAST:
        s_waitcnt vmcnt(0)
        s_cmp_eq_u32 s56, 7
        s_cbranch_scc1 {L}_LOOP
        """)
        a(f"""
        v_add_f32 v24, v24, v25
        v_add_f32 v26, v26, v27
        v_add_f32 v28, v28, v29
        v_mov_b32 v25, v24
        v_mov_b32 v27, v26
        v_mov_b32 v29, v28
        s_nop 1
        v_permlane32_swap_b32 v24, v25
        v_permlane32_swap_b32 v26, v27
        v_permlane32_swap_b32 v28, v29
        s_nop 1
        v_add_f32 v24, v24, v25
        v_add_f32 v26, v26, v27
        v_add_f32 v28, v28, v29
        v_mul_f32 v24, {fhex(1/512)}, v24          ; mean
        v_mul_f32 v26, {fhex(1/512)}, v26
        v_fma_f32 v26, -v24, v24, v26              ; var
        v_max_f32 v26, 0, v26
        v_cvt_pk_bf16_f32 v30, v24, v26
        v_lshlrev_b32 v24, 16, v30                 ; bf16(mean)
        v_and_b32 v26, s48, v30                    ; bf16(var)
        v_add_f32 v26, {fhex(1e-5)}, v26
        v_cvt_pk_bf16_f32 v26, v26, v26
        v_and_b32 v26, s48, v26
        v_sqrt_f32 v26, v26
        s_nop 0
        v_cvt_pk_bf16_f32 v26, v26, v26
        v_and_b32 v26, s48, v26                    ; sd
        v_rcp_f32 v27, v26                         ; r
        v_and_b32 v7, 31, v0
        s_lshl_b32 s37, s36, 5
        v_add_u32 v7, s37, v7                      ; row
        """)
        if typ == "F":
            a(f"""
            v_sub_f32 v32, 0, v24
            v_mul_f32 v33, {fhex(GC)}, v27
            v_mul_f32 v34, v27, v27
            v_mul_f32 v34, {fhex(0.044715)}, v34
            v_mul_f32 v34, v34, v33
            v_mul_f32 v35, v26, v26
            v_lshlrev_b32 v7, 4, v7
            ds_write_b128 v7, v[32:35] offset:{LDS_AUX & 0xffff}
            """.replace(f"offset:{LDS_AUX & 0xffff}", "offset:0").replace("v_lshlrev_b32 v7, 4, v7", f"v_lshlrev_b32 v7, 4, v7\nv_add_u32 v7, {LDS_AUX}, v7"))
        else:
            a(f"""
            v_sub_f32 v32, 0, v24
            v_lshlrev_b32 v7, 2, v7
            v_add_u32 v7, {LDS_AUX}, v7
            ds_write_b32 v7, v32
            ds_write_b32 v7, v27 offset:512
            ds_write_b32 v7, v28 offset:1024
            """)
        a("s_waitcnt lgkmcnt(0)\ns_barrier")
        stamp(a, cfg, 2)
        prof_flush(a, cfg, 3, cfg.get("prof_base", 0x1000000))
        a("s_endpgm")

def mma_ffn(a, cfg):
    shape = cfg["shape"]
    ACC = 128
    VXA, VWA = 8, 12
    XF, WF = 16, 48
    a("s_lshr_b32 s36, s20, 1\ns_and_b32 s37, s20, 1")
    if shape == 32:
        a(f"""
        v_and_b32 v1, 31, v0
        v_lshrrev_b32 v2, 5, v0
        v_bfe_u32 v3, v0, 1, 3
        v_xor_b32 v3, v3, v2
        v_lshlrev_b32 v3, 4, v3
        v_lshl_add_u32 v3, v1, 7, v3
        s_lshl_b32 s38, s36, 13
        v_add_u32 v{VXA}, s38, v3
        v_xor_b32 v{VXA+1}, 32, v{VXA}
        v_xor_b32 v{VXA+2}, 64, v{VXA}
        v_xor_b32 v{VXA+3}, 96, v{VXA}
        v_bfe_u32 v3, v0, 2, 2            ; r
        v_bfe_u32 v4, v0, 4, 1            ; mat
        v_lshl_add_u32 v5, v2, 3, v3      ; 8h + r
        v_lshlrev_b32 v5, 8, v5
        v_lshl_add_u32 v5, v4, 14, v5
        v_lshl_or_b32 v3, v3, 1, v4       ; g = r<<1 | mat
        """)
        nxa = 4
    else:
        a(f"""
        v_and_b32 v1, 15, v0
        v_lshrrev_b32 v2, 4, v0           ; g
        v_bfe_u32 v3, v0, 1, 3
        v_xor_b32 v3, v3, v2
        v_lshlrev_b32 v3, 4, v3
        v_lshl_add_u32 v3, v1, 7, v3
        s_lshl_b32 s38, s36, 13
        v_add_u32 v{VXA}, s38, v3
        v_xor_b32 v{VXA+1}, 64, v{VXA}
        v_bfe_u32 v3, v0, 2, 2            ; r
        v_and_b32 v4, 1, v2
        v_lshl_add_u32 v5, v2, 3, v3      ; 8g + r
        v_lshlrev_b32 v5, 8, v5
        v_lshl_or_b32 v3, v3, 1, v4       ; (r<<1) | (g&1)
        """)
        nxa = 2
    a(f"""
    s_lshl_b32 s38, s37, 2
    v_xor_b32 v3, s38, v3             ; u ^ g for j = 0
    v_lshl_add_u32 v5, v3, 5, v5
    v_and_b32 v4, 3, v0
    v_lshl_add_u32 v5, v4, 3, v5
    v_add_u32 v{VWA}, {LDS_W}, v5
    v_xor_b32 v{VWA+1}, 32, v{VWA}
    v_xor_b32 v{VWA+2}, 64, v{VWA}
    v_xor_b32 v{VWA+3}, 96, v{VWA}
    """)
    for i in range(128): a(f"v_mov_b32 v{ACC+i}, 0")
    a(f"s_mov_b32 s56, 0\ns_mov_b32 s57, 0\ns_setprio {cfg.get('pm', 0)}")
    stamp(a, cfg, 0)
    if shape == 32:
        nstep, nA, nB = 4, 4, 2
        def xread(st, t, set_): return f"ds_read_b128 {v(XF + set_*8 + t*4, 4)}, v{VXA+st} offset:{t*4096}"
        def wread(st, p, q): return f"ds_read_b64_tr_b16 {v(WF + (p%4)*4 + q*2, 2)}, v{VWA+p} offset:{st*4096 + q*1024}"
        def mfma(st, p, t):
            c = ACC + (p * 2 + t) * 16
            return f"v_mfma_f32_32x32x16_bf16 {v(c,16)}, {v(WF+(p%4)*4,4)}, {v(XF+(st&1)*8+t*4,4)}, {v(c,16)}"
    else:
        nstep, nA, nB = 2, 8, 4
        def xread(st, t, set_): return f"ds_read_b128 {v(XF + set_*16 + t*4, 4)}, v{VXA+st} offset:{t*2048}"
        def wread(st, p, q): return f"ds_read_b64_tr_b16 {v(WF + (p%4)*4 + q*2, 2)}, v{VWA+(p>>1)} offset:{(p&1)*16384 + st*8192 + q*1024}"
        def mfma(st, p, t):
            c = ACC + (p * 4 + t) * 4
            return f"v_mfma_f32_16x16x32_bf16 {v(c,4)}, {v(WF+(p%4)*4,4)}, {v(XF+(st&1)*16+t*4,4)}, {v(c,4)}"
    def rd_x(st, t): a.lds(xread(st % nstep, t, st & 1), ("x", st % nstep, t))
    def rd_w(gp):
        st, p = (gp // nA) % nstep, gp % nA
        for q in range(2): a.lds(wread(st, p, q), ("w", st, p))
    NP = nstep * nA
    def head_reads(k):
        if k == 0:
            rd_x(0, 0); rd_w(0)
            for t in range(1, nB): rd_x(0, t)
        else: rd_w(k)
    a("s_barrier")
    stamp(a, cfg, 1)
    for k in range(4): head_reads(k)
    entry_q = list(a.lds_q)
    a(".p2align 3\nK1_FLOOP:")
    for gp in range(NP):
        st, p = gp // nA, gp % nA
        for t in range(nB):
            a.wait_lds([("w", st, p), ("x", st, t)])
            if not cfg.get('nomfma'): a(mfma(st, p, t))
            if st + 1 < nstep and p < nB and t == 0: rd_x(st + 1, p)
            if gp == NP - 5 and t == 0:
                pass
        nxt = gp + 4
        if nxt < NP: rd_w(nxt)
        else:
            k = nxt - NP
            if k == 0:
                a.wait_lds_all()
                a("s_barrier")
            head_reads(k)
        if nxt == NP - 1:
            a("s_add_u32 s57, s57, 1\ns_cmp_eq_u32 s57, 3\ns_cselect_b32 s58, -2, 1\ns_cselect_b32 s57, 0, s57\ns_lshl_b32 s59, s58, 15\ns_lshl_b32 s58, s58, 14")
            for i in range(nxa): a(f"v_add_u32 v{VXA+i}, s58, v{VXA+i}")
            for i in range(4): a(f"v_add_u32 v{VWA+i}, s59, v{VWA+i}")
    assert a.lds_q == entry_q, (a.lds_q, entry_q)
    a("s_add_u32 s56, s56, 1\ns_cmp_lt_u32 s56, 8\ns_cbranch_scc1 K1_FLOOP")
    a.lds_q = []
    stamp(a, cfg, 2)
    a("s_setprio 0")
    a(f"""
    s_mov_b32 s32, s16
    s_mov_b32 s33, s17
    s_mov_b32 s34, {H_BYTES}
    s_mov_b32 s35, 0x00020000
    s_waitcnt lgkmcnt(0)
    """)
    ST, CS, T, O, VH = 16, 32, 64, 72, 80
    if shape == 32:
        a(f"""
        v_lshrrev_b32 v2, 5, v0
        s_lshl_b32 s38, s37, 9
        s_add_u32 s38, s38, {LDS_CS}
        v_lshlrev_b32 v3, 6, v2
        v_add_u32 v3, s38, v3
        s_cmp_eq_u32 s36, 1
        s_cbranch_scc0 K1_NOCS
        s_mov_b32 exec_lo, 0x80000000
        s_mov_b32 exec_hi, 0x80000000
        s_nop 7
        """)
        for j in range(4):
            for q in range(4): a(f"ds_write_b128 v3, {v(ACC + (j*2+1)*16 + q*4, 4)} offset:{j*128 + q*16}")
        a("s_mov_b64 exec, -1\nK1_NOCS:")
        a(f"""
        v_and_b32 v1, 31, v0
        s_lshl_b32 s38, s36, 10
        s_add_u32 s38, s38, {LDS_AUX}
        v_lshlrev_b32 v4, 4, v1
        v_add_u32 v4, s38, v4
        s_lshl_b32 s38, s22, 2
        s_lshl_b32 s39, s36, 1
        s_add_u32 s38, s38, s39
        s_mul_i32 s38, s38, 88064
        v_lshlrev_b32 v5, 4, v0
        v_add_u32 v{VH}, s38, v5
        v_add_u32 v{VH+1}, 88064, v{VH}
        v_cmp_eq_u32 vcc, 31, v1
        s_cmp_eq_u32 s36, 1
        s_nop 3
        s_cselect_b64 vcc, vcc, 0
        v_mov_b32 v6, {OOB}
        s_nop 0
        v_cndmask_b32 v{VH+1}, v{VH+1}, v6, vcc
        s_cmp_lt_u32 s22, 16
        s_cbranch_scc1 K1_HOK
        v_mul_u32_u24 v5, {4*88064}, v1
        v_lshlrev_b32 v7, 9, v2
        v_add_u32 v5, v5, v7
        v_add_u32 v5, {3*88064 + 31*16}, v5
        v_cmp_gt_u32 vcc, 16, v1
        s_cmp_eq_u32 s36, 0
        s_nop 3
        s_cselect_b64 vcc, vcc, 0
        v_mov_b32 v{VH+1}, v6
        s_nop 0
        v_cndmask_b32 v{VH}, v6, v5, vcc
K1_HOK:
        s_lshl_b32 s38, s23, 3
        s_lshl_b32 s39, s37, 2
        s_add_u32 s38, s38, s39           ; step0
        s_waitcnt lgkmcnt(0)
        s_barrier
        """)
        stamp(a, cfg, 3)
        for rt in range(2): a.lds(f"ds_read_b128 {v(ST+rt*4,4)}, v4 offset:{rt*512}", "st")
        def rd_cs(j):
            for q in range(4): a.lds(f"ds_read_b128 {v(CS+(j&1)*16+q*4,4)}, v3 offset:{j*128+q*16}", ("cs", j))
        rd_cs(0)
        for j in range(4):
            if j + 1 < 4: rd_cs(j + 1)
            a.wait_lds(["st", ("cs", j)])
            a(f"s_add_u32 s39, s38, {j}\ns_cmp_ge_u32 s39, 86\ns_cbranch_scc1 K1_FDONE\ns_lshl_b32 s39, s39, 10")
            for rt in range(2):
                c = ACC + (j * 2 + rt) * 16
                geglu(a, [(c + 2*p, c + 8 + 2*p, CS + (j&1)*16 + 2*p, CS + (j&1)*16 + 8 + 2*p, ST + rt*4) for p in range(4)], T, O + rt*4)
                a(f"buffer_store_dwordx4 {v(O+rt*4,4)}, v{VH+rt}, s[32:35], s39 offen")
    else:
        a(f"""
        v_lshrrev_b32 v2, 4, v0           ; g
        s_lshl_b32 s38, s37, 9
        s_add_u32 s38, s38, {LDS_CS}
        v_lshlrev_b32 v3, 4, v2
        v_add_u32 v3, s38, v3
        s_cmp_eq_u32 s36, 1
        s_cbranch_scc0 K1_NOCS
        s_mov_b32 exec_lo, 0x80008000
        s_mov_b32 exec_hi, 0x80008000
        s_nop 7
        """)
        for p in range(8): a(f"ds_write_b128 v3, {v(ACC + (p*4+3)*4, 4)} offset:{p*64}")
        a("s_mov_b64 exec, -1\nK1_NOCS:")
        a(f"""
        v_and_b32 v1, 15, v0
        s_lshl_b32 s38, s36, 10
        s_add_u32 s38, s38, {LDS_AUX}
        v_lshlrev_b32 v4, 4, v1
        v_add_u32 v4, s38, v4
        s_lshl_b32 s38, s22, 2
        s_lshl_b32 s39, s36, 1
        s_add_u32 s38, s38, s39
        s_mul_i32 s38, s38, 88064
        v_lshrrev_b32 v5, 1, v2
        v_lshlrev_b32 v5, 9, v5
        v_and_b32 v7, 1, v2
        v_lshl_add_u32 v7, v7, 3, v5      ; (g>>1)*512 + (g&1)*8
        v_lshl_add_u32 v5, v1, 4, v7
        v_add_u32 v{VH}, s38, v5
        v_add_u32 v{VH+1}, 256, v{VH}
        v_add_u32 v{VH+2}, 88064, v{VH}
        v_add_u32 v{VH+3}, {88064+256}, v{VH}
        v_cmp_eq_u32 vcc, 15, v1
        s_cmp_eq_u32 s36, 1
        s_nop 3
        s_cselect_b64 vcc, vcc, 0
        v_mov_b32 v6, {OOB}
        s_nop 0
        v_cndmask_b32 v{VH+3}, v{VH+3}, v6, vcc
        s_cmp_lt_u32 s22, 16
        s_cbranch_scc1 K1_HOK
        v_mul_u32_u24 v5, {4*88064}, v1
        v_add_u32 v5, v5, v7
        v_add_u32 v{VH}, {3*88064 + 31*16}, v5
        v_mov_b32 v{VH+1}, v6
        v_mov_b32 v{VH+2}, v6
        v_mov_b32 v{VH+3}, v6
        s_cmp_eq_u32 s36, 0
        s_cbranch_scc1 K1_HOK
        v_mov_b32 v{VH}, v6
K1_HOK:
        s_lshl_b32 s38, s23, 3
        s_lshl_b32 s39, s37, 2
        s_add_u32 s38, s38, s39           ; step0
        s_waitcnt lgkmcnt(0)
        s_barrier
        """)
        stamp(a, cfg, 3)
        for t in range(4): a.lds(f"ds_read_b128 {v(ST+t*4,4)}, v4 offset:{t*256}", "st")
        for p in range(8): a.lds(f"ds_read_b128 {v(CS+p*4,4)}, v3 offset:{p*64}", ("cs", p >> 1))
        for j in range(4):
            a.wait_lds(["st", ("cs", j)])
            a(f"s_add_u32 s39, s38, {j}\ns_cmp_ge_u32 s39, 86\ns_cbranch_scc1 K1_FDONE\ns_lshl_b32 s39, s39, 10")
            for tt in range(2):
                items = []
                for t in (2 * tt, 2 * tt + 1):
                    cg_, cu_ = ACC + ((2*j) * 4 + t) * 4, ACC + ((2*j+1) * 4 + t) * 4
                    for p in range(2): items.append((cg_ + 2*p, cu_ + 2*p, CS + 8*j + 2*p, CS + 8*j + 4 + 2*p, ST + t*4))
                geglu(a, items, T, O + tt*4)
                a(f"buffer_store_dwordx2 {v(O+tt*4,2)}, v{VH+2*tt}, s[32:35], s39 offen")
                a(f"buffer_store_dwordx2 {v(O+tt*4+2,2)}, v{VH+2*tt+1}, s[32:35], s39 offen")
    a.lds_q = []
    a("K1_FDONE:")
    stamp(a, cfg, 4)
    if cfg.get("prof") or cfg.get("dbgp"): a("s_waitcnt vmcnt(0)")
    stamp(a, cfg, 5)
    prof_flush(a, cfg, 6, cfg.get("prof_base", 0x1000000))
    dbg_flush(a, cfg, [(0, 9, 1), (1, 9, 0), (2, 1, 1), (3, 1, 0), (4, 2, 0), (5, 5, 0)], 0)
    a("s_endpgm")

def geglu(a, items, T, O):
    for g, u, cg, cu, st in items: a(f"v_pk_fma_f32 {v(g,2)}, {v(st,2)}, {v(cg,2)}, {v(g,2)} op_sel_hi:[0,1,1]")
    for i, (g, u, cg, cu, st) in enumerate(items): a(f"v_pk_mul_f32 {v(T+2*i,2)}, {v(g,2)}, {v(g,2)}")
    for i, (g, u, cg, cu, st) in enumerate(items): a(f"v_pk_fma_f32 {v(T+2*i,2)}, {v(T+2*i,2)}, {v(st+2,2)}, {v(st,2)} op_sel:[0,0,1] op_sel_hi:[1,0,1]")
    for i, (g, u, cg, cu, st) in enumerate(items): a(f"v_pk_mul_f32 {v(T+2*i,2)}, {v(T+2*i,2)}, {v(g,2)}")
    for i in range(8): a(f"v_exp_f32 v{T+i}, v{T+i}")
    for g, u, cg, cu, st in items: a(f"v_pk_fma_f32 {v(u,2)}, {v(st,2)}, {v(cu,2)}, {v(u,2)} op_sel_hi:[0,1,1]")
    for i, (g, u, cg, cu, st) in enumerate(items): a(f"v_pk_fma_f32 {v(T+2*i,2)}, {v(T+2*i,2)}, {v(st+2,2)}, {v(st+2,2)} op_sel:[0,1,1] op_sel_hi:[1,1,1]")
    for i in range(8): a(f"v_rcp_f32 v{T+i}, v{T+i}")
    for g, u, cg, cu, st in items: a(f"v_pk_mul_f32 {v(u,2)}, {v(u,2)}, {v(g,2)}")
    for i, (g, u, cg, cu, st) in enumerate(items): a(f"v_pk_mul_f32 {v(u,2)}, {v(u,2)}, {v(T+2*i,2)}")
    for i, (g, u, cg, cu, st) in enumerate(items): a(f"v_cvt_pk_bf16_f32 v{O+i}, v{u}, v{u+1}")

def mma_dft(a, cfg):
    ACC, OUT, FF, BF = 128, 192, 64, 96
    VXA, VWA = 8, 12
    XF, WF = 16, 32
    a("s_lshr_b32 s36, s20, 1\ns_and_b32 s37, s20, 1")
    a(f"""
    v_and_b32 v1, 31, v0
    v_lshrrev_b32 v2, 5, v0
    v_bfe_u32 v3, v0, 1, 3
    v_xor_b32 v3, v3, v2
    v_lshlrev_b32 v3, 4, v3
    v_lshl_add_u32 v3, v1, 7, v3
    s_lshl_b32 s38, s36, 13
    v_add_u32 v{VXA}, s38, v3
    s_lshl_b32 s38, s37, 12
    s_add_u32 s38, s38, {LDS_W}
    v_add_u32 v{VWA}, s38, v3
    """)
    for i in range(1, 4): a(f"v_xor_b32 v{VXA+i}, {32*i}, v{VXA}\nv_xor_b32 v{VWA+i}, {32*i}, v{VWA}")
    for i in range(64): a(f"v_mov_b32 v{ACC+i}, 0")
    a(f"""
    s_lshl_b32 s38, s22, 1
    s_add_u32 s38, s38, s36           ; s0
    v_cvt_f32_u32 v4, v1
    v_mul_f32 v4, {fhex(1/2048)}, v4  ; t1/2048
    v_lshlrev_b32 v5, 8, v2
    v_add_u32 v5, s38, v5
    v_cvt_f32_u32 v5, v5              ; s0 + 256h
    v_mul_f32 v5, v5, v4
    v_cmp_eq_u32 vcc, 0, v1
    """)
    for q in range(4):
        for d in range(4):
            for e in range(2):
                i = 2 * d + e
                k = 32 * (q >> 1) + 64 * (16 * (q & 1) + 8 * (i >> 2) + (i & 3))
                a(f"v_fmamk_f32 v{48+e}, v4, {fhex(float(k))}, v5")
            a(f"""v_cos_f32 v50, v48
            v_cos_f32 v51, v49
            v_sin_f32 v52, v48
            v_sin_f32 v53, v49
            v_cvt_pk_bf16_f32 v{FF+q*4+d}, v50, v51
            v_mov_b32 v54, {'0x3f803f80' if q < 2 else '0xbf80bf80'}
            v_cvt_pk_bf16_f32 v55, v52, v53
            v_cndmask_b32 v{FF+16+q*4+d}, v55, v54, vcc""")
    a(f"s_mov_b32 s56, 0\ns_mov_b32 s57, 0\ns_setprio {cfg.get('pm', 0)}")
    stamp(a, cfg, 0)
    def rd(st):
        s_ = st % 4
        a.lds(f"ds_read_b128 {v(XF+(st&1)*8,4)}, v{VXA+s_}", ("x", s_, 0))
        a.lds(f"ds_read_b128 {v(WF+(st&1)*8,4)}, v{VWA+s_}", ("w", s_, 0))
        a.lds(f"ds_read_b128 {v(WF+(st&1)*8+4,4)}, v{VWA+s_} offset:8192", ("w", s_, 1))
        a.lds(f"ds_read_b128 {v(XF+(st&1)*8+4,4)}, v{VXA+s_} offset:4096", ("x", s_, 1))
    a("s_barrier")
    stamp(a, cfg, 1)
    rd(0)
    entry_q = list(a.lds_q)
    a(".p2align 3\nK1_DLOOP:")
    for st in range(4):
        for n, (rt, cs) in enumerate([(0, 0), (0, 1), (1, 0), (1, 1)]):
            a.wait_lds([("x", st, rt), ("w", st, cs)])
            c = ACC + (rt * 2 + cs) * 16
            if not cfg.get('nomfma'): a(f"v_mfma_f32_32x32x16_bf16 {v(c,16)}, {v(XF+(st&1)*8+rt*4,4)}, {v(WF+(st&1)*8+cs*4,4)}, {v(c,16)}")
            if n == 0 and st < 3:
                rd(st + 1)
                if st == 2:
                    a("s_add_u32 s57, s57, 1\ns_cmp_eq_u32 s57, 3\ns_cselect_b32 s58, -2, 1\ns_cselect_b32 s57, 0, s57\ns_lshl_b32 s58, s58, 14")
                    for i in range(4): a(f"v_add_u32 v{VXA+i}, s58, v{VXA+i}\nv_add_u32 v{VWA+i}, s58, v{VWA+i}")
            if n == 0 and st == 3:
                a.wait_lds_all(); a("s_barrier"); rd(4)
    assert a.lds_q == entry_q
    a("s_add_u32 s56, s56, 1\ns_cmp_lt_u32 s56, 8\ns_cbranch_scc1 K1_DLOOP")
    a.lds_q = []
    stamp(a, cfg, 2)
    NM, RR, CSV = 16, 48, 6
    a(f"""
    s_setprio 0
    s_waitcnt lgkmcnt(0)
    s_lshl_b32 s39, s36, 8
    s_add_u32 s39, s39, {LDS_AUX}
    v_lshlrev_b32 v3, 4, v2
    v_add_u32 v3, s39, v3
    s_lshl_b32 s39, s37, 7
    s_add_u32 s39, s39, {LDS_AUX + 1024}
    v_lshlrev_b32 v4, 2, v1
    v_add_u32 v4, s39, v4
    ds_read_b32 v6, v4
    ds_read_b32 v7, v4 offset:256
    """)
    for rt in range(2):
        for Q in range(4): a(f"ds_read_b128 {v(16+Q*4,4)}, v3 offset:{rt*128 + Q*32}")
        for Q in range(4): a(f"ds_read_b128 {v(32+Q*4,4)}, v3 offset:{512 + rt*128 + Q*32}")
        a("s_waitcnt lgkmcnt(0)")
        for cs in range(2):
            c = ACC + (rt * 2 + cs) * 16
            sel = "op_sel_hi:[1,0,1]" if cs == 0 else "op_sel:[0,1,0] op_sel_hi:[1,1,1]"
            for p in range(8): a(f"v_pk_fma_f32 {v(c+2*p,2)}, {v(16+2*p,2)}, v[6:7], {v(c+2*p,2)} {sel}")
            for p in range(8): a(f"v_pk_mul_f32 {v(c+2*p,2)}, {v(c+2*p,2)}, {v(32+2*p,2)}")
            for p in range(8): a(f"v_cvt_pk_bf16_f32 v{BF + cs*16 + rt*8 + p}, v{c+2*p}, v{c+2*p+1}")
    a("s_nop 1")
    for q in range(4):
        for CN in range(2):
            for ab in range(2):
                c = OUT + (CN * 2 + ab) * 16
                a(f"v_mfma_f32_32x32x16_bf16 {v(c,16)}, {v(FF+CN*16+q*4,4)}, {v(BF+ab*16+q*4,4)}, {'0' if q == 0 else v(c,16)}")
    P, R, T, Q = OUT, OUT + 16, OUT + 32, OUT + 48
    a(f"""
    s_add_u32 s32, s16, {Z_OFF}
    s_addc_u32 s33, s17, 0
    s_mov_b32 s34, {Z_BYTES}
    s_mov_b32 s35, 0x00020000
    s_lshl_b32 s39, s23, 6
    s_lshl_b32 s40, s37, 5
    s_add_u32 s39, s39, s40
    v_add_u32 v8, s39, v1             ; e
    v_sub_u32 v9, 512, v8
    v_and_b32 v9, 511, v9             ; col2
    v_cmp_eq_u32 vcc, 0, v8
    v_mov_b32 v10, 256
    v_mov_b32 v11, -1
    v_cndmask_b32 v8, v8, v10, vcc    ; col1
    v_cndmask_b32 v11, v11, 0, vcc    ; mask for out2
    v_lshlrev_b32 v10, 13, v2
    v_lshl_add_u32 v12, v8, 2, v10    ; Z1 offset
    v_lshl_add_u32 v13, v9, 2, v10    ; Z2 offset
    v_lshlrev_b32 v8, 2, v8
    v_lshlrev_b32 v9, 2, v9
    v_cvt_f32_u32 v10, v2             ; h as float
    s_mul_i32 s38, s38, {33*2048}
    s_add_u32 s39, s38, {32*2048}
    s_nop 3
    v_cvt_pk_bf16_f32 v14, v{T}, v{Q}
    v_cvt_pk_bf16_f32 v15, v{T}, -v{Q}
    v_mul_f32 v{T}, v{T}, v10
    v_mul_f32 v{Q}, v{Q}, v10
    v_and_b32 v15, v15, v11
    s_mov_b32 exec_hi, 0
    buffer_store_dword v14, v8, s[32:35], s39 offen
    buffer_store_dword v15, v9, s[32:35], s39 offen
    s_mov_b64 exec, -1
    """.replace("v_cndmask_b32 v11, v11, 0, vcc", "v_cndmask_b32_e64 v11, v11, 0, vcc"))
    for p in range(8):
        r0 = 2 * p
        a(f"""v_pk_add_f32 v[16:17], {v(P+r0,2)}, {v(Q+r0,2)}
        v_pk_add_f32 v[18:19], {v(R+r0,2)}, {v(T+r0,2)} neg_lo:[0,1] neg_hi:[0,1]
        v_pk_add_f32 v[20:21], {v(P+r0,2)}, {v(Q+r0,2)} neg_lo:[0,1] neg_hi:[0,1]
        v_pk_add_f32 v[22:23], {v(R+r0,2)}, {v(T+r0,2)} neg_lo:[1,1] neg_hi:[1,1]""")
        o = 24 + (p & 3) * 4
        a(f"""v_cvt_pk_bf16_f32 v{o}, v16, v18
        v_cvt_pk_bf16_f32 v{o+1}, v17, v19
        v_cvt_pk_bf16_f32 v{o+2}, v20, v22
        v_cvt_pk_bf16_f32 v{o+3}, v21, v23
        s_add_u32 s39, s38, {(8*(r0>>2) + (r0&3))*2048}
        v_and_b32 v{o+2}, v{o+2}, v11
        v_and_b32 v{o+3}, v{o+3}, v11
        buffer_store_dword v{o}, v12, s[32:35], s39 offen
        buffer_store_dword v{o+1}, v12, s[32:35], s39 offen offset:2048
        buffer_store_dword v{o+2}, v13, s[32:35], s39 offen
        buffer_store_dword v{o+3}, v13, s[32:35], s39 offen offset:2048""")
    stamp(a, cfg, 3); stamp(a, cfg, 4)
    if cfg.get("prof"): a("s_waitcnt vmcnt(0)")
    stamp(a, cfg, 5)
    prof_flush(a, cfg, 6, cfg.get("prof_base", 0x1000000))
    a("s_endpgm")

def gen_k1(cfg):
    a = Asm()
    entry(a, cfg)
    loader(a, cfg)
    a("K1_MMA:\ns_waitcnt lgkmcnt(0)\ns_cmp_eq_u32 s21, 0\ns_cbranch_scc0 K1_MMA_DFT")
    mma_ffn(a, cfg)
    a("K1_MMA_DFT:")
    mma_dft(a, cfg)
    a("K1_END:\ns_endpgm")
    return kernel("k1_kernel", a.text(), 256)
```

```python
from dsl import *
import math, numpy as np
KN = "recurrent_scan__spectral_fnet__geglu_ffn__prompt_kernel"
Z_OFF, ST_OFF, FL_OFF, CS_OFF, XID_OFF, FLG_OFF, WS_BYTES = 0x600000, 0x900000, 0x908000, 0x90A000, 0x910000, 0x918000, 0xA00000
ZROW = 2176
LDS_CNT_OFF = 3072
LDS_MODE = 159744 + 3088
OOB = 0x7F000000
LDS_W = 49152
LDS_E = 147456
LDS_AUX = 159744
LDS_CS = LDS_AUX + 2048
LDS_TOTAL = 163840
GC = -2.0 * math.sqrt(2.0 / math.pi) * math.log2(math.e)
LOG2E = math.log2(math.e)
SPIN_MAX = 1 << 15
PROF_BASE = 0x1000000

def SR(idx): return {10: 6, 11: 7}.get(idx, 60 + idx)
def stamp(a, cfg, idx):
    if cfg.get("prof"):
        a(f"s_memrealtime s[40:41]\ns_waitcnt lgkmcnt(0)\ns_mov_b32 s{SR(idx)}, s40")
def cyc(a, cfg, which, idx=7):
    if cfg.get("prof"):
        if which == 0: a(f"s_memtime s[40:41]\ns_waitcnt lgkmcnt(0)\ns_mov_b32 s{60+idx}, s40")
        else: a(f"s_memtime s[40:41]\ns_waitcnt lgkmcnt(0)\ns_sub_u32 s{60+idx}, s40, s{60+idx}")
def prof_flush(a, cfg):
    if not cfg.get("prof"): return
    a(f"s_lshl_b32 s42, s2, 3\ns_add_u32 s42, s42, s20\ns_lshl_b32 s42, s42, 6\ns_add_u32 s42, s42, {PROF_BASE}")
    a("s_mov_b32 s44, s16\ns_mov_b32 s45, s17\ns_mov_b32 s46, 0x10000000\ns_mov_b32 s47, 0x00020000")
    a("s_mov_b64 exec, 1\nv_mov_b32 v1, 0")
    for i in range(12):
        a(f"v_mov_b32 v2, s{SR(i)}\nbuffer_store_dword v2, v1, s[44:47], s42 offen offset:{4*i}")
    a("v_mov_b32 v2, s57\nbuffer_store_dword v2, v1, s[44:47], s42 offen offset:48")
    a("v_mov_b32 v2, s101\nbuffer_store_dword v2, v1, s[44:47], s42 offen offset:52")
    a("s_waitcnt vmcnt(0)\ns_mov_b64 exec, -1")

def entry(a, cfg):
    a("""
    s_cmp_ge_u32 s2, 256
    s_cbranch_scc1 L_END
    s_load_dwordx2 s[4:5], s[0:1], 0
    s_load_dwordx4 s[8:11], s[0:1], 24
    s_load_dwordx4 s[12:15], s[0:1], 48
    s_load_dwordx2 s[18:19], s[0:1], 64
    s_load_dwordx2 s[82:83], s[0:1], 72
    s_load_dwordx2 s[80:81], s[0:1], 80
    s_load_dwordx2 s[16:17], s[0:1], 88
    v_lshrrev_b32 v1, 6, v0
    v_and_b32 v0, 63, v0
    s_and_b32 s3, s2, 7
    v_readfirstlane_b32 s20, v1
    s_lshr_b32 s6, s2, 3          ; loc
    """)
    if cfg.get("p2d"):
        a("""
        s_lshr_b32 s7, s3, 1          ; a
        s_and_b32 s3, s3, 1           ; b
        s_lshl_b32 s36, s7, 2         ; 4a
        s_sub_u32 s37, 6, s3          ; nc
        s_lshl_b32 s38, s37, 2        ; nffn
        s_mul_i32 s39, s3, 9
        s_add_u32 s39, s39, 43
        s_mul_i32 s39, s39, s6
        s_lshr_b32 s39, s39, 8        ; q
        s_add_u32 s22, s36, s39       ; rho
        s_mul_i32 s39, s39, s37
        s_sub_u32 s23, s6, s39
        s_mul_i32 s39, s3, 6
        s_add_u32 s23, s23, s39       ; cg
        s_mov_b32 s21, 0
        s_cmp_lt_u32 s6, s38
        s_cbranch_scc1 L_ROLED
        s_sub_u32 s6, s6, s38
        s_and_b32 s39, s6, 3
        s_add_u32 s22, s36, s39       ; w
        s_lshr_b32 s39, s6, 2
        s_lshl_b32 s23, s3, 1
        s_add_u32 s23, s23, s39       ; eq
        s_mov_b32 s21, 1
        s_cmp_lt_u32 s6, 8
        s_cbranch_scc1 L_ROLED
        s_sub_u32 s6, s6, 8
        s_add_u32 s23, s36, s6
        s_mov_b32 s21, 2
        s_cmp_lt_u32 s23, 11
        s_cbranch_scc1 L_CS
        s_branch L_ROLED
        """)
    a("""
    s_lshl_b32 s36, s3, 1
    s_cmp_ge_u32 s6, 11
    s_cselect_b32 s37, 1, 0
    s_add_u32 s22, s36, s37       ; rho
    s_mul_i32 s37, s37, 11
    s_sub_u32 s23, s6, s37        ; cg
    s_mov_b32 s21, 0
    s_cmp_lt_u32 s6, 22
    s_cbranch_scc1 L_ROLED
    s_sub_u32 s6, s6, 22
    s_lshr_b32 s37, s6, 2
    s_add_u32 s22, s36, s37       ; w
    s_and_b32 s23, s6, 3          ; eq
    s_mov_b32 s21, 1
    s_cmp_lt_u32 s6, 8
    s_cbranch_scc1 L_ROLED
    s_sub_u32 s6, s6, 8
    s_add_u32 s23, s36, s6
    s_mov_b32 s21, 2
    s_cmp_lt_u32 s23, 11
    s_cbranch_scc1 L_CS
L_ROLED:
    s_cmp_lt_u32 s20, 4
    s_cbranch_scc1 L_MMA
    """)

def get_nonce(a, lab, vt):
    a(f"""
    v_mov_b32 v{vt+2}, 0
    s_mov_b32 s56, 0
{lab}:
    buffer_load_dwordx2 {v(vt,2)}, v{vt+2}, s[88:91], 0 offen sc1
    s_add_u32 s56, s56, 1
    s_waitcnt vmcnt(0)
    v_readfirstlane_b32 s92, v{vt}
    v_readfirstlane_b32 s93, v{vt+1}
    s_cmp_ge_u32 s56, {SPIN_MAX}
    s_cbranch_scc1 {lab}_OK
    s_cmp_eq_u32 s92, 0
    s_cbranch_scc1 {lab}
{lab}_OK:
    """)

def xid_publish(a, vt):
    a(f"""
    s_getreg_b32 s100, hwreg(HW_REG_XCC_ID, 0, 4)
    s_lshl_b32 s53, s2, 7
    s_add_u32 s53, s53, {XID_OFF}
    s_cmp_eq_u32 s36, 0
    s_cselect_b32 s53, s53, {OOB}
    v_mov_b32 v{vt}, s100
    v_mov_b32 v{vt+1}, s92
    v_mov_b32 v{vt+2}, 0
    s_mov_b64 exec, 1
    """)
    a.vm(f"buffer_store_dwordx2 {v(vt,2)}, v{vt+2}, s[32:35], s53 offen sc1", "xid")
    a("s_mov_b64 exec, -1")

def colsum(a, cfg):
    a(f"""
L_CS:
    v_lshrrev_b32 v2, 4, v0
    v_and_b32 v3, 15, v0
    v_mul_u32_u24 v2, 2752, v2
    v_lshl_add_u32 v2, v3, 4, v2
    s_lshl_b32 s38, s23, 8
    s_lshr_b32 s39, s20, 1
    s_mul_i32 s39, s39, {128*2752}
    s_add_u32 s38, s38, s39
    s_and_b32 s39, s20, 1
    s_cmp_eq_u32 s39, 0
    s_waitcnt lgkmcnt(0)
    s_cselect_b32 s28, s12, s14
    s_cselect_b32 s29, s13, s15
    s_mov_b32 s30, 1409024
    s_mov_b32 s31, 0x00020000
    """)
    common_srds(a)
    a("s_sub_u32 s36, s20, 4\nv_mov_b32 v146, 0\nbuffer_load_dwordx2 v[144:145], v146, s[88:91], 0 offen sc1")
    for i in range(32):
        a(f"buffer_load_dwordx4 {v(16+4*i,4)}, v2, s[28:31], s38 offen\ns_add_u32 s38, s38, {4*2752}")
    a("s_mov_b32 s48, 0xffff0000")
    for i in range(8): a(f"v_mov_b32 v{8+i}, 0")
    for i in range(32):
        if i % 4 == 0: a(f"s_waitcnt vmcnt({28 - i})")
        if i == 0:
            a(f"""
            v_readfirstlane_b32 s92, v144
            v_readfirstlane_b32 s93, v145
            s_nop 1
            s_cmp_lg_u32 s92, 0
            s_cbranch_scc1 L_CS_N1
            """)
            get_nonce(a, "L_CS_N0", 144)
            a("L_CS_N1:")
            xid_publish(a, 144)
        for d in range(4):
            r = 16 + 4 * i + d
            a(f"v_lshlrev_b32 v4, 16, v{r}\nv_and_b32 v5, s48, v{r}\nv_add_f32 v{8+2*d}, v{8+2*d}, v4\nv_add_f32 v{9+2*d}, v{9+2*d}, v5")
    a(f"""
    s_lshl_b32 s38, s20, 11
    v_lshlrev_b32 v2, 5, v0
    v_add_u32 v2, s38, v2
    ds_write_b128 v2, v[8:11]
    ds_write_b128 v2, v[12:15] offset:16
    s_waitcnt lgkmcnt(0)
    s_barrier
    s_cmp_lt_u32 s20, 4
    s_cbranch_scc0 L_CS_H
    s_lshr_b32 s38, s20, 1
    s_lshl_b32 s38, s38, 11
    s_and_b32 s39, s20, 1
    s_lshl_b32 s39, s39, 8
    s_add_u32 s38, s38, s39
    v_lshlrev_b32 v2, 2, v0
    v_add_u32 v2, s38, v2
    """)
    for kq in range(4):
        for rg in range(4): a(f"ds_read_b32 v{16+kq*4+rg}, v2 offset:{kq*4096 + rg*512}")
        if kq == 1: a("s_waitcnt lgkmcnt(0)")
    a("s_waitcnt lgkmcnt(0)\ns_barrier")
    for i in range(1, 16): a(f"v_add_f32 v16, v16, v{16+i}")
    a(f"""
    v_mov_b32 v17, s92
    s_lshl_b32 s38, s23, 11
    s_lshl_b32 s39, s20, 9
    s_add_u32 s38, s38, s39
    s_add_u32 s38, s38, {CS_OFF}
    v_lshlrev_b32 v2, 3, v0
    buffer_store_dwordx2 v[16:17], v2, s[32:35], s38 offen sc1
    """)
    stamp(a, cfg, 5)
    a("""
    s_branch L_FIN
L_CS_H:
    s_barrier
    s_sub_u32 s36, s20, 4
    s_branch L_HI
    """)

def common_srds(a):
    a(f"""
    s_mov_b32 s24, s4
    s_mov_b32 s25, s5
    s_mov_b32 s26, 2097152
    s_mov_b32 s27, 0x00020000
    s_mov_b32 s32, s16
    s_mov_b32 s33, s17
    s_mov_b32 s34, {WS_BYTES}
    s_mov_b32 s35, 0x00020000
    s_mov_b32 s88, s80
    s_mov_b32 s89, s81
    s_mov_b32 s90, 256
    s_mov_b32 s91, 0x00020000
    """)

ACC2, Y2, AS2, AF2, XR2, HF2, GF2, ZF2 = 192, 176, 152, 136, 128, 16, 112, 152
HR2 = 12
VH2, VWD2, VO2 = 2, 4, 5
VT2 = 8
SLOT = {"E": (3, 0, LDS_E, 2048)}
for sl in range(3):
    for i in range(2): SLOT[f"X{sl}{i}"] = (0, sl * 16384 + i * 2048, sl * 16384 + i * 2048, 4096)
    for i in range(4):
        if sl < 2: SLOT[f"W{sl}{i}"] = (1, sl * 32768 + i * 2048, LDS_W + sl * 32768 + i * 2048, 8192)
        else: SLOT[f"W{sl}{i}"] = (2, i * 2048, LDS_W + 65536 + i * 2048, 8192)
POS_SLOT = ["W20", "W21", "W22", "E", "X20", "X21", "W23", "X00", "X01", "W00", "W01", "W20", "W21", "W22", "W02", "W03", "X10", "X11", "W10", "W11", "W12", "W13"]
LOC_E = [0, 4, 8, 12, 16, 20, 1, 5, 9, 13, 17, 21, 2, 6, 10, 14, 18, 3, 7, 11, 15, 19]
LOC_O = [2, 6, 10, 14, 18, 3, 7, 11, 15, 19, 0, 4, 8, 12, 16, 20, 1, 5, 9, 13, 17, 21]
DCL = [{2: 0, 6: 1, -17: 2}[o - e] for e, o in zip(LOC_E, LOC_O)]
MULT_S = {2048: "s70", 4096: "s71", 8192: "s72"}
def wd_dma(a, pos):
    kind, imm, m0c, mult = SLOT[POS_SLOT[pos]]
    for i in range(2):
        a(f"s_add_u32 m0, {MULT_S[mult]}, {m0c + i*1024}\ns_add_u32 s53, s{94+DCL[pos]}, {LOC_E[pos]*16384 + i*8192}")
        a.vm(f"buffer_load_dwordx4 v{VWD2}, s[84:87], s53 offen lds", ("wd", pos))
def tr2(a, cfg, pos, dst):
    kind, imm, m0c, mult = SLOT[POS_SLOT[pos]]
    qoff = 1024 if cfg["shape"] == 32 else 512
    for ct in range(2):
        for q in range(2):
            a.lds(f"ds_read_b64_tr_b16 {v(dst+ct*4+q*2,2)}, v{VT2+kind*2+ct} offset:{imm + q*qoff}", ("a", pos, ct))

def p2_setup(a, cfg):
    shape = cfg["shape"]
    a(f"""
    s_lshl_b32 s70, s36, 11
    s_lshl_b32 s71, s36, 12
    s_lshl_b32 s72, s36, 13
    s_mul_i32 s73, s36, 22
    s_and_b32 s53, s36, 1
    s_mul_i32 s97, s53, 2
    s_mul_i32 s98, s53, 6
    s_mul_i32 s99, s53, -17
    s_add_u32 s97, s97, s73
    s_add_u32 s98, s98, s73
    s_add_u32 s99, s99, s73
    s_lshl_b32 s94, s97, 14
    s_lshl_b32 s95, s98, 14
    s_lshl_b32 s96, s99, 14
    s_lshl_b32 s97, s97, 10
    s_lshl_b32 s98, s98, 10
    s_lshl_b32 s99, s99, 10
    s_and_b32 s74, s2, 7
    s_lshl_b32 s74, s74, 2
    s_lshr_b32 s75, s2, 6
    s_add_u32 s74, s74, s75           ; g
    s_bfe_u32 s75, s2, 0x30003
    s_mov_b32 s84, s18
    s_mov_b32 s85, s19
    s_mov_b32 s86, 1409024
    s_mov_b32 s87, 0x00020000
    v_lshrrev_b32 v6, 3, v0           ; k'
    v_and_b32 v7, 7, v0
    v_lshlrev_b32 v6, 10, v6
    v_lshl_add_u32 v6, v7, 4, v6
    v_and_b32 v7, 16, v0              ; ((k'>>1)&1) * 16
    v_lshlrev_b32 v7, 2, v7
    v_xor_b32 v6, v6, v7
    s_lshl_b32 s53, s75, 7
    v_add_u32 v{VWD2}, s53, v6
    """)
def p2_setup2(a, cfg):
    shape = cfg["shape"]
    a(f"""
    s_mul_i32 s53, s74, {2*88064}
    v_lshlrev_b32 v6, 4, v0
    v_add_u32 v{VH2}, s53, v6
    v_add_u32 v{VH2+1}, 88064, v{VH2}
    v_lshrrev_b32 v7, 5, v0
    v_bfe_u32 v6, v0, 2, 2            ; r
    v_lshl_add_u32 v7, v7, {2 if shape == 32 else 3}, v6
    v_lshlrev_b32 v7, 7, v7
    v_lshrrev_b32 v6, 1, v6
    v_lshl_add_u32 v7, v6, 6, v7
    v_bfe_u32 v6, v0, 4, 1
    v_lshl_add_u32 v7, v6, 5, v7
    v_and_b32 v6, 3, v0
    v_lshl_add_u32 v7, v6, 3, v7
    v_add_u32 v{VT2}, s71, v7
    s_add_u32 s53, s72, {LDS_W}
    v_add_u32 v{VT2+2}, s53, v7
    v_add_u32 v{VT2+4}, 65536, v{VT2+2}
    s_add_u32 s53, s70, {LDS_E}
    v_add_u32 v{VT2+6}, s53, v7
    v_xor_b32 v{VT2+1}, 64, v{VT2}
    v_xor_b32 v{VT2+3}, 64, v{VT2+2}
    v_xor_b32 v{VT2+5}, 64, v{VT2+4}
    v_xor_b32 v{VT2+7}, 64, v{VT2+6}
    """)
def helper(a, cfg):
    shape = cfg["shape"]
    VX, VW = 16, 20
    a("s_sub_u32 s36, s20, 4")
    a(f"""
    s_cmp_eq_u32 s21, 2
    s_cbranch_scc1 L_HI
    v_lshrrev_b32 v2, 3, v0           ; l>>3
    v_lshrrev_b32 v3, 4, v0           ; l>>4
    v_and_b32 v4, 7, v0
    v_xor_b32 v4, v4, v3
    v_xor_b32 v5, 4, v4
    v_lshlrev_b32 v4, 4, v4
    v_lshlrev_b32 v5, 4, v5
    s_lshr_b32 s37, s36, 1
    s_and_b32 s38, s36, 1
    s_lshl_b32 s38, s38, 5
    s_add_u32 s37, s37, s38
    s_lshl_b32 s38, s22, 1
    s_add_u32 s37, s37, s38
    s_lshl_b32 s37, s37, 10
    v_lshlrev_b32 v6, 16, v2
    v_add_u32 v6, s37, v6
    v_add_u32 v{VX}, v6, v4
    v_add_u32 v{VX+1}, v6, v5
    v_add_u32 v{VX+1}, 0x80000, v{VX+1}
    v_add_u32 v{VX+2}, 0x100000, v{VX}
    v_add_u32 v{VX+3}, 0x100000, v{VX+1}
    s_lshl_b32 s49, s36, 12
    s_cmp_eq_u32 s21, 0
    s_cbranch_scc0 L_HD
    """)
    for typ in ("F", "D"):
        a.vm_q = []; a.lds_q = []
        L = "L_H" + typ
        if typ == "D": a.label("L_HD")
        if typ == "F":
            a(f"""
            v_bfe_u32 v4, v0, 1, 3
            v_lshlrev_b32 v5, 1, v3
            s_and_b32 s37, s36, 1             ; mat
            s_lshr_b32 s38, s36, 1
            v_xor_b32 v4, v4, v5
            v_xor_b32 v4, {'s37' if shape == 32 else 's38'}, v4
            v_lshlrev_b32 v4, 5, v4
            v_and_b32 v5, 1, v0
            v_lshl_add_u32 v4, v5, 4, v4
            v_mul_u32_u24 v3, 2752, v3
            s_lshl_b32 s39, s23, 8
            v_add3_u32 v{VW}, v3, v4, s39
            s_mul_i32 s50, s38, {2*11008}
            s_lshl_b32 s51, s37, 14
            s_lshl_b32 s39, s38, 11
            s_add_u32 s51, s51, s39           ; W m0 base
            s_cmp_eq_u32 s37, 0
            s_waitcnt lgkmcnt(0)
            s_cselect_b32 s28, s12, s14
            s_cselect_b32 s29, s13, s15
            s_mov_b32 s30, 1409024
            """)
        else:
            a(f"""
            s_and_b32 s37, s36, 1
            s_lshl_b32 s37, s37, 5
            s_lshl_b32 s38, s23, 6
            s_add_u32 s37, s37, s38
            v_add_u32 v2, s37, v2
            v_lshl_add_u32 v{VW}, v2, 10, v4
            v_xor_b32 v5, 64, v{VW}
            v_add_u32 v{VW+1}, 0x2000, v5
            v_add_u32 v{VW+2}, 0x4000, v{VW}
            v_add_u32 v{VW+3}, 0x6000, v5
            s_cmp_lt_u32 s36, 2
            s_cselect_b32 s38, 0x40000, 0
            v_cmp_eq_u32 vcc, 0, v2
            v_mov_b32 v5, s38
            s_nop 0
            v_cndmask_b32 v5, 0, v5, vcc
            v_add_u32 v{VW}, v{VW}, v5
            s_cmp_lt_u32 s36, 2
            s_waitcnt lgkmcnt(0)
            s_cselect_b32 s28, s8, s10
            s_cselect_b32 s29, s9, s11
            s_mov_b32 s30, 524288
            """)
        a("""s_mov_b32 s31, 0x00020000
        s_mov_b32 s24, s4
        s_mov_b32 s25, s5
        s_mov_b32 s26, 2097152
        s_mov_b32 s27, 0x00020000""")
        def dma_groups(c):
            sl = c % 3
            order = [("x", 0), ("w", 0), ("x", 1), ("w", 1), ("x", 2), ("w", 2), ("x", 3), ("w", 3)] + ([("w", i) for i in range(4, 8)] if typ == "F" else [])
            out = []
            for kind, i in order:
                if kind == "x":
                    g = f"s_add_u32 m0, s49, {sl*16384 + i*1024}\n"
                    g += f"s_movk_i32 s52, {c*128}\n"
                    g += f"buffer_load_dwordx4 v{VX+i}, s[24:27], s52 offen lds\n"
                elif typ == "F":
                    kq = 4 * (i >> 1) + (i & 1)
                    g = f"s_add_u32 m0, s51, {LDS_W + sl*32768 + kq*1024}\ns_add_u32 s53, s50, {c*176128 + kq*11008}\nbuffer_load_dwordx4 v{VW}, s[28:31], s53 offen lds\n"
                else:
                    g = f"s_add_u32 m0, s49, {LDS_W + sl*16384 + i*1024}\ns_nop 0\nbuffer_load_dwordx4 v{VW+i}, s[28:31], s52 offen lds\n"
                if cfg.get('nox') and kind == 'x': g = g.replace('s52 offen', 's59 offen')
                if cfg.get('now') and kind == 'w': g = g.replace('s53 offen', 's59 offen').replace('s52 offen', 's59 offen')
                out.append(g)
            return out
        def issue(c, extra=()):
            extra = list(extra)
            gl = dma_groups(c)
            for n, g in enumerate(gl):
                a(g); a.vm_q.append(("c", c))
                if extra and n >= 1: extra.pop(0)()
            for e in extra: e()
        a(f"s_mov_b32 s59, {OOB}")
        stamp(a, cfg, 0)
        issue(0)
        def touch_setup():
            a(f"""
            s_lshr_b32 s57, s2, 3
            s_sub_u32 s57, s57, 22
            s_mul_i32 s57, s57, 172
            s_mul_i32 s58, s36, 43
            s_add_u32 s57, s57, s58
            s_lshl_b32 s57, s57, 10
            v_lshlrev_b32 v24, 4, v0
            v_mov_b32 v26, {LDS_AUX + LDS_CNT_OFF}
            v_mov_b32 v25, 0
            ds_write_b32 v26, v25
            """)
        def touch(n):
            a(f"s_add_u32 s53, s57, {n*1024}")
            a.vm("buffer_load_dwordx4 v[28:31], v24, s[84:87], s53 offen", "touch")
        def nonce_chk():
            a(f"""
            s_mov_b32 s56, 0
{L}_NCHK:
            v_readfirstlane_b32 s92, v32
            v_readfirstlane_b32 s93, v33
            s_add_u32 s56, s56, 1
            s_cmp_lg_u32 s92, 0
            s_cbranch_scc1 {L}_NOK
            s_cmp_ge_u32 s56, {SPIN_MAX}
            s_cbranch_scc1 {L}_NOK
            buffer_load_dwordx2 v[32:33], v35, s[88:91], 0 offen sc1
            s_waitcnt vmcnt(0)
            s_branch {L}_NCHK
{L}_NOK:
            """)
            xid_publish(a, 36)
        ex = [lambda: common_srds(a), lambda: p2_setup(a, cfg), lambda: p2_setup2(a, cfg)]
        if typ == "D": ex.append(touch_setup)
        issue(1, ex)
        a.wait_vm([("c", 0)])
        a("s_waitcnt lgkmcnt(0)")
        stamp(a, cfg, 1)
        gq = list(range(16)); cq = list(range(43))
        NT = [0] * 6 if typ == "F" else [cfg.get("nt", 0)] * 6
        for c in range(6):
            a("s_barrier")
            ex = []
            if c == 0: ex.append(lambda: (a("v_mov_b32 v35, 0"), a.vm("buffer_load_dwordx2 v[32:33], v35, s[88:91], 0 offen sc1", "nonce")))
            if c == 2: ex.append(nonce_chk)
            gs = []
            if typ == "D" and c < 5 and not cfg.get("noearly"): ex.append(lambda c=c: wd_dma(a, [0, 1, 2, 3, 6][c]))
            ts = [cq.pop(0) for _ in range(NT[c])]
            while gs or ts:
                n = gs.pop(0) if gs else None; t_ = ts.pop(0) if ts else None
                ex.append(lambda n=n, t_=t_: touch(t_))
            issue(c + 2, ex)
            a.wait_vm([("c", c + 1)])
        a("s_barrier")
        stamp(a, cfg, 2)
        a(f"""
        v_and_b32 v44, 31, v0
        s_lshl_b32 s37, s36, 5
        v_add_u32 v45, s37, v44
        s_lshl_b32 s38, s22, 7
        v_add_u32 v46, s38, v45
        v_lshlrev_b32 v46, 4, v46
        s_mov_b32 s37, {ST_OFF}
        """)
        a.vm("buffer_load_dwordx4 v[36:39], v46, s[32:35], s37 offen sc1", "st")
        if typ == "F":
            a(f"""
            s_lshl_b32 s57, s23, 11
            s_lshl_b32 s58, s36, 9
            s_add_u32 s57, s57, s58
            s_add_u32 s57, s57, {CS_OFF}
            v_lshlrev_b32 v47, 3, v0
            v_bfe_u32 v48, v0, 3, 1
            s_and_b32 s58, s22, 1
            s_lshl_b32 s58, s58, 1
            v_add_u32 v48, s58, v48
            v_lshlrev_b32 v48, 3, v48
            v_and_b32 v49, 7, v0
            v_add_u32 v48, v48, v49
            v_lshlrev_b32 v48, 10, v48
            s_lshr_b32 s58, s22, 1
            s_lshl_b32 s58, s58, 7
            s_add_u32 s58, s58, {XID_OFF}
            """)
            a.vm("buffer_load_dwordx2 v[42:43], v48, s[32:35], s58 offen sc1", "st")
            n67, n78 = cfg.get("n67", 7), cfg.get("n78", 4)
            for p in range(n67): wd_dma(a, p)
        a.wait_vm([("c", 7)])
        stamp(a, cfg, 6)
        a("s_barrier")
        stamp(a, cfg, 8)
        if typ == "F":
            a.vm("buffer_load_dwordx2 v[40:41], v47, s[32:35], s57 offen sc1", "st")
            a.wait_vm([("wd", 2)])
            for p in range(3): tr2(a, cfg, p, AS2 + p * 8)
            for p in range(n67, n67 + n78):
                if p == 11: a.wait_lds_all()
                wd_dma(a, p)
        a.wait_vm(["st"])
        a(f"""
        s_mov_b32 s56, 0
{L}_STCHK:
        v_cmp_eq_u32 vcc, s92, v38
        v_cmp_eq_u32 s[38:39], s93, v39
        {'v_cmp_eq_u32 s[44:45], s92, v41' if typ == "F" else ''}
        s_add_u32 s56, s56, 1
        s_nop 2
        s_and_b64 vcc, vcc, s[38:39]
        {'s_and_b64 vcc, vcc, s[44:45]' if typ == "F" else ''}
        s_cmp_eq_u64 vcc, -1
        s_cbranch_scc1 {L}_STOK
        s_cmp_ge_u32 s56, {SPIN_MAX}
        s_cbranch_scc1 {L}_STOK
        buffer_load_dwordx4 v[36:39], v46, s[32:35], s37 offen sc1
        {'buffer_load_dwordx2 v[40:41], v47, s[32:35], s57 offen sc1' if typ == "F" else ''}
        s_waitcnt vmcnt(0)
        s_branch {L}_STCHK
{L}_STOK:
        v_rcp_f32 v44, v37
        """)
        if cfg.get("prof"): a("s_mov_b32 s71, s71\ns_mov_b32 s101, s56")
        stamp(a, cfg, 11)
        if typ == "F":
            a(f"""
            v_mul_f32 v39, v37, v37
            v_lshlrev_b32 v45, 4, v45
            v_mul_f32 v37, {fhex(GC)}, v44
            v_mul_f32 v38, v44, v44
            v_mul_f32 v38, {fhex(0.044715)}, v38
            v_mul_f32 v38, v38, v37
            v_add_u32 v45, {LDS_AUX}, v45
            ds_write_b128 v45, v[36:39]
            v_lshrrev_b32 v45, 4, v0
            v_lshlrev_b32 v45, 7, v45
            s_and_b32 s38, s36, 1
            s_lshl_b32 s38, s38, 9
            s_lshr_b32 s39, s36, 1
            s_lshl_b32 s39, s39, {5 if shape == 32 else 6}
            s_add_u32 s38, s38, s39
            s_add_u32 s38, s38, {LDS_CS}
            """)
            if shape == 32:
                a("""v_and_b32 v46, 3, v0
                v_lshl_add_u32 v45, v46, 2, v45
                v_bfe_u32 v46, v0, 2, 1
                v_lshl_add_u32 v45, v46, 6, v45
                v_bfe_u32 v46, v0, 3, 1
                v_lshl_add_u32 v45, v46, 4, v45""")
            else:
                a("v_and_b32 v46, 15, v0\nv_lshl_add_u32 v45, v46, 2, v45")
            a(f"""
            v_add_u32 v45, s38, v45
            ds_write_b32 v45, v40
            v_cmp_eq_u32 vcc, s92, v43
            v_cmp_eq_u32 s[38:39], s100, v42
            v_mov_b32 v44, {LDS_MODE}
            v_mov_b32 v49, s92
            v_mov_b32 v50, s93
            s_nop 0
            s_and_b64 vcc, vcc, s[38:39]
            s_cmp_eq_u64 vcc, -1
            s_cselect_b32 s38, {0 if (cfg.get('remote') or cfg.get('p2d')) else 1}, 0
            v_mov_b32 v48, s38
            s_cmp_eq_u32 s36, 0
            s_cselect_b64 exec, 1, 0
            ds_write_b96 v44, v[48:50]
            s_mov_b64 exec, -1
            """)
            a.wait_lds_all()
            a("s_barrier")
            stamp(a, cfg, 3)
            if not cfg.get('nowd3'):
                for p in range(n67 + n78, 22): wd_dma(a, p)
            a("s_branch L_P2")
        else:
            a(f"""
            v_lshlrev_b32 v45, 2, v45
            v_add_u32 v45, {LDS_AUX}, v45
            ds_write_b32 v45, v36
            ds_write_b32 v45, v44 offset:512
            s_waitcnt lgkmcnt(0)
            s_barrier
            """)
            stamp(a, cfg, 3)
            if cfg.get("noearly"): a("s_branch L_HI2")
            else:
                for p in range(3): tr2(a, cfg, p, AS2 + p * 8)
                for p in list(range(21, 13, -1)) + [10, 9, 8, 7, 5, 4]: wd_dma(a, p)
                a.wait_lds_all()
                for p in (13, 12, 11): wd_dma(a, p)
                a("s_branch L_P2")
    a.vm_q = []; a.lds_q = []
    a("L_HI:\ns_waitcnt lgkmcnt(0)")
    stamp(a, cfg, 0)
    common_srds(a); p2_setup(a, cfg); p2_setup2(a, cfg)
    a("s_cmp_lt_u32 s23, 11\ns_cbranch_scc1 L_HI2")
    get_nonce(a, "L_HI_N", 32)
    xid_publish(a, 36)
    a("L_HI2:")
    a.vm_q = []
    for p in [0, 1, 2] + list(range(21, 13, -1)) + list(range(10, 2, -1)): wd_dma(a, p)
    a.wait_vm([("wd", 2)])
    for p in range(3): tr2(a, cfg, p, AS2 + p * 8)
    a.wait_lds_all()
    for p in range(11, 14): wd_dma(a, p)
    a.vm_q = []
    phase2(a, cfg)

def flagchk(a, lab, vd, vaddr, so="s54"):
    a(f"""
    s_mov_b32 s56, 0
{lab}:
    v_cmp_eq_u32 vcc, s92, v{vd}
    v_cmp_eq_u32 s[38:39], s93, v{vd+1}
    s_add_u32 s56, s56, 1
    s_nop 2
    s_and_b64 vcc, vcc, s[38:39]
    s_cmp_eq_u64 vcc, -1
    s_cbranch_scc1 {lab}_OK
    s_cmp_ge_u32 s56, {SPIN_MAX}
    s_cbranch_scc1 {lab}_OK
    s_sleep 16
    buffer_load_dwordx2 {v(vd,2)}, v{vaddr}, s[32:35], {so} offen sc1
    s_waitcnt vmcnt(0)
    s_branch {lab}
{lab}_OK:
    """)

def phase2(a, cfg):
    a("L_P2:")
    stamp(a, cfg, 4)
    TA, TD, TM = 128, 129, 130
    a(f"""
    s_and_b32 s53, s36, 1
    s_cmp_eq_u32 s53, 0
    s_cselect_b32 s44, 6, 5
    s_cselect_b32 s45, 12, 10
    s_cselect_b32 s46, 17, 16
    s_lshl_b32 s53, s53, 1
    v_min_u32 v{TM}, 21, v0
    v_cmp_le_u32 vcc, s44, v{TM}
    v_cmp_le_u32 s[38:39], s45, v{TM}
    v_cmp_le_u32 s[48:49], s46, v{TM}
    v_mov_b32 v{TA}, 0
    v_mov_b32 v{TD}, 0
    v_mov_b32 v{TM+1}, s44
    v_cndmask_b32 v{TA}, v{TA}, v{TM+1}, vcc
    v_addc_co_u32 v{TD}, vcc, 0, v{TD}, vcc
    v_mov_b32 v{TM+1}, s45
    v_cndmask_b32 v{TA}, v{TA}, v{TM+1}, s[38:39]
    v_addc_co_u32 v{TD}, vcc, 0, v{TD}, s[38:39]
    v_mov_b32 v{TM+1}, s46
    v_cndmask_b32 v{TA}, v{TA}, v{TM+1}, s[48:49]
    v_addc_co_u32 v{TD}, vcc, 0, v{TD}, s[48:49]
    v_sub_u32 v{TA}, v{TM}, v{TA}
    v_add_u32 v{TD}, s53, v{TD}
    v_and_b32 v{TD}, 3, v{TD}
    v_lshl_add_u32 v{TA}, v{TA}, 2, v{TD}
    v_add_u32 v{TA}, s73, v{TA}
    v_lshlrev_b32 v{TA}, {7 if cfg.get("p2d") else 2}, v{TA}
    s_lshl_b32 s55, s74, {14 if cfg.get("p2d") else 9}
    s_add_u32 s55, s55, {FLG_OFF}
    s_cmp_eq_u32 s36, 3
    s_cselect_b32 s43, {OOB}, 0
    s_cselect_b32 s47, {(1 << 15) | (1 << 21)}, 0
    s_mov_b32 s57, 0
    v_lshlrev_b32 v6, 4, v0
    s_add_u32 s53, s72, {LDS_W}
    v_add_u32 v7, s53, v6
    s_lshr_b32 s50, s36, 1
    s_lshl_b32 s50, s50, 5
    s_add_u32 s50, s50, s74
    s_and_b32 s51, s36, 1
    s_lshl_b32 s51, s51, 10
    s_add_u32 s50, s50, s51
    s_lshl_b32 s50, s50, 10
    s_lshl_b32 s51, s75, 7
    s_add_u32 s50, s50, s51
    s_add_u32 s51, s50, {8*65536}
    v_lshrrev_b32 v5, 3, v0
    v_and_b32 v6, 7, v0
    v_xor_b32 v6, v6, v5
    v_lshlrev_b32 v5, 16, v5
    v_lshl_add_u32 v5, v6, 4, v5
    """)
    def hload(n, part=None):
        h = HF2 + (n % HR2) * 8
        base = f"s{97+DCL[n]}"
        if part in (None, 0):
            if LOC_O[n] >= 20: a(f"s_add_u32 s53, {base}, s43\ns_add_u32 s53, s53, {LOC_E[n]*1024}")
            else: a(f"s_add_u32 s53, {base}, {LOC_E[n]*1024}")
        for rt in ((0, 1) if part is None else (part,)): a.vm(f"buffer_load_dwordx4 {v(h+4*rt,4)}, v{VH2+rt}, s[32:35], s53 offen sc1", ("h", n))
    def mm(n, fill):
        h = HF2 + (n % HR2) * 8
        a.wait_vm([("h", n)])
        a.wait_lds([("a", n, 0), ("a", n, 1)])
        A = AS2 + n * 8 if n < 3 else AF2 + (n & 1) * 8
        k = 0
        for ct in range(2):
            for rt in range(2):
                c = ACC2 + (rt * 2 + ct) * 16
                if not cfg.get("nomm2") or n == 0: a(f"v_mfma_f32_32x32x16_bf16 {v(c,16)}, {v(A+ct*4,4)}, {v(h+rt*4,4)}, {'0' if n == 0 else v(c,16)}")
                fill[k](); k += 1
    PD = cfg.get("pd", 6)
    slow = []
    def need(n):
        a(f"s_bitcmp1_b32 s47, {n}\ns_cbranch_scc0 L_NS{n}\nL_NR{n}:")
        slow.append(n)
    MERGE = {m: m - PD for m in (10, 13, 16, 19) if m - PD >= 1}
    REFRESH = {n: i for i, n in enumerate(MERGE.values())}
    def feed(n, part=None):
        if part == 1: return hload(n, 1)
        if n in MERGE:
            a.wait_vm([("f", MERGE[n])])
            a(f"v_cmp_eq_u32 vcc, s92, v{TM + 2 + REFRESH[MERGE[n]]}\ns_nop 3\ns_or_b32 s47, s47, vcc_lo")
        if n in REFRESH: a.vm(f"buffer_load_dword v{TM + 2 + REFRESH[n]}, v{TA}, s[32:35], s55 offen sc1", ("f", n))
        need(n)
        hload(n, part)
    if cfg.get("delay"):
        a(f"s_add_u32 s44, s92, {cfg['delay']}\nL_DLY:\ns_memrealtime s[40:41]\ns_waitcnt lgkmcnt(0)\ns_sub_u32 s41, s40, s44\ns_cmp_lt_i32 s41, 0\ns_cbranch_scc1 L_DLY")
    need(0)
    a.vm_q = []
    stamp(a, cfg, 5)
    hload(0)
    for n in range(1, PD): feed(n)
    tr2(a, cfg, 3, AF2 + 8)
    for n in range(22):
        nop = lambda: None
        t2 = (lambda: tr2(a, cfg, n + 1, AF2 + ((n + 1) & 1) * 8)) if (n >= 3 and n + 1 < 22) else nop
        f0 = (lambda: feed(n + PD, 0)) if n + PD < 22 else nop
        f1 = (lambda: feed(n + PD, 1)) if n + PD < 22 else nop
        xl = nop
        if n in (4, 5):
            def xl(u=n - 4):
                a(f"s_add_u32 m0, s70, {LDS_E + u*1024}\ns_nop 0")
                a.vm(f"buffer_load_dwordx4 v5, s[24:27], s{50+u} offen lds", "xr")
        mm(n, [t2, f0, f1, xl])
        if not cfg.get("nost"):
            if n + PD == 16: stamp(a, cfg, 7)
    stamp(a, cfg, 9)
    a("s_nop 7\ns_nop 1")
    for o in (0, 2, 1, 3):
        for q in range(4): a(f"ds_write_b128 v7, {v(ACC2+o*16+q*4,4)} offset:{(o&1)*4096 + (o>>1)*32768 + q*1024}")
    a("s_waitcnt lgkmcnt(0)\ns_barrier")
    stamp(a, cfg, 10)
    prof_flush(a, cfg)
    a("s_endpgm")
    for n in slow:
        a(f"""L_NS{n}:
        s_mov_b32 s56, 0
L_NT{n}:
        buffer_load_dword v{TM+1}, v{TA}, s[32:35], s55 offen sc1
        s_add_u32 s56, s56, 1
        s_add_u32 s57, s57, 1
        s_waitcnt vmcnt(0)
        v_cmp_eq_u32 vcc, s92, v{TM+1}
        s_cmp_ge_u32 s56, {SPIN_MAX}
        s_cbranch_scc1 L_NR{n}
        s_nop 1
        s_or_b32 s47, s47, vcc_lo
        s_bitcmp1_b32 s47, {n}
        s_cbranch_scc1 L_NR{n}
        s_sleep {cfg.get('hsl', 2)}
        s_branch L_NT{n}""")

def final(a, cfg):
    Y, ZF, GF, XR, TF = 16, 32, 48, 64, 72
    a(f"""
L_FIN:
    s_setprio 0
    s_and_b32 s74, s2, 7
    s_lshl_b32 s74, s74, 2
    s_lshr_b32 s75, s2, 6
    s_add_u32 s74, s74, s75           ; g
    s_bfe_u32 s75, s2, 0x30003        ; cg2
    s_and_b32 s45, s20, 1             ; ct
    s_lshr_b32 s46, s20, 1            ; rt
    s_mov_b32 s54, {FL_OFF}
    s_sub_u32 s47, 7, s75
    s_sub_u32 s48, 8, s75
    s_and_b32 s48, s48, 3
    s_cmp_lt_u32 s75, 4
    s_cselect_b32 s47, s75, s47
    s_cselect_b32 s48, s75, s48
    s_sub_u32 s48, s48, s47
    v_and_b32 v8, 15, v0
    v_lshlrev_b32 v8, 2, v8
    v_bfe_u32 v9, v0, 4, 1
    v_mul_lo_u32 v9, s48, v9
    v_add3_u32 v8, v8, v9, s47
    v_lshlrev_b32 v8, 7, v8
    """)
    a.vm_q = []
    a.vm(f"buffer_load_dwordx2 {v(TF,2)}, v8, s[32:35], s54 offen sc1", "fd")
    a(f"""
    s_lshl_b32 s47, s75, 6
    s_lshl_b32 s48, s45, 5
    s_add_u32 s47, s47, s48
    s_lshl_b32 s48, s46, 5
    s_add_u32 s48, s48, s74           ; residue
    s_lshl_b32 s48, s48, 10
    s_lshl_b32 s53, s47, 1
    s_add_u32 s48, s48, s53
    v_and_b32 v6, 31, v0
    v_lshrrev_b32 v7, 5, v0
    v_lshlrev_b32 v5, 16, v6
    v_lshl_add_u32 v5, v7, 4, v5
    v_add_u32 v5, s48, v5
    s_lshl_b32 s48, s45, 2
    v_add_u32 v10, s48, v7
    v_and_b32 v11, 7, v0
    v_xor_b32 v10, v10, v11
    v_lshlrev_b32 v10, 4, v10
    v_lshl_add_u32 v10, v6, 7, v10
    s_lshl_b32 s48, s46, 12
    s_add_u32 s48, s48, {LDS_E}
    v_add_u32 v10, s48, v10
    v_xor_b32 v11, 32, v10
    """)
    a(f"""
    s_cmp_lg_u32 s74, 0
    s_cselect_b32 s76, s46, 0         ; mirror
    s_sub_u32 s77, s46, s76           ; delta
    s_sub_u32 s78, 32, s74
    s_cmp_eq_u32 s46, 0
    s_cselect_b32 s78, s74, s78       ; tz
    s_mul_i32 s78, s78, {ZROW}
    s_add_u32 s78, s78, {Z_OFF}
    v_add_u32 v1, s47, v6
    v_sub_u32 v2, 512, v1
    v_and_b32 v2, 511, v2
    v_sub_u32 v3, 31, v6
    s_cmp_eq_u32 s76, 1
    s_cselect_b64 vcc, -1, 0
    v_cndmask_b32 v1, v1, v2, vcc
    v_cndmask_b32 v6, v6, v3, vcc
    v_mul_u32_u24 v2, {4*33*ZROW}, v7
    v_lshl_add_u32 v1, v1, 2, v2      ; Z offset
    v_lshlrev_b32 v6, 1, v6
    v_add_u32 v6, s77, v6
    v_cvt_f32_u32 v6, v6
    v_mul_f32 v6, {fhex(1/64)}, v6
    v_cvt_f32_u32 v7, v7
    v_mul_f32 v7, 4.0, v7
    v_mul_f32 v7, v7, v6
    """)
    def g_gen(n):
        q, d = n >> 2, n & 3
        a(f"""v_fmamk_f32 v2, v6, {fhex(float(8*q+d))}, v7
        v_cos_f32 v3, v2
        v_sin_f32 v4, v2
        s_nop 0
        v_cvt_pk_bf16_f32 v{GF+n}, v3, v4""")
    for n in range(8): g_gen(n)
    a.wait_vm(["fd"])
    flagchk(a, "L_FD", TF, 8)
    stamp(a, cfg, 9)
    for q in range(4):
        for d in range(4):
            a(f"s_add_u32 s53, s78, {(8*q + d)*33*ZROW}")
            a.vm(f"buffer_load_dword v{ZF+q*4+d}, v1, s[32:35], s53 offen sc1", "z")
    for n in range(8, 16): g_gen(n)
    a(f"""
    s_mov_b32 s48, 0xffff0000
    s_lshl_b32 s53, s45, 12
    s_lshl_b32 s54, s46, 15
    s_add_u32 s53, s53, s54
    s_add_u32 s53, s53, {LDS_W}
    v_lshlrev_b32 v9, 4, v0
    v_add_u32 v9, s53, v9""")
    a.wait_vm_all()
    for q in range(4):
        a(f"v_mfma_f32_32x32x16_bf16 {v(Y,16)}, {v(ZF+q*4,4)}, {v(GF+q*4,4)}, {'0' if q == 0 else v(Y,16)}")
    a("s_mov_b32 s24, s82\ns_mov_b32 s25, s83")
    stamp(a, cfg, 10)
    a("s_barrier")
    a.lds_q = []
    R = 96
    a.lds(f"ds_read_b128 {v(XR,4)}, v10", "x")
    a.lds(f"ds_read_b128 {v(XR+4,4)}, v11", "x")
    for w in range(4):
        if w == 3:
            a.wait_lds([("r", 0)])
            a(f"""v_permlane32_swap_b32 v{XR}, v{XR+2}
            v_permlane32_swap_b32 v{XR+1}, v{XR+3}
            v_permlane32_swap_b32 v{XR+4}, v{XR+6}
            v_permlane32_swap_b32 v{XR+5}, v{XR+7}""")
        for q in range(4): a.lds(f"ds_read_b128 {v(R+w*16+q*4,4)}, v9 offset:{w*8192 + q*1024}", ("r", w))
    for Q in range(4):
        for e in range(2):
            src = XR + Q * 2 + e
            a(f"v_lshlrev_b32 v{80+Q*4+2*e}, 16, v{src}\nv_and_b32 v{80+Q*4+2*e+1}, s48, v{src}")
    for w in range(1, 4):
        a.wait_lds([("r", w)])
        for i in range(0, 16, 2): a(f"v_pk_add_f32 {v(R+i,2)}, {v(R+i,2)}, {v(R+w*16+i,2)}")
    for i in range(16): a(f"v_mul_f32 v{R+16+i}, {fhex(-LOG2E)}, v{R+i}")
    for i in range(16): a(f"v_exp_f32 v{R+16+i}, v{R+16+i}")
    for i in range(0, 16, 2): a(f"v_pk_mul_f32 {v(R+i,2)}, {v(R+i,2)}, {v(Y+i,2)}")
    for i in range(16): a(f"v_add_f32 v{R+16+i}, 1.0, v{R+16+i}")
    for i in range(16): a(f"v_rcp_f32 v{R+16+i}, v{R+16+i}")
    a("s_nop 0")
    for i in range(0, 16, 2): a(f"v_pk_fma_f32 {v(R+i,2)}, {v(R+i,2)}, {v(R+16+i,2)}, {v(80+i,2)}")
    for i in range(8): a(f"v_cvt_pk_bf16_f32 v{64+i}, v{R+2*i}, v{R+2*i+1}")
    of = cfg.get("outflag", 0)
    fl = ["", " sc1", " nt", " sc0 sc1"][of]
    a(f"""s_nop 1
    v_permlane32_swap_b32 v64, v66
    v_permlane32_swap_b32 v65, v67
    v_permlane32_swap_b32 v68, v70
    v_permlane32_swap_b32 v69, v71
    buffer_store_dwordx4 v[64:67], v5, s[24:27], 0 offen{fl}
    buffer_store_dwordx4 v[68:71], v5, s[24:27], 0 offen offset:32{fl}""")
    if cfg.get("prof"): a("s_waitcnt vmcnt(0)")
    stamp(a, cfg, 11)
    prof_flush(a, cfg)
    a("s_endpgm")

def geglu(a, items, T, O):
    for g, u, cg, cu, st in items: a(f"v_pk_fma_f32 {v(g,2)}, {v(st,2)}, {v(cg,2)}, {v(g,2)}")
    for i, (g, u, cg, cu, st) in enumerate(items): a(f"v_pk_mul_f32 {v(T+2*i,2)}, {v(g,2)}, {v(g,2)}")
    for i, (g, u, cg, cu, st) in enumerate(items): a(f"v_pk_fma_f32 {v(T+2*i,2)}, {v(T+2*i,2)}, {v(st+4,2)}, {v(st+2,2)}")
    for i, (g, u, cg, cu, st) in enumerate(items): a(f"v_pk_mul_f32 {v(T+2*i,2)}, {v(T+2*i,2)}, {v(g,2)}")
    for i in range(8): a(f"v_exp_f32 v{T+i}, v{T+i}")
    for g, u, cg, cu, st in items: a(f"v_pk_fma_f32 {v(u,2)}, {v(st,2)}, {v(cu,2)}, {v(u,2)}")
    for i, (g, u, cg, cu, st) in enumerate(items): a(f"v_pk_fma_f32 {v(T+2*i,2)}, {v(T+2*i,2)}, {v(st+6,2)}, {v(st+6,2)}")
    for i in range(8): a(f"v_rcp_f32 v{T+i}, v{T+i}")
    for g, u, cg, cu, st in items: a(f"v_pk_mul_f32 {v(u,2)}, {v(u,2)}, {v(g,2)}")
    for i, (g, u, cg, cu, st) in enumerate(items): a(f"v_pk_mul_f32 {v(u,2)}, {v(u,2)}, {v(T+2*i,2)}")
    for i, (g, u, cg, cu, st) in enumerate(items): a(f"v_cvt_pk_bf16_f32 v{O+i}, v{u}, v{u+1}")

def mma_ffn(a, cfg):
    shape = cfg["shape"]
    ACC = 128
    VXA, VWA = 8, 12
    XF, WF = (16, 32) if shape == 32 else (16, 48)
    a(f"""
    s_or_b32 s38, s2, s20
    s_cmp_eq_u32 s38, 0
    s_cbranch_scc0 L_NONONCE
    s_memrealtime s[92:93]
    s_waitcnt lgkmcnt(0)
    s_or_b32 s92, s92, 1
    v_mov_b32 v2, s92
    v_mov_b32 v3, s93
    v_mov_b32 v4, 0
    s_mov_b64 exec, 1
    buffer_store_dwordx2 v[2:3], v4, s[88:91], 0 offen sc1
    s_mov_b64 exec, -1
L_NONONCE:
    """)
    if shape == 32:
        a(f"""
        v_and_b32 v1, 31, v0
        v_lshrrev_b32 v2, 5, v0
        v_bfe_u32 v3, v0, 1, 3
        v_xor_b32 v3, v3, v2
        v_lshlrev_b32 v3, 4, v3
        v_lshl_add_u32 v3, v1, 7, v3
        s_lshl_b32 s38, s36, 13
        v_add_u32 v{VXA}, s38, v3
        v_xor_b32 v{VXA+1}, 32, v{VXA}
        v_xor_b32 v{VXA+2}, 64, v{VXA}
        v_xor_b32 v{VXA+3}, 96, v{VXA}
        v_bfe_u32 v3, v0, 2, 2            ; r
        v_bfe_u32 v4, v0, 4, 1            ; mat
        v_lshl_add_u32 v5, v2, 3, v3      ; 8h + r
        v_lshlrev_b32 v5, 8, v5
        v_lshl_add_u32 v5, v4, 14, v5
        v_lshl_or_b32 v3, v3, 1, v4       ; g = r<<1 | mat
        """)
        nxa = 4
    else:
        a(f"""
        v_and_b32 v1, 15, v0
        v_lshrrev_b32 v2, 4, v0           ; g
        v_bfe_u32 v3, v0, 1, 3
        v_xor_b32 v3, v3, v2
        v_lshlrev_b32 v3, 4, v3
        v_lshl_add_u32 v3, v1, 7, v3
        s_lshl_b32 s38, s36, 13
        v_add_u32 v{VXA}, s38, v3
        v_xor_b32 v{VXA+1}, 64, v{VXA}
        v_bfe_u32 v3, v0, 2, 2            ; r
        v_and_b32 v4, 1, v2
        v_lshl_add_u32 v5, v2, 3, v3      ; 8g + r
        v_lshlrev_b32 v5, 8, v5
        v_lshl_or_b32 v3, v3, 1, v4       ; (r<<1) | (g&1)
        """)
        nxa = 2
    a(f"""
    s_lshl_b32 s38, s37, 2
    v_xor_b32 v3, s38, v3             ; u ^ g for j = 0
    v_lshl_add_u32 v5, v3, 5, v5
    v_and_b32 v4, 3, v0
    v_lshl_add_u32 v5, v4, 3, v5
    v_add_u32 v{VWA}, {LDS_W}, v5
    v_xor_b32 v{VWA+1}, 32, v{VWA}
    v_xor_b32 v{VWA+2}, 64, v{VWA}
    v_xor_b32 v{VWA+3}, 96, v{VWA}
    """)
    for i in range(128): a(f"v_mov_b32 v{ACC+i}, 0")
    VCS, VST, VH = 112, 113, 114
    a(f"""
    s_lshl_b32 s38, s37, 9
    s_add_u32 s38, s38, {LDS_CS}
    v_lshlrev_b32 v3, {6 if shape == 32 else 4}, v2
    v_add_u32 v{VCS}, s38, v3
    s_lshl_b32 s38, s36, 10
    s_add_u32 s38, s38, {LDS_AUX}
    v_lshlrev_b32 v4, 4, v1
    v_add_u32 v{VST}, s38, v4
    s_lshl_b32 s38, s22, 1
    s_add_u32 s38, s38, s36           ; g
    s_lshl_b32 s78, s38, {14 if cfg.get("p2d") else 9}
    s_add_u32 s78, s78, {FLG_OFF}
    s_mul_i32 s38, s38, {2*88064}
    """)
    if shape == 32:
        a(f"""
        v_lshlrev_b32 v5, 4, v0
        v_add_u32 v{VH}, s38, v5
        v_add_u32 v{VH+1}, 88064, v{VH}
        """)
    else:
        a(f"""
        v_lshrrev_b32 v5, 1, v2
        v_lshlrev_b32 v5, 9, v5
        v_and_b32 v7, 1, v2
        v_lshl_add_u32 v7, v7, 3, v5      ; (g>>1)*512 + (g&1)*8
        v_lshl_add_u32 v5, v1, 4, v7
        v_add_u32 v{VH}, s38, v5
        v_add_u32 v{VH+1}, 256, v{VH}
        v_add_u32 v{VH+2}, 88064, v{VH}
        v_add_u32 v{VH+3}, {88064+256}, v{VH}
        """)
    a(f"""v_mov_b32 v118, {LDS_MODE}
    v_mov_b32 v119, 0
    v_and_b32 v5, 15, v0
    v_lshlrev_b32 v5, 6, v5
    v_bfe_u32 v7, v0, 4, 1
    v_mul_u32_u24 v7, 88064, v7
    v_add3_u32 v123, v5, v7, s38""")
    a(f"""
    s_lshl_b32 s79, s23, 3
    s_lshl_b32 s39, s37, 2
    s_add_u32 s79, s79, s39
    s_mov_b32 s56, 0
    s_mov_b32 s57, 0
    s_setprio {cfg.get('pm', 0)}
    """)
    stamp(a, cfg, 0)
    if shape == 32:
        nstep, nA, nB = 4, 4, 2
        XS, WS = 8, 16
        def xread(st, t): return f"ds_read_b128 {v(XF + (st&1)*XS + t*4, 4)}, v{VXA+st%nstep} offset:{t*4096}"
        def wread(st, p, q): return f"ds_read_b64_tr_b16 {v(WF + (st&1)*WS + p*4 + q*2, 2)}, v{VWA+p} offset:{(st%nstep)*4096 + q*1024}"
        def mfma(st, p, t):
            c = ACC + (p * 2 + t) * 16
            return f"v_mfma_f32_32x32x16_bf16 {v(c,16)}, {v(WF+(st&1)*WS+p*4,4)}, {v(XF+(st&1)*XS+t*4,4)}, {v(c,16)}"
        per_gap = [2, 2, 2, 2, 1, 1]
        waits = {0: 1, 2: 3}
    else:
        nstep, nA, nB = 2, 8, 4
        XS, WS = 16, 32
        def xread(st, t): return f"ds_read_b128 {v(XF + (st&1)*XS + t*4, 4)}, v{VXA+st%nstep} offset:{t*2048}"
        def wread(st, p, q): return f"ds_read_b64_tr_b16 {v(WF + (st&1)*WS + p*4 + q*2, 2)}, v{VWA+(p>>1)} offset:{(p&1)*16384 + (st%nstep)*8192 + q*1024}"
        def mfma(st, p, t):
            c = ACC + (p * 4 + t) * 4
            return f"v_mfma_f32_16x16x32_bf16 {v(c,4)}, {v(WF+(st&1)*WS+p*4,4)}, {v(XF+(st&1)*XS+t*4,4)}, {v(c,4)}"
        per_gap = [1] * 20
        waits = {0: 3, 3: 7}
    def readlist(st):
        r = [(xread(st, 0), ("x", st % nstep, 0)), (wread(st, 0, 0), ("w", st % nstep, 0)), (wread(st, 0, 1), ("w", st % nstep, 0))]
        r += [(xread(st, t), ("x", st % nstep, t)) for t in range(1, nB)]
        for p in range(1, nA): r += [(wread(st, p, q), ("w", st % nstep, p)) for q in range(2)]
        return r
    G = nA * nB
    salu = ["s_add_u32 s57, s57, 1", "s_cmp_eq_u32 s57, 3", "s_cselect_b32 s58, -2, 1", "s_cselect_b32 s57, 0, s57", "s_lshl_b32 s59, s58, 15", "s_lshl_b32 s58, s58, 14"]
    xup = [f"v_add_u32 v{VXA+i}, s58, v{VXA+i}" for i in range(nxa)]
    wup = [f"v_add_u32 v{VWA+i}, s59, v{VWA+i}" for i in range(4)]
    extra = {}
    if shape == 32:
        extra[(0, 6)] = salu[:3]; extra[(0, 7)] = salu[3:]
        extra[(1, 6)] = xup[:2]; extra[(1, 7)] = xup[2:3]
        extra[(2, 6)] = xup[3:] + wup[:2]; extra[(2, 7)] = wup[2:]
        extra[(3, 7)] = []
        bar_gap = 0
    else:
        for i, x_ in enumerate(salu): extra[(0, 20 + i)] = [x_]
        for i, x_ in enumerate(xup + wup): extra[(0, 26 + i)] = [x_]
        bar_gap = 0
    a.lds_q = []
    a("s_barrier")
    stamp(a, cfg, 1)
    cyc(a, cfg, 0)
    for ins, tag in readlist(0): a.lds(ins, tag)
    if len(a.lds_q) > 15: a.wait_lds([("w", 0, 1)])
    entry_q = list(a.lds_q)
    a(".p2align 3\nL_FLOOP:")
    for st in range(nstep):
        rl = readlist(st + 1); pg = list(per_gap)
        last = st == nstep - 1
        for p in range(nA):
            for t in range(nB):
                gap = p * nB + t
                if t == 0 and p in waits:
                    a.wait_lds([("w", st, pp) for pp in range(waits[p] + 1)] + [("x", st, tt) for tt in range(nB)])
                if not cfg.get('nomfma'): a(mfma(st, p, t))
                if last and gap == bar_gap:
                    a.wait_lds_all(); a("s_barrier")
                if (not last or gap > bar_gap) and pg:
                    for _ in range(pg.pop(0)):
                        ins, tag = rl.pop(0); a.lds(ins, tag)
                for x_ in extra.get((st, gap), []): a(x_)
                if last and gap == G - 2: a("s_add_u32 s56, s56, 1\ns_cmp_lt_u32 s56, 8")
        assert not rl
    if len(a.lds_q) > len(entry_q): a.wait_lds([("w", 0, 1)])
    assert a.lds_q == entry_q, (a.lds_q, entry_q)
    a("s_cbranch_scc1 L_FLOOP")
    a.lds_q = []
    stamp(a, cfg, 2)
    cyc(a, cfg, 1)
    ST, CS, T, O = (16, 32, 72, 80) if shape == 32 else (16, 48, 72, 80)
    SL = 96
    a(f"s_setprio {cfg.get('pe', 0)}\ns_waitcnt lgkmcnt(0)")
    nst = 2 if shape == 32 else 4
    a.lds("ds_read_b96 v[120:122], v118", "st")
    for t in range(nst): a.lds(f"ds_read_b128 {v(SL+t*4,4)}, v{VST} offset:{t*(512 if shape == 32 else 256)}", "st")
    alt = []
    def store2(ins):
        k = len(alt)
        a(f"s_cbranch_vccz L_SA{k}\n{ins}\nL_SB{k}:")
        alt.append(ins)
    def flag(j):
        a(f"s_add_u32 s40, s77, {(128 if cfg.get('p2d') else 4)*j}\ns_mov_b64 exec, 1")
        store2("buffer_store_dword v121, v119, s[32:35], s40 offen")
        a("s_mov_b64 exec, -1")
    def rd_cs(j):
        if shape == 32:
            for q in range(4): a.lds(f"ds_read_b128 {v(CS+(j&1)*16+q*4,4)}, v{VCS} offset:{j*128+q*16}", ("cs", j))
        else:
            for m in range(2): a.lds(f"ds_read_b128 {v(CS+(j&1)*8+m*4,4)}, v{VCS} offset:{j*128+m*64}", ("cs", j))
    rd_cs(0)
    a(f"s_lshl_b32 s77, s79, {7 if cfg.get('p2d') else 2}\ns_add_u32 s77, s77, s78")
    a.wait_lds(["st"])
    for t in range(nst):
        for i in range(8): a(f"v_mov_b32 v{ST+t*8+i}, v{SL+t*4+(i>>1)}")
    a("v_cmp_ne_u32 vcc, 0, v120\nv_readfirstlane_b32 s92, v121\nv_readfirstlane_b32 s93, v122")
    if cfg.get("prof"): a("v_readfirstlane_b32 s66, v120")
    stamp(a, cfg, 3)
    cyc(a, cfg, 0, 8)
    hm = cfg.get("hm", 0)
    grp = cfg.get("grp", 1)
    st_ = (lambda x_: a(x_ + " sc1")) if hm == 1 else store2
    pend = []
    for j in range(4):
        if j + 1 < 4: rd_cs(j + 1)
        a.wait_lds([("cs", j)])
        if j == 2: a(f"s_cmp_ge_u32 s79, 84\ns_cbranch_scc1 L_MTAIL")
        a(f"s_add_u32 s39, s79, {j}\ns_lshl_b32 s39, s39, 10")
        OO = O + (j & 1) * 8
        for hf in range(2):
            if shape == 32:
                c = ACC + (j * 2 + hf) * 16
                geglu(a, [(c + 2*p, c + 8 + 2*p, CS + (j&1)*16 + 2*p, CS + (j&1)*16 + 8 + 2*p, ST + hf*8) for p in range(4)], T, OO + hf*4)
            else:
                items = []
                for t in (2 * hf, 2 * hf + 1):
                    cg_, cu_ = ACC + ((2*j) * 4 + t) * 4, ACC + ((2*j+1) * 4 + t) * 4
                    for p in range(2): items.append((cg_ + 2*p, cu_ + 2*p, CS + 8*(j&1) + 2*p, CS + 8*(j&1) + 4 + 2*p, ST + t*8))
                geglu(a, items, T, OO + hf*4)
        if len(pend) >= grp:
            a("s_waitcnt vmcnt(0)")
            for p_ in pend: flag(p_)
            pend = []
        if j == 1: tail_pend = pend + [1]
        for hf in range(2):
            if shape == 32: st_(f"buffer_store_dwordx4 {v(OO+hf*4,4)}, v{VH+hf}, s[32:35], s39 offen")
            else:
                st_(f"buffer_store_dwordx2 {v(OO+hf*4,2)}, v{VH+2*hf}, s[32:35], s39 offen")
                st_(f"buffer_store_dwordx2 {v(OO+hf*4+2,2)}, v{VH+2*hf+1}, s[32:35], s39 offen")
        if cfg.get("rb"): a("buffer_load_dword v124, v123, s[32:35], s39 offen sc1")
        pend.append(j)
    a.lds_q = []
    cyc(a, cfg, 1, 8)
    stamp(a, cfg, 4)
    a("s_waitcnt vmcnt(0)")
    for p_ in pend: flag(p_)
    a("L_MDONE:")
    stamp(a, cfg, 5)
    final(a, cfg)
    a("L_MTAIL:\ns_waitcnt vmcnt(0)")
    for p_ in tail_pend: flag(p_)
    stamp(a, cfg, 4)
    a("s_branch L_MDONE")
    for k, ins in enumerate(alt): a(f"L_SA{k}:\n{ins} sc1\ns_branch L_SB{k}")

def mma_dft(a, cfg):
    ACC, OUT, FF, BF = 128, 192, 64, 96
    VXA, VWA = 8, 12
    XF, WF = 16, 32
    a(f"""
    s_lshr_b32 s38, s23, 1
    s_and_b32 s39, s23, 1
    s_lshl_b32 s39, s39, 5
    s_add_u32 s38, s38, s39
    s_lshl_b32 s39, s22, 1
    s_add_u32 s38, s38, s39
    s_lshl_b32 s39, s20, 9
    s_add_u32 s38, s38, s39
    s_lshl_b32 s38, s38, 10
    v_lshrrev_b32 v2, 3, v0
    v_and_b32 v3, 7, v0
    v_lshlrev_b32 v4, 16, v2
    v_lshl_add_u32 v4, v3, 4, v4
    v_mov_b32 v5, 0
    """)
    for c in range(8): a(f"buffer_load_dwordx4 {v(16+4*c,4)}, v4, s[24:27], s38 offen offset:{c*128}")
    a("buffer_load_dwordx2 v[6:7], v5, s[88:91], 0 offen sc1")
    a(f"""
    s_getpc_b64 s[44:45]
L_PC:
    s_add_u32 s44, s44, L_CSTAB-L_PC
    s_addc_u32 s45, s45, 0
    s_lshl_b32 s39, s23, 6
    s_lshl_b32 s40, s37, 5
    s_add_u32 s79, s39, s40           ; e base
    v_and_b32 v1, 31, v0
    v_add_u32 v60, s79, v1
    v_lshlrev_b32 v60, 2, v60
    global_load_dword v62, v60, s[44:45]
    global_load_dword v63, v60, s[44:45] offset:1024
    """)
    a(f"""
    v_lshrrev_b32 v61, 5, v0          ; h
    s_lshl_b32 s78, s22, 1
    s_add_u32 s78, s78, s36           ; s0
    v_cvt_f32_u32 v56, v1
    v_mul_f32 v56, {fhex(1/2048)}, v56
    v_lshlrev_b32 v57, 8, v61
    v_add_u32 v57, s78, v57
    v_cvt_f32_u32 v57, v57
    v_mul_f32 v57, v57, v56
    v_cmp_eq_u32 vcc, 0, v1
    """)
    def fgen(q, d):
        for e in range(2):
            i = 2 * d + e
            k = 32 * (q >> 1) + 64 * (16 * (q & 1) + 8 * (i >> 2) + (i & 3))
            a(f"v_fmamk_f32 v{48+e}, v56, {fhex(float(k))}, v57")
        a(f"""v_cos_f32 v50, v48
        v_cos_f32 v51, v49
        v_sin_f32 v52, v48
        v_sin_f32 v53, v49
        v_cvt_pk_bf16_f32 v{FF+q*4+d}, v50, v51
        v_mov_b32 v54, {'0x3f803f80' if q < 2 else '0xbf80bf80'}
        v_cvt_pk_bf16_f32 v55, v52, v53
        v_cndmask_b32 v{FF+16+q*4+d}, v55, v54, vcc""")
    for q in range(4):
        for d in range(4): fgen(q, d)
    for i in range(64): a(f"v_mov_b32 v{ACC+i}, 0")
    a("s_mov_b32 s48, 0xffff0000\nv_mov_b32 v48, 0\nv_mov_b32 v49, 0\nv_mov_b32 v50, 0\nv_mov_b32 v51, 0")
    for c in range(8):
        a(f"s_waitcnt vmcnt({10 - c})")
        for i in range(4):
            d = 16 + 4 * c + i
            a(f"""v_and_b32 v52, s48, v{d}
            v_lshlrev_b32 v53, 16, v{d}
            v_add_f32 v48, v48, v52
            v_add_f32 v49, v49, v53
            v_fmac_f32 v50, v52, v52
            v_fmac_f32 v51, v53, v53""")
    a(f"""
    v_add_f32 v48, v48, v49
    v_add_f32 v50, v50, v51
    s_nop 1
    v_add_f32_dpp v48, v48, v48 quad_perm:[1,0,3,2] row_mask:0xf bank_mask:0xf
    v_add_f32_dpp v50, v50, v50 quad_perm:[1,0,3,2] row_mask:0xf bank_mask:0xf
    s_nop 1
    v_add_f32_dpp v48, v48, v48 quad_perm:[2,3,0,1] row_mask:0xf bank_mask:0xf
    v_add_f32_dpp v50, v50, v50 quad_perm:[2,3,0,1] row_mask:0xf bank_mask:0xf
    s_nop 1
    v_add_f32_dpp v48, v48, v48 row_half_mirror row_mask:0xf bank_mask:0xf
    v_add_f32_dpp v50, v50, v50 row_half_mirror row_mask:0xf bank_mask:0xf
    v_mul_f32 v48, {fhex(1/512)}, v48          ; mean
    v_mul_f32 v50, {fhex(1/512)}, v50
    v_fma_f32 v50, -v48, v48, v50              ; var
    v_max_f32 v50, 0, v50
    v_cvt_pk_bf16_f32 v52, -v48, v50
    v_lshlrev_b32 v16, 16, v52                 ; -bf16(mean)
    v_and_b32 v50, s48, v52                    ; bf16(var)
    v_add_f32 v50, {fhex(1e-5)}, v50
    v_cvt_pk_bf16_f32 v50, v50, v50
    v_and_b32 v50, s48, v50
    v_sqrt_f32 v50, v50
    s_lshl_b32 s38, s22, 7
    s_lshl_b32 s39, s23, 5
    s_add_u32 s38, s38, s39
    s_lshl_b32 s39, s20, 3
    s_add_u32 s38, s38, s39
    s_lshl_b32 s38, s38, 4
    s_add_u32 s38, s38, {ST_OFF}
    v_cvt_pk_bf16_f32 v50, v50, v50
    v_and_b32 v17, s48, v50                    ; sd
    v_lshlrev_b32 v4, 4, v2
    s_mov_b32 s56, 0
    s_waitcnt vmcnt(0)
L_DN:
    v_readfirstlane_b32 s92, v6
    s_add_u32 s56, s56, 1
    s_cmp_ge_u32 s56, {SPIN_MAX}
    s_cbranch_scc1 L_DN_OK
    s_cmp_lg_u32 s92, 0
    s_cbranch_scc1 L_DN_OK
    buffer_load_dwordx2 v[6:7], v5, s[88:91], 0 offen sc1
    s_waitcnt vmcnt(0)
    s_branch L_DN
L_DN_OK:
    v_mov_b32 v18, v6
    v_mov_b32 v19, v7
    s_mov_b32 exec_lo, 0x01010101
    s_mov_b32 exec_hi, 0x01010101
    buffer_store_dwordx4 v[16:19], v4, s[32:35], s38 offen sc1
    s_mov_b64 exec, -1
    """)
    stamp(a, cfg, 6)
    a("v_readfirstlane_b32 s93, v7")
    a(f"""
    v_bfe_u32 v3, v0, 1, 3
    v_xor_b32 v3, v3, v61
    v_lshlrev_b32 v3, 4, v3
    v_lshl_add_u32 v3, v1, 7, v3
    s_lshl_b32 s38, s36, 13
    v_add_u32 v{VXA}, s38, v3
    s_lshl_b32 s38, s37, 12
    s_add_u32 s38, s38, {LDS_W}
    v_add_u32 v{VWA}, s38, v3
    """)
    for i in range(1, 4): a(f"v_xor_b32 v{VXA+i}, {32*i}, v{VXA}\nv_xor_b32 v{VWA+i}, {32*i}, v{VWA}")
    a("s_mov_b32 s56, 0\ns_mov_b32 s57, 0")
    stamp(a, cfg, 0)
    def FS(st): return (16 if (st & 3) < 2 else 96) + (st & 1) * 16
    def rdl(st):
        s_ = st % 4; b = FS(st)
        return [(f"ds_read_b128 {v(b,4)}, v{VXA+s_}", ("x", s_, 0)), (f"ds_read_b128 {v(b+8,4)}, v{VWA+s_}", ("w", s_, 0)),
                (f"ds_read_b128 {v(b+12,4)}, v{VWA+s_} offset:8192", ("w", s_, 1)), (f"ds_read_b128 {v(b+4,4)}, v{VXA+s_} offset:4096", ("x", s_, 1))]
    a.lds_q = []
    a("s_barrier")
    stamp(a, cfg, 1)
    for st in (0, 1):
        for ins, tag in rdl(st): a.lds(ins, tag)
    entry_q = list(a.lds_q)
    a(".p2align 3\nL_DLOOP:")
    salu = ["s_add_u32 s57, s57, 1\ns_cmp_eq_u32 s57, 3\ns_cselect_b32 s58, -2, 1", "s_cselect_b32 s57, 0, s57\ns_lshl_b32 s58, s58, 14"]
    for st in range(4):
        rl = rdl(st + 2); b = FS(st)
        for n, (rt, cs) in enumerate([(0, 0), (0, 1), (1, 0), (1, 1)]):
            if n == 0: a.wait_lds([("x", st, 0), ("x", st, 1), ("w", st, 0), ("w", st, 1)])
            c = ACC + (rt * 2 + cs) * 16
            if not cfg.get('nomfma'): a(f"v_mfma_f32_32x32x16_bf16 {v(c,16)}, {v(b+rt*4,4)}, {v(b+8+cs*4,4)}, {v(c,16)}")
            if st == 2 and n == 0:
                a.wait_lds_all(); a("s_barrier")
            if st < 2 or st == 3 or n > 0:
                k = 1 if not (st == 2 and n == 1) else 2
                for _ in range(k):
                    ins, tag = rl.pop(0); a.lds(ins, tag)
            if st == 0 and n < 2: a(salu[n])
            if st == 0 and n >= 2: a(f"v_add_u32 v{VXA+n-2}, s58, v{VXA+n-2}\nv_add_u32 v{VWA+n-2}, s58, v{VWA+n-2}")
            if st == 2 and n >= 2: a(f"v_add_u32 v{VXA+n}, s58, v{VXA+n}\nv_add_u32 v{VWA+n}, s58, v{VWA+n}")
            if st == 3 and n == 2: a("s_add_u32 s56, s56, 1\ns_cmp_lt_u32 s56, 8")
        assert not rl
    assert a.lds_q == entry_q, (a.lds_q, entry_q)
    a("s_cbranch_scc1 L_DLOOP")
    a.lds_q = []
    stamp(a, cfg, 2)
    a(f"""
    s_waitcnt lgkmcnt(0)
    s_lshl_b32 s39, s36, 8
    s_add_u32 s39, s39, {LDS_AUX}
    v_lshlrev_b32 v3, 4, v61
    v_add_u32 v3, s39, v3
    v_mov_b32 v4, v62
    v_mov_b32 v5, v62
    v_mov_b32 v6, v63
    v_mov_b32 v7, v63
    v_cmp_eq_u32 vcc, 0, v1
    """)
    for rt in range(2):
        for Q in range(4): a(f"ds_read_b128 {v(16+Q*4,4)}, v3 offset:{rt*128 + Q*32}")
        for Q in range(4): a(f"ds_read_b128 {v(32+Q*4,4)}, v3 offset:{512 + rt*128 + Q*32}")
        a("s_waitcnt lgkmcnt(0)")
        for cs in range(2):
            c = ACC + (rt * 2 + cs) * 16
            for p in range(8): a(f"v_pk_fma_f32 {v(c+2*p,2)}, {v(16+2*p,2)}, {v(4+2*cs,2)}, {v(c+2*p,2)}")
            for p in range(8): a(f"v_pk_mul_f32 {v(c+2*p,2)}, {v(c+2*p,2)}, {v(32+2*p,2)}")
            for p in range(8): a(f"v_cvt_pk_bf16_f32 v{BF + cs*16 + rt*8 + p}, v{c+2*p}, v{c+2*p+1}")
    a("s_nop 1")
    for q in range(4):
        for CN in range(2):
            for ab in range(2):
                c = OUT + (CN * 2 + ab) * 16
                a(f"v_mfma_f32_32x32x16_bf16 {v(c,16)}, {v(FF+CN*16+q*4,4)}, {v(BF+ab*16+q*4,4)}, {'0' if q == 0 else v(c,16)}")
    P, R, T, Q = OUT, OUT + 16, OUT + 32, OUT + 48
    a(f"""
    v_add_u32 v8, s79, v1             ; e
    v_sub_u32 v9, 512, v8
    v_and_b32 v9, 511, v9
    v_cmp_eq_u32 vcc, 0, v8
    v_mov_b32 v10, 256
    v_mov_b32 v11, -1
    v_and_b32 v12, 0xfffffffc, v8
    v_cndmask_b32 v8, v8, v10, vcc
    v_cndmask_b32_e64 v11, v11, 0, vcc
    v_and_b32 v10, 3, v0
    v_lshl_add_u32 v10, v61, 2, v10
    v_mul_u32_u24 v10, {ZROW}, v10
    v_sub_u32 v13, 509, v12
    v_lshl_add_u32 v12, v12, 2, v10   ; Z1 offset
    v_lshl_add_u32 v13, v13, 2, v10   ; Z2 offset
    v_lshlrev_b32 v8, 2, v8
    v_lshlrev_b32 v9, 2, v9
    v_cvt_f32_u32 v10, v61
    v_mul_u32_u24 v3, {4*ZROW}, v61
    v_add_u32 v3, 1024, v3
    s_mul_i32 s38, s78, {33*ZROW}
    s_add_u32 s38, s38, {Z_OFF}
    s_add_u32 s39, s38, {32*ZROW}
    s_mov_b32 s44, 0x55555555
    s_mov_b32 s45, s44
    s_mov_b32 s46, 0x33333333
    s_mov_b32 s47, s46
    v_cvt_pk_bf16_f32 v14, v{T}, v{Q}
    v_cvt_pk_bf16_f32 v15, v{T}, -v{Q}
    v_mul_f32 v{T}, v{T}, v10
    v_mul_f32 v{Q}, v{Q}, v10
    v_and_b32 v15, v15, v11
    s_mov_b32 exec_hi, 0
    buffer_store_dword v14, v8, s[32:35], s39 offen sc1
    buffer_store_dword v15, v9, s[32:35], s39 offen sc1
    s_mov_b64 exec, -1
    """)
    O1, O2, TT = 16, 32, 128
    for p in range(8):
        r0 = 2 * p
        a(f"""v_pk_add_f32 v[48:49], {v(P+r0,2)}, {v(Q+r0,2)}
        v_pk_add_f32 v[50:51], {v(R+r0,2)}, {v(T+r0,2)} neg_lo:[0,1] neg_hi:[0,1]
        v_pk_add_f32 v[52:53], {v(P+r0,2)}, {v(Q+r0,2)} neg_lo:[0,1] neg_hi:[0,1]
        v_pk_add_f32 v[54:55], {v(R+r0,2)}, {v(T+r0,2)} neg_lo:[1,1] neg_hi:[1,1]
        v_cvt_pk_bf16_f32 v{O1+r0}, v48, v50
        v_cvt_pk_bf16_f32 v{O1+r0+1}, v49, v51
        v_cvt_pk_bf16_f32 v{O2+r0}, v52, v54
        v_cvt_pk_bf16_f32 v{O2+r0+1}, v53, v55""")
    a("s_cmp_eq_u32 s79, 0\ns_cbranch_scc0 L_NO256\ns_mov_b32 exec_lo, 1\ns_mov_b32 exec_hi, 1")
    for r in range(16):
        a(f"s_add_u32 s39, s38, {(8*(r>>2) + (r&3))*ZROW}\nbuffer_store_dword v{O1+r}, v3, s[32:35], s39 offen sc1")
    a("s_mov_b64 exec, -1\ns_nop 1")
    for r in range(16): a(f"v_and_b32 v{O1+r}, v{O1+r}, v11")
    a("L_NO256:")
    def dpp(perm): return f"quad_perm:{perm} row_mask:0xf bank_mask:0xf"
    a("s_mov_b64 vcc, s[44:45]\ns_nop 0")
    for r in range(0, 32, 2): a(f"v_cndmask_b32_dpp v{TT+r}, v{O1+r+1}, v{O1+r}, vcc {dpp('[1,0,3,2]')}")
    a("s_not_b64 vcc, vcc")
    for r in range(0, 32, 2): a(f"v_cndmask_b32_dpp v{TT+r+1}, v{O1+r}, v{O1+r+1}, vcc {dpp('[1,0,3,2]')}")
    def dst(b, j): return O1 + b * 4 + (j if b < 4 else 3 - j)
    a("s_mov_b64 vcc, s[46:47]")
    for b in range(8):
        for j in range(2): a(f"v_cndmask_b32_dpp v{dst(b,j)}, v{TT+b*4+j+2}, v{TT+b*4+j}, vcc {dpp('[2,3,0,1]')}")
    a("s_not_b64 vcc, vcc")
    for b in range(8):
        for j in range(2): a(f"v_cndmask_b32_dpp v{dst(b,j+2)}, v{TT+b*4+j}, v{TT+b*4+j+2}, vcc {dpp('[2,3,0,1]')}")
    for Qd in range(4):
        a(f"""s_add_u32 s39, s38, {Qd*8*ZROW}
        buffer_store_dwordx4 {v(O1+Qd*4,4)}, v12, s[32:35], s39 offen sc1
        buffer_store_dwordx4 {v(O2+Qd*4,4)}, v13, s[32:35], s39 offen sc1""")
    stamp(a, cfg, 4)
    a(f"""
    v_mov_b32 v48, {LDS_AUX + LDS_CNT_OFF}
    v_mov_b32 v49, 1
    s_lshl_b32 s53, s22, 2
    s_add_u32 s53, s53, s23
    s_lshl_b32 s53, s53, 7
    s_add_u32 s53, s53, {FL_OFF}
    s_mov_b64 exec, 1
    s_waitcnt vmcnt(0)
    ds_add_rtn_u32 v18, v48, v49
    v_mov_b32 v20, s92
    v_mov_b32 v21, s93
    v_mov_b32 v22, 0
    s_waitcnt lgkmcnt(0)
    v_readfirstlane_b32 s54, v18
    s_nop 3
    s_cmp_eq_u32 s54, 3
    s_cselect_b32 s53, s53, {OOB}
    buffer_store_dwordx2 v[20:21], v22, s[32:35], s53 offen sc1
    s_mov_b64 exec, -1
    """)
    stamp(a, cfg, 5)
    a("s_branch L_FIN")

def gen(cfg):
    a = Asm()
    entry(a, cfg)
    helper(a, cfg)
    colsum(a, cfg)
    a("L_MMA:\ns_lshr_b32 s36, s20, 1\ns_and_b32 s37, s20, 1\ns_waitcnt lgkmcnt(0)")
    common_srds(a)
    a("s_cmp_eq_u32 s21, 2\ns_cbranch_scc0 L_MMA2")
    get_nonce(a, "L_MI_N", 4)
    a("s_branch L_FIN\nL_MMA2:")
    a("s_cmp_eq_u32 s21, 0\ns_cbranch_scc0 L_MMA_DFT")
    mma_ffn(a, cfg)
    a("L_MMA_DFT:")
    mma_dft(a, cfg)
    a("L_END:\ns_endpgm")
    cs = np.load("cs_table.npy")
    tab = ".p2align 8\n.type L_CSTAB,@object\nL_CSTAB:\n" + "\n".join(".long " + ", ".join("0x%08x" % x for x in cs[i:i+8].view(np.uint32)) for i in range(0, 512, 8)) + "\n.size L_CSTAB, 2048\n"
    HEAD = open("recurrent_scan__spectral_fnet__geglu_ffn__prompt.s.ref").read().split("; Override launch")[0]
    s = HEAD + f"; @launch grid=(256,1,1) block=(512,1,1) lds={LDS_TOTAL}\n" + '.amdgcn_target "amdgcn-amd-amdhsa--gfx950"\n'
    return s + kernel(KN, a.text() + tab, 256)

if __name__ == "__main__":
    import sys
    cfg = {"shape": 32}
    for kv in sys.argv[2:]:
        k, val = kv.split("="); cfg[k] = int(val, 0)
    open(sys.argv[1], "w").write(gen(cfg))
```

```python
from dsl import *
import math, numpy as np
KN = "recurrent_scan__spectral_fnet__geglu_ffn__prompt_kernel"
Z_OFF, ST_OFF, FL_OFF, CS_OFF, XID_OFF, FLG_OFF, WS_BYTES = 0x600000, 0x900000, 0x908000, 0x90A000, 0x910000, 0x918000, 0xA00000
ZROW = 2176
LDS_CNT_OFF = 3072
LDS_MODE = 159744 + 3088
OOB = 0x7F000000
LDS_W = 49152
LDS_E = 147456
LDS_AUX = 159744
LDS_CS = LDS_AUX + 2048
LDS_TOTAL = 163840
GC = -2.0 * math.sqrt(2.0 / math.pi) * math.log2(math.e)
LOG2E = math.log2(math.e)
SPIN_MAX = 1 << 15
PROF_BASE = 0x1000000

def SR(idx): return {10: 6, 11: 7}.get(idx, 60 + idx)
def stamp(a, cfg, idx):
    if cfg.get("prof"):
        a(f"s_memrealtime s[40:41]\ns_waitcnt lgkmcnt(0)\ns_mov_b32 s{SR(idx)}, s40")
def cyc(a, cfg, which, idx=7):
    if cfg.get("prof"):
        if which == 0: a(f"s_memtime s[40:41]\ns_waitcnt lgkmcnt(0)\ns_mov_b32 s{60+idx}, s40")
        else: a(f"s_memtime s[40:41]\ns_waitcnt lgkmcnt(0)\ns_sub_u32 s{60+idx}, s40, s{60+idx}")
def prof_flush(a, cfg):
    if not cfg.get("prof"): return
    a(f"s_lshl_b32 s42, s2, 3\ns_add_u32 s42, s42, s20\ns_lshl_b32 s42, s42, 6\ns_add_u32 s42, s42, {PROF_BASE}")
    a("s_mov_b32 s44, s16\ns_mov_b32 s45, s17\ns_mov_b32 s46, 0x10000000\ns_mov_b32 s47, 0x00020000")
    a("s_mov_b64 exec, 1\nv_mov_b32 v1, 0")
    for i in range(12):
        a(f"v_mov_b32 v2, s{SR(i)}\nbuffer_store_dword v2, v1, s[44:47], s42 offen offset:{4*i} sc1")
    a("v_mov_b32 v2, s57\nbuffer_store_dword v2, v1, s[44:47], s42 offen offset:48")
    a("v_mov_b32 v2, s101\nbuffer_store_dword v2, v1, s[44:47], s42 offen offset:52")
    a("s_waitcnt vmcnt(0)\ns_mov_b64 exec, -1")

def entry(a, cfg):
    a("""
    s_cmp_ge_u32 s2, 256
    s_cbranch_scc1 L_END
    s_load_dwordx2 s[4:5], s[0:1], 0
    s_load_dwordx4 s[8:11], s[0:1], 24
    s_load_dwordx4 s[12:15], s[0:1], 48
    s_load_dwordx2 s[18:19], s[0:1], 64
    s_load_dwordx2 s[82:83], s[0:1], 72
    s_load_dwordx2 s[80:81], s[0:1], 80
    s_load_dwordx2 s[16:17], s[0:1], 88
    v_lshrrev_b32 v1, 6, v0
    v_and_b32 v0, 63, v0
    s_and_b32 s3, s2, 7
    v_readfirstlane_b32 s20, v1
    s_lshr_b32 s6, s2, 3          ; loc
    """)
    if cfg.get("p2d"):
        a("""
        s_lshr_b32 s7, s3, 1          ; a
        s_and_b32 s3, s3, 1           ; b
        s_lshl_b32 s36, s7, 2         ; 4a
        s_sub_u32 s37, 6, s3          ; nc
        s_lshl_b32 s38, s37, 2        ; nffn
        s_mul_i32 s39, s3, 9
        s_add_u32 s39, s39, 43
        s_mul_i32 s39, s39, s6
        s_lshr_b32 s39, s39, 8        ; q
        s_add_u32 s22, s36, s39       ; rho
        s_mul_i32 s39, s39, s37
        s_sub_u32 s23, s6, s39
        s_mul_i32 s39, s3, 6
        s_add_u32 s23, s23, s39       ; cg
        s_mov_b32 s21, 0
        s_cmp_lt_u32 s6, s38
        s_cbranch_scc1 L_ROLED
        s_sub_u32 s6, s6, s38
        s_and_b32 s39, s6, 3
        s_add_u32 s22, s36, s39       ; w
        s_lshr_b32 s39, s6, 2
        s_lshl_b32 s23, s3, 1
        s_add_u32 s23, s23, s39       ; eq
        s_mov_b32 s21, 1
        s_cmp_lt_u32 s6, 8
        s_cbranch_scc1 L_ROLED
        s_sub_u32 s6, s6, 8
        s_add_u32 s23, s36, s6
        s_mov_b32 s21, 2
        s_cmp_lt_u32 s23, 11
        s_cbranch_scc1 L_CS
        s_branch L_ROLED
        """)
    a("""
    s_lshl_b32 s36, s3, 1
    s_cmp_ge_u32 s6, 11
    s_cselect_b32 s37, 1, 0
    s_add_u32 s22, s36, s37       ; rho
    s_mul_i32 s37, s37, 11
    s_sub_u32 s23, s6, s37        ; cg
    s_mov_b32 s21, 0
    s_cmp_lt_u32 s6, 22
    s_cbranch_scc1 L_ROLED
    s_sub_u32 s6, s6, 22
    s_lshr_b32 s37, s6, 2
    s_add_u32 s22, s36, s37       ; w
    s_and_b32 s23, s6, 3          ; eq
    s_mov_b32 s21, 1
    s_cmp_lt_u32 s6, 8
    s_cbranch_scc1 L_ROLED
    s_sub_u32 s6, s6, 8
    s_add_u32 s23, s36, s6
    s_mov_b32 s21, 2
    s_cmp_lt_u32 s23, 11
    s_cbranch_scc1 L_CS
L_ROLED:
    s_cmp_lt_u32 s20, 4
    s_cbranch_scc1 L_MMA
    """)

def get_nonce(a, lab, vt):
    a(f"""
    v_mov_b32 v{vt+2}, 0
    s_mov_b32 s56, 0
{lab}:
    buffer_load_dwordx2 {v(vt,2)}, v{vt+2}, s[88:91], 0 offen sc1
    s_add_u32 s56, s56, 1
    s_waitcnt vmcnt(0)
    v_readfirstlane_b32 s92, v{vt}
    v_readfirstlane_b32 s93, v{vt+1}
    s_cmp_ge_u32 s56, {SPIN_MAX}
    s_cbranch_scc1 {lab}_OK
    s_cmp_eq_u32 s92, 0
    s_cbranch_scc1 {lab}
{lab}_OK:
    """)

def xid_publish(a, vt):
    a(f"""
    s_getreg_b32 s100, hwreg(HW_REG_XCC_ID, 0, 4)
    s_lshl_b32 s53, s2, 7
    s_add_u32 s53, s53, {XID_OFF}
    s_cmp_eq_u32 s36, 0
    s_cselect_b32 s53, s53, {OOB}
    v_mov_b32 v{vt}, s100
    v_mov_b32 v{vt+1}, s92
    v_mov_b32 v{vt+2}, 0
    s_mov_b64 exec, 1
    """)
    a.vm(f"buffer_store_dwordx2 {v(vt,2)}, v{vt+2}, s[32:35], s53 offen sc1", "xid")
    a("s_mov_b64 exec, -1")

def colsum(a, cfg):
    a(f"""
L_CS:
    v_lshrrev_b32 v2, 4, v0
    v_and_b32 v3, 15, v0
    v_mul_u32_u24 v2, 2752, v2
    v_lshl_add_u32 v2, v3, 4, v2
    s_lshl_b32 s38, s23, 8
    s_lshr_b32 s39, s20, 1
    s_mul_i32 s39, s39, {128*2752}
    s_add_u32 s38, s38, s39
    s_and_b32 s39, s20, 1
    s_cmp_eq_u32 s39, 0
    s_waitcnt lgkmcnt(0)
    s_cselect_b32 s28, s12, s14
    s_cselect_b32 s29, s13, s15
    s_mov_b32 s30, 1409024
    s_mov_b32 s31, 0x00020000
    """)
    common_srds(a)
    a("s_sub_u32 s36, s20, 4\nv_mov_b32 v146, 0\nbuffer_load_dwordx2 v[144:145], v146, s[88:91], 0 offen sc1")
    for i in range(32):
        a(f"buffer_load_dwordx4 {v(16+4*i,4)}, v2, s[28:31], s38 offen\ns_add_u32 s38, s38, {4*2752}")
    a("s_mov_b32 s48, 0xffff0000")
    for i in range(8): a(f"v_mov_b32 v{8+i}, 0")
    for i in range(32):
        if i % 4 == 0: a(f"s_waitcnt vmcnt({28 - i})")
        if i == 0:
            a(f"""
            v_readfirstlane_b32 s92, v144
            v_readfirstlane_b32 s93, v145
            s_nop 1
            s_cmp_lg_u32 s92, 0
            s_cbranch_scc1 L_CS_N1
            """)
            get_nonce(a, "L_CS_N0", 144)
            a("L_CS_N1:")
            xid_publish(a, 144)
        for d in range(4):
            r = 16 + 4 * i + d
            a(f"v_lshlrev_b32 v4, 16, v{r}\nv_and_b32 v5, s48, v{r}\nv_add_f32 v{8+2*d}, v{8+2*d}, v4\nv_add_f32 v{9+2*d}, v{9+2*d}, v5")
    a(f"""
    s_lshl_b32 s38, s20, 11
    v_lshlrev_b32 v2, 5, v0
    v_add_u32 v2, s38, v2
    ds_write_b128 v2, v[8:11]
    ds_write_b128 v2, v[12:15] offset:16
    s_waitcnt lgkmcnt(0)
    s_barrier
    s_cmp_lt_u32 s20, 4
    s_cbranch_scc0 L_CS_H
    s_lshr_b32 s38, s20, 1
    s_lshl_b32 s38, s38, 11
    s_and_b32 s39, s20, 1
    s_lshl_b32 s39, s39, 8
    s_add_u32 s38, s38, s39
    v_lshlrev_b32 v2, 2, v0
    v_add_u32 v2, s38, v2
    """)
    for kq in range(4):
        for rg in range(4): a(f"ds_read_b32 v{16+kq*4+rg}, v2 offset:{kq*4096 + rg*512}")
        if kq == 1: a("s_waitcnt lgkmcnt(0)")
    a("s_waitcnt lgkmcnt(0)\ns_barrier")
    for i in range(1, 16): a(f"v_add_f32 v16, v16, v{16+i}")
    a(f"""
    v_mov_b32 v17, s92
    s_lshl_b32 s38, s23, 11
    s_lshl_b32 s39, s20, 9
    s_add_u32 s38, s38, s39
    s_add_u32 s38, s38, {CS_OFF}
    v_lshlrev_b32 v2, 3, v0
    buffer_store_dwordx2 v[16:17], v2, s[32:35], s38 offen sc1
    """)
    stamp(a, cfg, 5)
    a("""
    s_branch L_FIN
L_CS_H:
    s_barrier
    s_sub_u32 s36, s20, 4
    s_branch L_HI
    """)

def common_srds(a):
    a(f"""
    s_mov_b32 s24, s4
    s_mov_b32 s25, s5
    s_mov_b32 s26, 2097152
    s_mov_b32 s27, 0x00020000
    s_mov_b32 s32, s16
    s_mov_b32 s33, s17
    s_mov_b32 s34, {WS_BYTES}
    s_mov_b32 s35, 0x00020000
    s_mov_b32 s88, s80
    s_mov_b32 s89, s81
    s_mov_b32 s90, 256
    s_mov_b32 s91, 0x00020000
    """)

ACC2, Y2, AS2, AF2, XR2, HF2, GF2, ZF2 = 192, 176, 152, 136, 128, 16, 112, 152
HR2 = 12
VH2, VWD2, VO2 = 2, 4, 5
VT2 = 8
SLOT = {"E": (3, 0, LDS_E, 2048)}
for sl in range(3):
    for i in range(2): SLOT[f"X{sl}{i}"] = (0, sl * 16384 + i * 2048, sl * 16384 + i * 2048, 4096)
    for i in range(4):
        if sl < 2: SLOT[f"W{sl}{i}"] = (1, sl * 32768 + i * 2048, LDS_W + sl * 32768 + i * 2048, 8192)
        else: SLOT[f"W{sl}{i}"] = (2, i * 2048, LDS_W + 65536 + i * 2048, 8192)
POS_SLOT = ["W20", "W21", "W22", "E", "X20", "X21", "W23", "X00", "X01", "W00", "W01", "W20", "W21", "W22", "W02", "W03", "X10", "X11", "W10", "W11", "W12", "W13"]
LOC_E = [0, 4, 8, 12, 16, 20, 1, 5, 9, 13, 17, 21, 2, 6, 10, 14, 18, 3, 7, 11, 15, 19]
LOC_O = [2, 6, 10, 14, 18, 3, 7, 11, 15, 19, 0, 4, 8, 12, 16, 20, 1, 5, 9, 13, 17, 21]
DCL = [{2: 0, 6: 1, -17: 2}[o - e] for e, o in zip(LOC_E, LOC_O)]
MULT_S = {2048: "s70", 4096: "s71", 8192: "s72"}
def wd_dma(a, pos):
    kind, imm, m0c, mult = SLOT[POS_SLOT[pos]]
    for i in range(2):
        a(f"s_add_u32 m0, {MULT_S[mult]}, {m0c + i*1024}\ns_add_u32 s53, s{94+DCL[pos]}, {LOC_E[pos]*16384 + i*8192}")
        a.vm(f"buffer_load_dwordx4 v{VWD2}, s[84:87], s53 offen lds", ("wd", pos))
def tr2(a, cfg, pos, dst):
    kind, imm, m0c, mult = SLOT[POS_SLOT[pos]]
    qoff = 1024 if cfg["shape"] == 32 else 512
    for ct in range(2):
        for q in range(2):
            a.lds(f"ds_read_b64_tr_b16 {v(dst+ct*4+q*2,2)}, v{VT2+kind*2+ct} offset:{imm + q*qoff}", ("a", pos, ct))

def p2_setup(a, cfg):
    shape = cfg["shape"]
    a(f"""
    s_lshl_b32 s70, s36, 11
    s_lshl_b32 s71, s36, 12
    s_lshl_b32 s72, s36, 13
    s_mul_i32 s73, s36, 22
    s_and_b32 s53, s36, 1
    s_mul_i32 s97, s53, 2
    s_mul_i32 s98, s53, 6
    s_mul_i32 s99, s53, -17
    s_add_u32 s97, s97, s73
    s_add_u32 s98, s98, s73
    s_add_u32 s99, s99, s73
    s_lshl_b32 s94, s97, 14
    s_lshl_b32 s95, s98, 14
    s_lshl_b32 s96, s99, 14
    s_lshl_b32 s97, s97, 10
    s_lshl_b32 s98, s98, 10
    s_lshl_b32 s99, s99, 10
    s_and_b32 s74, s2, 7
    s_lshl_b32 s74, s74, 2
    s_lshr_b32 s75, s2, 6
    s_add_u32 s74, s74, s75           ; g
    s_bfe_u32 s75, s2, 0x30003
    s_mov_b32 s84, s18
    s_mov_b32 s85, s19
    s_mov_b32 s86, 1409024
    s_mov_b32 s87, 0x00020000
    v_lshrrev_b32 v6, 3, v0           ; k'
    v_and_b32 v7, 7, v0
    v_lshlrev_b32 v6, 10, v6
    v_lshl_add_u32 v6, v7, 4, v6
    v_and_b32 v7, 16, v0              ; ((k'>>1)&1) * 16
    v_lshlrev_b32 v7, 2, v7
    v_xor_b32 v6, v6, v7
    s_lshl_b32 s53, s75, 7
    v_add_u32 v{VWD2}, s53, v6
    """)
def p2_setup2(a, cfg):
    shape = cfg["shape"]
    a(f"""
    s_mul_i32 s53, s74, {2*88064}
    v_lshlrev_b32 v6, 4, v0
    v_add_u32 v{VH2}, s53, v6
    v_add_u32 v{VH2+1}, 88064, v{VH2}
    v_lshrrev_b32 v7, 5, v0
    v_bfe_u32 v6, v0, 2, 2            ; r
    v_lshl_add_u32 v7, v7, {2 if shape == 32 else 3}, v6
    v_lshlrev_b32 v7, 7, v7
    v_lshrrev_b32 v6, 1, v6
    v_lshl_add_u32 v7, v6, 6, v7
    v_bfe_u32 v6, v0, 4, 1
    v_lshl_add_u32 v7, v6, 5, v7
    v_and_b32 v6, 3, v0
    v_lshl_add_u32 v7, v6, 3, v7
    v_add_u32 v{VT2}, s71, v7
    s_add_u32 s53, s72, {LDS_W}
    v_add_u32 v{VT2+2}, s53, v7
    v_add_u32 v{VT2+4}, 65536, v{VT2+2}
    s_add_u32 s53, s70, {LDS_E}
    v_add_u32 v{VT2+6}, s53, v7
    v_xor_b32 v{VT2+1}, 64, v{VT2}
    v_xor_b32 v{VT2+3}, 64, v{VT2+2}
    v_xor_b32 v{VT2+5}, 64, v{VT2+4}
    v_xor_b32 v{VT2+7}, 64, v{VT2+6}
    """)
def helper(a, cfg):
    shape = cfg["shape"]
    VX, VW = 16, 20
    a("s_sub_u32 s36, s20, 4")
    a(f"""
    s_cmp_eq_u32 s21, 2
    s_cbranch_scc1 L_HI
    v_lshrrev_b32 v2, 3, v0           ; l>>3
    v_lshrrev_b32 v3, 4, v0           ; l>>4
    v_and_b32 v4, 7, v0
    v_xor_b32 v4, v4, v3
    v_xor_b32 v5, 4, v4
    v_lshlrev_b32 v4, 4, v4
    v_lshlrev_b32 v5, 4, v5
    s_lshr_b32 s37, s36, 1
    s_and_b32 s38, s36, 1
    s_lshl_b32 s38, s38, 5
    s_add_u32 s37, s37, s38
    s_lshl_b32 s38, s22, 1
    s_add_u32 s37, s37, s38
    s_lshl_b32 s37, s37, 10
    v_lshlrev_b32 v6, 16, v2
    v_add_u32 v6, s37, v6
    v_add_u32 v{VX}, v6, v4
    v_add_u32 v{VX+1}, v6, v5
    v_add_u32 v{VX+1}, 0x80000, v{VX+1}
    v_add_u32 v{VX+2}, 0x100000, v{VX}
    v_add_u32 v{VX+3}, 0x100000, v{VX+1}
    s_lshl_b32 s49, s36, 12
    s_cmp_eq_u32 s21, 0
    s_cbranch_scc0 L_HD
    """)
    for typ in ("F", "D"):
        a.vm_q = []; a.lds_q = []
        L = "L_H" + typ
        if typ == "D": a.label("L_HD")
        if typ == "F":
            a(f"""
            v_bfe_u32 v4, v0, 1, 3
            v_lshlrev_b32 v5, 1, v3
            s_and_b32 s37, s36, 1             ; mat
            s_lshr_b32 s38, s36, 1
            v_xor_b32 v4, v4, v5
            v_xor_b32 v4, {'s37' if shape == 32 else 's38'}, v4
            v_lshlrev_b32 v4, 5, v4
            v_and_b32 v5, 1, v0
            v_lshl_add_u32 v4, v5, 4, v4
            v_mul_u32_u24 v3, 2752, v3
            s_lshl_b32 s39, s23, 8
            v_add3_u32 v{VW}, v3, v4, s39
            s_mul_i32 s50, s38, {2*11008}
            s_lshl_b32 s51, s37, 14
            s_lshl_b32 s39, s38, 11
            s_add_u32 s51, s51, s39           ; W m0 base
            s_cmp_eq_u32 s37, 0
            s_waitcnt lgkmcnt(0)
            s_cselect_b32 s28, s12, s14
            s_cselect_b32 s29, s13, s15
            s_mov_b32 s30, 1409024
            """)
        else:
            a(f"""
            s_and_b32 s37, s36, 1
            s_lshl_b32 s37, s37, 5
            s_lshl_b32 s38, s23, 6
            s_add_u32 s37, s37, s38
            v_add_u32 v2, s37, v2
            v_lshl_add_u32 v{VW}, v2, 10, v4
            v_xor_b32 v5, 64, v{VW}
            v_add_u32 v{VW+1}, 0x2000, v5
            v_add_u32 v{VW+2}, 0x4000, v{VW}
            v_add_u32 v{VW+3}, 0x6000, v5
            s_cmp_lt_u32 s36, 2
            s_cselect_b32 s38, 0x40000, 0
            v_cmp_eq_u32 vcc, 0, v2
            v_mov_b32 v5, s38
            s_nop 0
            v_cndmask_b32 v5, 0, v5, vcc
            v_add_u32 v{VW}, v{VW}, v5
            s_cmp_lt_u32 s36, 2
            s_waitcnt lgkmcnt(0)
            s_cselect_b32 s28, s8, s10
            s_cselect_b32 s29, s9, s11
            s_mov_b32 s30, 524288
            """)
        a("""s_mov_b32 s31, 0x00020000
        s_mov_b32 s24, s4
        s_mov_b32 s25, s5
        s_mov_b32 s26, 2097152
        s_mov_b32 s27, 0x00020000""")
        def dma_groups(c):
            sl = c % 3
            order = [("x", 0), ("w", 0), ("x", 1), ("w", 1), ("x", 2), ("w", 2), ("x", 3), ("w", 3)] + ([("w", i) for i in range(4, 8)] if typ == "F" else [])
            out = []
            for kind, i in order:
                if kind == "x":
                    g = f"s_add_u32 m0, s49, {sl*16384 + i*1024}\n"
                    g += f"s_movk_i32 s52, {c*128}\n"
                    g += f"buffer_load_dwordx4 v{VX+i}, s[24:27], s52 offen lds\n"
                elif typ == "F":
                    kq = 4 * (i >> 1) + (i & 1)
                    g = f"s_add_u32 m0, s51, {LDS_W + sl*32768 + kq*1024}\ns_add_u32 s53, s50, {c*176128 + kq*11008}\nbuffer_load_dwordx4 v{VW}, s[28:31], s53 offen lds\n"
                else:
                    g = f"s_add_u32 m0, s49, {LDS_W + sl*16384 + i*1024}\ns_nop 0\nbuffer_load_dwordx4 v{VW+i}, s[28:31], s52 offen lds\n"
                if cfg.get('nox') and kind == 'x': g = g.replace('s52 offen', 's59 offen')
                if cfg.get('now') and kind == 'w': g = g.replace('s53 offen', 's59 offen').replace('s52 offen', 's59 offen')
                out.append(g)
            return out
        def issue(c, extra=()):
            extra = list(extra)
            gl = dma_groups(c)
            for n, g in enumerate(gl):
                a(g); a.vm_q.append(("c", c))
                if extra and n >= 1: extra.pop(0)()
            for e in extra: e()
        a(f"s_mov_b32 s59, {OOB}")
        stamp(a, cfg, 0)
        issue(0)
        def touch_setup():
            a(f"""
            s_lshr_b32 s57, s2, 3
            s_sub_u32 s57, s57, 22
            s_mul_i32 s57, s57, 172
            s_mul_i32 s58, s36, 43
            s_add_u32 s57, s57, s58
            s_lshl_b32 s57, s57, 10
            v_lshlrev_b32 v24, 4, v0
            v_mov_b32 v26, {LDS_AUX + LDS_CNT_OFF}
            v_mov_b32 v25, 0
            ds_write_b32 v26, v25
            """)
        def touch(n):
            a(f"s_add_u32 s53, s57, {n*1024}")
            a.vm("buffer_load_dwordx4 v[28:31], v24, s[84:87], s53 offen", "touch")
        def nonce_chk():
            a(f"""
            s_mov_b32 s56, 0
{L}_NCHK:
            v_readfirstlane_b32 s92, v32
            v_readfirstlane_b32 s93, v33
            s_add_u32 s56, s56, 1
            s_cmp_lg_u32 s92, 0
            s_cbranch_scc1 {L}_NOK
            s_cmp_ge_u32 s56, {SPIN_MAX}
            s_cbranch_scc1 {L}_NOK
            buffer_load_dwordx2 v[32:33], v35, s[88:91], 0 offen sc1
            s_waitcnt vmcnt(0)
            s_branch {L}_NCHK
{L}_NOK:
            """)
            xid_publish(a, 36)
        ex = [lambda: common_srds(a), lambda: p2_setup(a, cfg), lambda: p2_setup2(a, cfg)]
        if typ == "D": ex.append(touch_setup)
        issue(1, ex)
        a.wait_vm([("c", 0)])
        a("s_waitcnt lgkmcnt(0)")
        stamp(a, cfg, 1)
        gq = list(range(16)); cq = list(range(43))
        NT = [0] * 6 if typ == "F" else [cfg.get("nt", 0)] * 6
        for c in range(6):
            a("s_barrier")
            ex = []
            if c == 0: ex.append(lambda: (a("v_mov_b32 v35, 0"), a.vm("buffer_load_dwordx2 v[32:33], v35, s[88:91], 0 offen sc1", "nonce")))
            if c == 2: ex.append(nonce_chk)
            gs = []
            if typ == "D" and c < 5 and not cfg.get("noearly"): ex.append(lambda c=c: wd_dma(a, [0, 1, 2, 3, 6][c]))
            ts = [cq.pop(0) for _ in range(NT[c])]
            while gs or ts:
                n = gs.pop(0) if gs else None; t_ = ts.pop(0) if ts else None
                ex.append(lambda n=n, t_=t_: touch(t_))
            issue(c + 2, ex)
            a.wait_vm([("c", c + 1)])
        a("s_barrier")
        stamp(a, cfg, 2)
        a(f"""
        v_and_b32 v44, 31, v0
        s_lshl_b32 s37, s36, 5
        v_add_u32 v45, s37, v44
        s_lshl_b32 s38, s22, 7
        v_add_u32 v46, s38, v45
        v_lshlrev_b32 v46, 4, v46
        s_mov_b32 s37, {ST_OFF}
        """)
        a.vm("buffer_load_dwordx4 v[36:39], v46, s[32:35], s37 offen sc1", "st")
        if typ == "F":
            a(f"""
            s_lshl_b32 s57, s23, 11
            s_lshl_b32 s58, s36, 9
            s_add_u32 s57, s57, s58
            s_add_u32 s57, s57, {CS_OFF}
            v_lshlrev_b32 v47, 3, v0
            v_bfe_u32 v48, v0, 3, 1
            s_and_b32 s58, s22, 1
            s_lshl_b32 s58, s58, 1
            v_add_u32 v48, s58, v48
            v_lshlrev_b32 v48, 3, v48
            v_and_b32 v49, 7, v0
            v_add_u32 v48, v48, v49
            v_lshlrev_b32 v48, 10, v48
            s_lshr_b32 s58, s22, 1
            s_lshl_b32 s58, s58, 7
            s_add_u32 s58, s58, {XID_OFF}
            """)
            a.vm("buffer_load_dwordx2 v[42:43], v48, s[32:35], s58 offen sc1", "st")
            n67, n78 = cfg.get("n67", 7), cfg.get("n78", 4)
            for p in range(n67): wd_dma(a, p)
        a.wait_vm([("c", 7)])
        stamp(a, cfg, 6)
        a("s_barrier")
        stamp(a, cfg, 8)
        if typ == "F":
            a.vm("buffer_load_dwordx2 v[40:41], v47, s[32:35], s57 offen sc1", "st")
            a.wait_vm([("wd", 2)])
            for p in range(3): tr2(a, cfg, p, AS2 + p * 8)
            for p in range(n67, n67 + n78):
                if p == 11: a.wait_lds_all()
                wd_dma(a, p)
        a.wait_vm(["st"])
        a(f"""
        s_mov_b32 s56, 0
{L}_STCHK:
        v_cmp_eq_u32 vcc, s92, v38
        v_cmp_eq_u32 s[38:39], s93, v39
        {'v_cmp_eq_u32 s[44:45], s92, v41' if typ == "F" else ''}
        s_add_u32 s56, s56, 1
        s_nop 2
        s_and_b64 vcc, vcc, s[38:39]
        {'s_and_b64 vcc, vcc, s[44:45]' if typ == "F" else ''}
        s_cmp_eq_u64 vcc, -1
        s_cbranch_scc1 {L}_STOK
        s_cmp_ge_u32 s56, {SPIN_MAX}
        s_cbranch_scc1 {L}_STOK
        buffer_load_dwordx4 v[36:39], v46, s[32:35], s37 offen sc1
        {'buffer_load_dwordx2 v[40:41], v47, s[32:35], s57 offen sc1' if typ == "F" else ''}
        s_waitcnt vmcnt(0)
        s_branch {L}_STCHK
{L}_STOK:
        v_rcp_f32 v44, v37
        """)
        if cfg.get("prof"): a("s_mov_b32 s71, s71\ns_mov_b32 s101, s56")
        stamp(a, cfg, 11)
        if typ == "F":
            a(f"""
            v_mul_f32 v39, v37, v37
            v_lshlrev_b32 v45, 4, v45
            v_mul_f32 v37, {fhex(GC)}, v44
            v_mul_f32 v38, v44, v44
            v_mul_f32 v38, {fhex(0.044715)}, v38
            v_mul_f32 v38, v38, v37
            v_add_u32 v45, {LDS_AUX}, v45
            ds_write_b128 v45, v[36:39]
            v_lshrrev_b32 v45, 4, v0
            v_lshlrev_b32 v45, 7, v45
            s_and_b32 s38, s36, 1
            s_lshl_b32 s38, s38, 9
            s_lshr_b32 s39, s36, 1
            s_lshl_b32 s39, s39, {5 if shape == 32 else 6}
            s_add_u32 s38, s38, s39
            s_add_u32 s38, s38, {LDS_CS}
            """)
            if shape == 32:
                a("""v_and_b32 v46, 3, v0
                v_lshl_add_u32 v45, v46, 2, v45
                v_bfe_u32 v46, v0, 2, 1
                v_lshl_add_u32 v45, v46, 6, v45
                v_bfe_u32 v46, v0, 3, 1
                v_lshl_add_u32 v45, v46, 4, v45""")
            else:
                a("v_and_b32 v46, 15, v0\nv_lshl_add_u32 v45, v46, 2, v45")
            a(f"""
            v_add_u32 v45, s38, v45
            ds_write_b32 v45, v40
            v_cmp_eq_u32 vcc, s92, v43
            v_cmp_eq_u32 s[38:39], s100, v42
            v_mov_b32 v44, {LDS_MODE}
            v_mov_b32 v49, s92
            v_mov_b32 v50, s93
            s_nop 0
            s_and_b64 vcc, vcc, s[38:39]
            s_cmp_eq_u64 vcc, -1
            s_cselect_b32 s38, {0 if (cfg.get('remote') or cfg.get('p2d')) else 1}, 0
            v_mov_b32 v48, s38
            s_cmp_eq_u32 s36, 0
            s_cselect_b64 exec, 1, 0
            ds_write_b96 v44, v[48:50]
            s_mov_b64 exec, -1
            """)
            a.wait_lds_all()
            a("s_barrier")
            stamp(a, cfg, 3)
            if not cfg.get('nowd3'):
                for p in range(n67 + n78, 22): wd_dma(a, p)
            a("s_branch L_P2")
        else:
            a(f"""
            v_lshlrev_b32 v45, 2, v45
            v_add_u32 v45, {LDS_AUX}, v45
            ds_write_b32 v45, v36
            ds_write_b32 v45, v44 offset:512
            s_waitcnt lgkmcnt(0)
            s_barrier
            """)
            stamp(a, cfg, 3)
            if cfg.get("noearly"): a("s_branch L_HI2")
            else:
                for p in range(3): tr2(a, cfg, p, AS2 + p * 8)
                for p in list(range(21, 13, -1)) + [10, 9, 8, 7, 5, 4]: wd_dma(a, p)
                a.wait_lds_all()
                for p in (13, 12, 11): wd_dma(a, p)
                a("s_branch L_P2")
    a.vm_q = []; a.lds_q = []
    a("L_HI:\ns_waitcnt lgkmcnt(0)")
    stamp(a, cfg, 0)
    common_srds(a); p2_setup(a, cfg); p2_setup2(a, cfg)
    a("s_cmp_lt_u32 s23, 11\ns_cbranch_scc1 L_HI2")
    get_nonce(a, "L_HI_N", 32)
    xid_publish(a, 36)
    a("L_HI2:")
    a.vm_q = []
    for p in [0, 1, 2] + list(range(21, 13, -1)) + list(range(10, 2, -1)): wd_dma(a, p)
    a.wait_vm([("wd", 2)])
    for p in range(3): tr2(a, cfg, p, AS2 + p * 8)
    a.wait_lds_all()
    for p in range(11, 14): wd_dma(a, p)
    a.vm_q = []
    phase2(a, cfg)

def flagchk(a, lab, vd, vaddr, so="s54"):
    a(f"""
    s_mov_b32 s56, 0
{lab}:
    v_cmp_eq_u32 vcc, s92, v{vd}
    v_cmp_eq_u32 s[38:39], s93, v{vd+1}
    s_add_u32 s56, s56, 1
    s_nop 2
    s_and_b64 vcc, vcc, s[38:39]
    s_cmp_eq_u64 vcc, -1
    s_cbranch_scc1 {lab}_OK
    s_cmp_ge_u32 s56, {SPIN_MAX}
    s_cbranch_scc1 {lab}_OK
    s_sleep 16
    buffer_load_dwordx2 {v(vd,2)}, v{vaddr}, s[32:35], {so} offen sc1
    s_waitcnt vmcnt(0)
    s_branch {lab}
{lab}_OK:
    """)

def phase2(a, cfg):
    a("L_P2:")
    stamp(a, cfg, 4)
    TA, TD, TM = 128, 129, 130
    a(f"""
    s_and_b32 s53, s36, 1
    s_cmp_eq_u32 s53, 0
    s_cselect_b32 s44, 6, 5
    s_cselect_b32 s45, 12, 10
    s_cselect_b32 s46, 17, 16
    s_lshl_b32 s53, s53, 1
    v_min_u32 v{TM}, 21, v0
    v_cmp_le_u32 vcc, s44, v{TM}
    v_cmp_le_u32 s[38:39], s45, v{TM}
    v_cmp_le_u32 s[48:49], s46, v{TM}
    v_mov_b32 v{TA}, 0
    v_mov_b32 v{TD}, 0
    v_mov_b32 v{TM+1}, s44
    v_cndmask_b32 v{TA}, v{TA}, v{TM+1}, vcc
    v_addc_co_u32 v{TD}, vcc, 0, v{TD}, vcc
    v_mov_b32 v{TM+1}, s45
    v_cndmask_b32 v{TA}, v{TA}, v{TM+1}, s[38:39]
    v_addc_co_u32 v{TD}, vcc, 0, v{TD}, s[38:39]
    v_mov_b32 v{TM+1}, s46
    v_cndmask_b32 v{TA}, v{TA}, v{TM+1}, s[48:49]
    v_addc_co_u32 v{TD}, vcc, 0, v{TD}, s[48:49]
    v_sub_u32 v{TA}, v{TM}, v{TA}
    v_add_u32 v{TD}, s53, v{TD}
    v_and_b32 v{TD}, 3, v{TD}
    v_lshl_add_u32 v{TA}, v{TA}, 2, v{TD}
    v_add_u32 v{TA}, s73, v{TA}
    v_lshlrev_b32 v{TA}, {7 if cfg.get("p2d") else 2}, v{TA}
    s_lshl_b32 s55, s74, {14 if cfg.get("p2d") else 9}
    s_add_u32 s55, s55, {FLG_OFF}
    s_cmp_eq_u32 s36, 3
    s_cselect_b32 s43, {OOB}, 0
    s_cselect_b32 s47, {(1 << 15) | (1 << 21)}, 0
    s_mov_b32 s57, 0
    v_lshlrev_b32 v6, 4, v0
    s_add_u32 s53, s72, {LDS_W}
    v_add_u32 v7, s53, v6
    s_lshr_b32 s50, s36, 1
    s_lshl_b32 s50, s50, 5
    s_add_u32 s50, s50, s74
    s_and_b32 s51, s36, 1
    s_lshl_b32 s51, s51, 10
    s_add_u32 s50, s50, s51
    s_lshl_b32 s50, s50, 10
    s_lshl_b32 s51, s75, 7
    s_add_u32 s50, s50, s51
    s_add_u32 s51, s50, {8*65536}
    v_lshrrev_b32 v5, 3, v0
    v_and_b32 v6, 7, v0
    v_xor_b32 v6, v6, v5
    v_lshlrev_b32 v5, 16, v5
    v_lshl_add_u32 v5, v6, 4, v5
    """)
    def hload(n, part=None):
        h = HF2 + (n % HR2) * 8
        base = f"s{97+DCL[n]}"
        if part in (None, 0):
            if LOC_O[n] >= 20: a(f"s_add_u32 s53, {base}, s43\ns_add_u32 s53, s53, {LOC_E[n]*1024}")
            else: a(f"s_add_u32 s53, {base}, {LOC_E[n]*1024}")
        for rt in ((0, 1) if part is None else (part,)): a.vm(f"buffer_load_dwordx4 {v(h+4*rt,4)}, v{VH2+rt}, s[32:35], s53 offen sc1", ("h", n))
    def mm(n, fill):
        h = HF2 + (n % HR2) * 8
        a.wait_vm([("h", n)])
        a.wait_lds([("a", n, 0), ("a", n, 1)])
        A = AS2 + n * 8 if n < 3 else AF2 + (n & 1) * 8
        k = 0
        for ct in range(2):
            for rt in range(2):
                c = ACC2 + (rt * 2 + ct) * 16
                if not cfg.get("nomm2") or n == 0: a(f"v_mfma_f32_32x32x16_bf16 {v(c,16)}, {v(A+ct*4,4)}, {v(h+rt*4,4)}, {'0' if n == 0 else v(c,16)}")
                fill[k](); k += 1
    PD = cfg.get("pd", 6)
    slow = []
    def need(n):
        a(f"s_bitcmp1_b32 s47, {n}\ns_cbranch_scc0 L_NS{n}\nL_NR{n}:")
        slow.append(n)
    MERGE = {m: m - PD for m in (10, 13, 16, 19) if m - PD >= 1}
    REFRESH = {n: i for i, n in enumerate(MERGE.values())}
    def feed(n, part=None):
        if part == 1: return hload(n, 1)
        if n in MERGE:
            a.wait_vm([("f", MERGE[n])])
            a(f"v_cmp_eq_u32 vcc, s92, v{TM + 2 + REFRESH[MERGE[n]]}\ns_nop 3\ns_or_b32 s47, s47, vcc_lo")
        if n in REFRESH: a.vm(f"buffer_load_dword v{TM + 2 + REFRESH[n]}, v{TA}, s[32:35], s55 offen sc1", ("f", n))
        need(n)
        hload(n, part)
    if cfg.get("delay"):
        a(f"s_add_u32 s44, s92, {cfg['delay']}\nL_DLY:\ns_memrealtime s[40:41]\ns_waitcnt lgkmcnt(0)\ns_sub_u32 s41, s40, s44\ns_cmp_lt_i32 s41, 0\ns_cbranch_scc1 L_DLY")
    need(0)
    a.vm_q = []
    stamp(a, cfg, 5)
    hload(0)
    for n in range(1, PD): feed(n)
    tr2(a, cfg, 3, AF2 + 8)
    for n in range(22):
        nop = lambda: None
        t2 = (lambda: tr2(a, cfg, n + 1, AF2 + ((n + 1) & 1) * 8)) if (n >= 3 and n + 1 < 22) else nop
        f0 = (lambda: feed(n + PD, 0)) if n + PD < 22 else nop
        f1 = (lambda: feed(n + PD, 1)) if n + PD < 22 else nop
        xl = nop
        if n in (4, 5):
            def xl(u=n - 4):
                a(f"s_add_u32 m0, s70, {LDS_E + u*1024}\ns_nop 0")
                a.vm(f"buffer_load_dwordx4 v5, s[24:27], s{50+u} offen lds", "xr")
        mm(n, [t2, f0, f1, xl])
        if not cfg.get("nost"):
            if n + PD == 16: stamp(a, cfg, 7)
    stamp(a, cfg, 9)
    a("s_nop 7\ns_nop 1")
    for o in (0, 2, 1, 3):
        for q in range(4): a(f"ds_write_b128 v7, {v(ACC2+o*16+q*4,4)} offset:{(o&1)*4096 + (o>>1)*32768 + q*1024}")
    a("s_waitcnt lgkmcnt(0)\ns_barrier")
    stamp(a, cfg, 10)
    prof_flush(a, cfg)
    a("s_endpgm")
    for n in slow:
        a(f"""L_NS{n}:
        s_mov_b32 s56, 0
L_NT{n}:
        buffer_load_dword v{TM+1}, v{TA}, s[32:35], s55 offen sc1
        s_add_u32 s56, s56, 1
        s_add_u32 s57, s57, 1
        s_waitcnt vmcnt(0)
        v_cmp_eq_u32 vcc, s92, v{TM+1}
        s_cmp_ge_u32 s56, {SPIN_MAX}
        s_cbranch_scc1 L_NR{n}
        s_nop 1
        s_or_b32 s47, s47, vcc_lo
        s_bitcmp1_b32 s47, {n}
        s_cbranch_scc1 L_NR{n}
        s_sleep {cfg.get('hsl', 2)}
        s_branch L_NT{n}""")

def final(a, cfg):
    Y, ZF, GF, XR, TF = 16, 32, 48, 64, 72
    a(f"""
L_FIN:
    s_setprio 0
    s_and_b32 s74, s2, 7
    s_lshl_b32 s74, s74, 2
    s_lshr_b32 s75, s2, 6
    s_add_u32 s74, s74, s75           ; g
    s_bfe_u32 s75, s2, 0x30003        ; cg2
    s_and_b32 s45, s20, 1             ; ct
    s_lshr_b32 s46, s20, 1            ; rt
    s_mov_b32 s54, {FL_OFF}
    s_sub_u32 s47, 7, s75
    s_sub_u32 s48, 8, s75
    s_and_b32 s48, s48, 3
    s_cmp_lt_u32 s75, 4
    s_cselect_b32 s47, s75, s47
    s_cselect_b32 s48, s75, s48
    s_sub_u32 s48, s48, s47
    v_and_b32 v8, 15, v0
    v_lshlrev_b32 v8, 2, v8
    v_bfe_u32 v9, v0, 4, 1
    v_mul_lo_u32 v9, s48, v9
    v_add3_u32 v8, v8, v9, s47
    v_lshlrev_b32 v8, 7, v8
    """)
    a.vm_q = []
    a.vm(f"buffer_load_dwordx2 {v(TF,2)}, v8, s[32:35], s54 offen sc1", "fd")
    a(f"""
    s_lshl_b32 s47, s75, 6
    s_lshl_b32 s48, s45, 5
    s_add_u32 s47, s47, s48
    s_lshl_b32 s48, s46, 5
    s_add_u32 s48, s48, s74           ; residue
    s_lshl_b32 s48, s48, 10
    s_lshl_b32 s53, s47, 1
    s_add_u32 s48, s48, s53
    v_and_b32 v6, 31, v0
    v_lshrrev_b32 v7, 5, v0
    v_lshlrev_b32 v5, 16, v6
    v_lshl_add_u32 v5, v7, 4, v5
    v_add_u32 v5, s48, v5
    s_lshl_b32 s48, s45, 2
    v_add_u32 v10, s48, v7
    v_and_b32 v11, 7, v0
    v_xor_b32 v10, v10, v11
    v_lshlrev_b32 v10, 4, v10
    v_lshl_add_u32 v10, v6, 7, v10
    s_lshl_b32 s48, s46, 12
    s_add_u32 s48, s48, {LDS_E}
    v_add_u32 v10, s48, v10
    v_xor_b32 v11, 32, v10
    """)
    a(f"""
    s_cmp_lg_u32 s74, 0
    s_cselect_b32 s76, s46, 0         ; mirror
    s_sub_u32 s77, s46, s76           ; delta
    s_sub_u32 s78, 32, s74
    s_cmp_eq_u32 s46, 0
    s_cselect_b32 s78, s74, s78       ; tz
    s_mul_i32 s78, s78, {ZROW}
    s_add_u32 s78, s78, {Z_OFF}
    v_add_u32 v1, s47, v6
    v_sub_u32 v2, 512, v1
    v_and_b32 v2, 511, v2
    v_sub_u32 v3, 31, v6
    s_cmp_eq_u32 s76, 1
    s_cselect_b64 vcc, -1, 0
    v_cndmask_b32 v1, v1, v2, vcc
    v_cndmask_b32 v6, v6, v3, vcc
    v_mul_u32_u24 v2, {4*33*ZROW}, v7
    v_lshl_add_u32 v1, v1, 2, v2      ; Z offset
    v_lshlrev_b32 v6, 1, v6
    v_add_u32 v6, s77, v6
    v_cvt_f32_u32 v6, v6
    v_mul_f32 v6, {fhex(1/64)}, v6
    v_cvt_f32_u32 v7, v7
    v_mul_f32 v7, 4.0, v7
    v_mul_f32 v7, v7, v6
    """)
    def g_gen(n):
        q, d = n >> 2, n & 3
        a(f"""v_fmamk_f32 v2, v6, {fhex(float(8*q+d))}, v7
        v_cos_f32 v3, v2
        v_sin_f32 v4, v2
        s_nop 0
        v_cvt_pk_bf16_f32 v{GF+n}, v3, v4""")
    for n in range(8): g_gen(n)
    a.wait_vm(["fd"])
    flagchk(a, "L_FD", TF, 8)
    stamp(a, cfg, 9)
    for q in range(4):
        for d in range(4):
            a(f"s_add_u32 s53, s78, {(8*q + d)*33*ZROW}")
            a.vm(f"buffer_load_dword v{ZF+q*4+d}, v1, s[32:35], s53 offen sc1", "z")
    for n in range(8, 16): g_gen(n)
    a(f"""
    s_mov_b32 s48, 0xffff0000
    s_lshl_b32 s53, s45, 12
    s_lshl_b32 s54, s46, 15
    s_add_u32 s53, s53, s54
    s_add_u32 s53, s53, {LDS_W}
    v_lshlrev_b32 v9, 4, v0
    v_add_u32 v9, s53, v9""")
    a.wait_vm_all()
    for q in range(4):
        a(f"v_mfma_f32_32x32x16_bf16 {v(Y,16)}, {v(ZF+q*4,4)}, {v(GF+q*4,4)}, {'0' if q == 0 else v(Y,16)}")
    a("s_mov_b32 s24, s82\ns_mov_b32 s25, s83")
    stamp(a, cfg, 10)
    a("s_barrier")
    a.lds_q = []
    R = 96
    a.lds(f"ds_read_b128 {v(XR,4)}, v10", "x")
    a.lds(f"ds_read_b128 {v(XR+4,4)}, v11", "x")
    for w in range(4):
        if w == 3:
            a.wait_lds([("r", 0)])
            a(f"""v_permlane32_swap_b32 v{XR}, v{XR+2}
            v_permlane32_swap_b32 v{XR+1}, v{XR+3}
            v_permlane32_swap_b32 v{XR+4}, v{XR+6}
            v_permlane32_swap_b32 v{XR+5}, v{XR+7}""")
        for q in range(4): a.lds(f"ds_read_b128 {v(R+w*16+q*4,4)}, v9 offset:{w*8192 + q*1024}", ("r", w))
    for Q in range(4):
        for e in range(2):
            src = XR + Q * 2 + e
            a(f"v_lshlrev_b32 v{80+Q*4+2*e}, 16, v{src}\nv_and_b32 v{80+Q*4+2*e+1}, s48, v{src}")
    for w in range(1, 4):
        a.wait_lds([("r", w)])
        for i in range(0, 16, 2): a(f"v_pk_add_f32 {v(R+i,2)}, {v(R+i,2)}, {v(R+w*16+i,2)}")
    for i in range(16): a(f"v_mul_f32 v{R+16+i}, {fhex(-LOG2E)}, v{R+i}")
    for i in range(16): a(f"v_exp_f32 v{R+16+i}, v{R+16+i}")
    for i in range(0, 16, 2): a(f"v_pk_mul_f32 {v(R+i,2)}, {v(R+i,2)}, {v(Y+i,2)}")
    for i in range(16): a(f"v_add_f32 v{R+16+i}, 1.0, v{R+16+i}")
    for i in range(16): a(f"v_rcp_f32 v{R+16+i}, v{R+16+i}")
    a("s_nop 0")
    for i in range(0, 16, 2): a(f"v_pk_fma_f32 {v(R+i,2)}, {v(R+i,2)}, {v(R+16+i,2)}, {v(80+i,2)}")
    for i in range(8): a(f"v_cvt_pk_bf16_f32 v{64+i}, v{R+2*i}, v{R+2*i+1}")
    of = cfg.get("outflag", 0)
    fl = ["", " sc1", " nt", " sc0 sc1"][of]
    a(f"""s_nop 1
    v_permlane32_swap_b32 v64, v66
    v_permlane32_swap_b32 v65, v67
    v_permlane32_swap_b32 v68, v70
    v_permlane32_swap_b32 v69, v71
    buffer_store_dwordx4 v[64:67], v5, s[24:27], 0 offen{fl}
    buffer_store_dwordx4 v[68:71], v5, s[24:27], 0 offen offset:32{fl}""")
    if cfg.get("prof"): a("s_waitcnt vmcnt(0)")
    stamp(a, cfg, 11)
    prof_flush(a, cfg)
    if "enc" in cfg:
        k, wv, lo, hi, op = cfg["enc"], cfg.get("encw", 0), cfg.get("enclo", 0), cfg.get("enchi", 176), ("min" if cfg.get("encmin") else "max")
        a(f"""
        s_or_b32 s42, s2, s20
        s_cmp_eq_u32 s42, 0
        s_cbranch_scc0 L_END
        s_add_u32 s42, s92, 4000
L_E1:
        s_memrealtime s[40:41]
        s_waitcnt lgkmcnt(0)
        s_sub_u32 s41, s40, s42
        s_cmp_lt_i32 s41, 0
        s_cbranch_scc1 L_E1
        v_mov_b32 v3, {'0x7fffffff' if op == 'min' else '0x80000000'}
        """)
        for i in range(4):
            a(f"v_add_u32 v4, {64*i}, v0\nv_max_u32 v4, {lo}, v4\nv_min_u32 v4, {hi-1}, v4\nv_lshlrev_b32 v4, 9, v4")
            for w in range(4):
                a(f"s_mov_b32 s42, {PROF_BASE + (wv*4 + w)*64 + k*4}\nbuffer_load_dword v5, v4, s[44:47], s42 offen sc1\ns_waitcnt vmcnt(0)\nv_subrev_u32 v5, s92, v5\nv_{op}_i32 v3, v3, v5")
        a(f"""
        s_mov_b32 s43, 0
        v_readlane_b32 s50, v3, 0
L_E2:
        s_nop 3
        v_readlane_b32 s51, v3, s43
        s_nop 3
        s_{op}_i32 s50, s50, s51
        s_add_u32 s43, s43, 1
        s_cmp_lt_u32 s43, 64
        s_cbranch_scc1 L_E2
        s_mul_i32 s50, s50, 10
        s_add_u32 s42, s92, s50
        s_add_u32 s42, s42, 6000
L_E3:
        s_memrealtime s[40:41]
        s_waitcnt lgkmcnt(0)
        s_sub_u32 s41, s40, s42
        s_cmp_lt_i32 s41, 0
        s_cbranch_scc1 L_E3
        """)
    a("s_endpgm")

def geglu(a, items, T, O):
    for g, u, cg, cu, st in items: a(f"v_pk_fma_f32 {v(g,2)}, {v(st,2)}, {v(cg,2)}, {v(g,2)}")
    for i, (g, u, cg, cu, st) in enumerate(items): a(f"v_pk_mul_f32 {v(T+2*i,2)}, {v(g,2)}, {v(g,2)}")
    for i, (g, u, cg, cu, st) in enumerate(items): a(f"v_pk_fma_f32 {v(T+2*i,2)}, {v(T+2*i,2)}, {v(st+4,2)}, {v(st+2,2)}")
    for i, (g, u, cg, cu, st) in enumerate(items): a(f"v_pk_mul_f32 {v(T+2*i,2)}, {v(T+2*i,2)}, {v(g,2)}")
    for i in range(8): a(f"v_exp_f32 v{T+i}, v{T+i}")
    for g, u, cg, cu, st in items: a(f"v_pk_fma_f32 {v(u,2)}, {v(st,2)}, {v(cu,2)}, {v(u,2)}")
    for i, (g, u, cg, cu, st) in enumerate(items): a(f"v_pk_fma_f32 {v(T+2*i,2)}, {v(T+2*i,2)}, {v(st+6,2)}, {v(st+6,2)}")
    for i in range(8): a(f"v_rcp_f32 v{T+i}, v{T+i}")
    for g, u, cg, cu, st in items: a(f"v_pk_mul_f32 {v(u,2)}, {v(u,2)}, {v(g,2)}")
    for i, (g, u, cg, cu, st) in enumerate(items): a(f"v_pk_mul_f32 {v(u,2)}, {v(u,2)}, {v(T+2*i,2)}")
    for i, (g, u, cg, cu, st) in enumerate(items): a(f"v_cvt_pk_bf16_f32 v{O+i}, v{u}, v{u+1}")

def mma_ffn(a, cfg):
    shape = cfg["shape"]
    ACC = 128
    VXA, VWA = 8, 12
    XF, WF = (16, 32) if shape == 32 else (16, 48)
    a(f"""
    s_or_b32 s38, s2, s20
    s_cmp_eq_u32 s38, 0
    s_cbranch_scc0 L_NONONCE
    s_memrealtime s[92:93]
    s_waitcnt lgkmcnt(0)
    s_or_b32 s92, s92, 1
    v_mov_b32 v2, s92
    v_mov_b32 v3, s93
    v_mov_b32 v4, 0
    s_mov_b64 exec, 1
    buffer_store_dwordx2 v[2:3], v4, s[88:91], 0 offen sc1
    s_mov_b64 exec, -1
L_NONONCE:
    """)
    if shape == 32:
        a(f"""
        v_and_b32 v1, 31, v0
        v_lshrrev_b32 v2, 5, v0
        v_bfe_u32 v3, v0, 1, 3
        v_xor_b32 v3, v3, v2
        v_lshlrev_b32 v3, 4, v3
        v_lshl_add_u32 v3, v1, 7, v3
        s_lshl_b32 s38, s36, 13
        v_add_u32 v{VXA}, s38, v3
        v_xor_b32 v{VXA+1}, 32, v{VXA}
        v_xor_b32 v{VXA+2}, 64, v{VXA}
        v_xor_b32 v{VXA+3}, 96, v{VXA}
        v_bfe_u32 v3, v0, 2, 2            ; r
        v_bfe_u32 v4, v0, 4, 1            ; mat
        v_lshl_add_u32 v5, v2, 3, v3      ; 8h + r
        v_lshlrev_b32 v5, 8, v5
        v_lshl_add_u32 v5, v4, 14, v5
        v_lshl_or_b32 v3, v3, 1, v4       ; g = r<<1 | mat
        """)
        nxa = 4
    else:
        a(f"""
        v_and_b32 v1, 15, v0
        v_lshrrev_b32 v2, 4, v0           ; g
        v_bfe_u32 v3, v0, 1, 3
        v_xor_b32 v3, v3, v2
        v_lshlrev_b32 v3, 4, v3
        v_lshl_add_u32 v3, v1, 7, v3
        s_lshl_b32 s38, s36, 13
        v_add_u32 v{VXA}, s38, v3
        v_xor_b32 v{VXA+1}, 64, v{VXA}
        v_bfe_u32 v3, v0, 2, 2            ; r
        v_and_b32 v4, 1, v2
        v_lshl_add_u32 v5, v2, 3, v3      ; 8g + r
        v_lshlrev_b32 v5, 8, v5
        v_lshl_or_b32 v3, v3, 1, v4       ; (r<<1) | (g&1)
        """)
        nxa = 2
    a(f"""
    s_lshl_b32 s38, s37, 2
    v_xor_b32 v3, s38, v3             ; u ^ g for j = 0
    v_lshl_add_u32 v5, v3, 5, v5
    v_and_b32 v4, 3, v0
    v_lshl_add_u32 v5, v4, 3, v5
    v_add_u32 v{VWA}, {LDS_W}, v5
    v_xor_b32 v{VWA+1}, 32, v{VWA}
    v_xor_b32 v{VWA+2}, 64, v{VWA}
    v_xor_b32 v{VWA+3}, 96, v{VWA}
    """)
    for i in range(128): a(f"v_mov_b32 v{ACC+i}, 0")
    VCS, VST, VH = 112, 113, 114
    a(f"""
    s_lshl_b32 s38, s37, 9
    s_add_u32 s38, s38, {LDS_CS}
    v_lshlrev_b32 v3, {6 if shape == 32 else 4}, v2
    v_add_u32 v{VCS}, s38, v3
    s_lshl_b32 s38, s36, 10
    s_add_u32 s38, s38, {LDS_AUX}
    v_lshlrev_b32 v4, 4, v1
    v_add_u32 v{VST}, s38, v4
    s_lshl_b32 s38, s22, 1
    s_add_u32 s38, s38, s36           ; g
    s_lshl_b32 s78, s38, {14 if cfg.get("p2d") else 9}
    s_add_u32 s78, s78, {FLG_OFF}
    s_mul_i32 s38, s38, {2*88064}
    """)
    if shape == 32:
        a(f"""
        v_lshlrev_b32 v5, 4, v0
        v_add_u32 v{VH}, s38, v5
        v_add_u32 v{VH+1}, 88064, v{VH}
        """)
    else:
        a(f"""
        v_lshrrev_b32 v5, 1, v2
        v_lshlrev_b32 v5, 9, v5
        v_and_b32 v7, 1, v2
        v_lshl_add_u32 v7, v7, 3, v5      ; (g>>1)*512 + (g&1)*8
        v_lshl_add_u32 v5, v1, 4, v7
        v_add_u32 v{VH}, s38, v5
        v_add_u32 v{VH+1}, 256, v{VH}
        v_add_u32 v{VH+2}, 88064, v{VH}
        v_add_u32 v{VH+3}, {88064+256}, v{VH}
        """)
    a(f"""v_mov_b32 v118, {LDS_MODE}
    v_mov_b32 v119, 0
    v_and_b32 v5, 15, v0
    v_lshlrev_b32 v5, 6, v5
    v_bfe_u32 v7, v0, 4, 1
    v_mul_u32_u24 v7, 88064, v7
    v_add3_u32 v123, v5, v7, s38""")
    a(f"""
    s_lshl_b32 s79, s23, 3
    s_lshl_b32 s39, s37, 2
    s_add_u32 s79, s79, s39
    s_mov_b32 s56, 0
    s_mov_b32 s57, 0
    s_setprio {cfg.get('pm', 0)}
    """)
    stamp(a, cfg, 0)
    if shape == 32:
        nstep, nA, nB = 4, 4, 2
        XS, WS = 8, 16
        def xread(st, t): return f"ds_read_b128 {v(XF + (st&1)*XS + t*4, 4)}, v{VXA+st%nstep} offset:{t*4096}"
        def wread(st, p, q): return f"ds_read_b64_tr_b16 {v(WF + (st&1)*WS + p*4 + q*2, 2)}, v{VWA+p} offset:{(st%nstep)*4096 + q*1024}"
        def mfma(st, p, t):
            c = ACC + (p * 2 + t) * 16
            return f"v_mfma_f32_32x32x16_bf16 {v(c,16)}, {v(WF+(st&1)*WS+p*4,4)}, {v(XF+(st&1)*XS+t*4,4)}, {v(c,16)}"
        per_gap = [2, 2, 2, 2, 1, 1]
        waits = {0: 1, 2: 3}
    else:
        nstep, nA, nB = 2, 8, 4
        XS, WS = 16, 32
        def xread(st, t): return f"ds_read_b128 {v(XF + (st&1)*XS + t*4, 4)}, v{VXA+st%nstep} offset:{t*2048}"
        def wread(st, p, q): return f"ds_read_b64_tr_b16 {v(WF + (st&1)*WS + p*4 + q*2, 2)}, v{VWA+(p>>1)} offset:{(p&1)*16384 + (st%nstep)*8192 + q*1024}"
        def mfma(st, p, t):
            c = ACC + (p * 4 + t) * 4
            return f"v_mfma_f32_16x16x32_bf16 {v(c,4)}, {v(WF+(st&1)*WS+p*4,4)}, {v(XF+(st&1)*XS+t*4,4)}, {v(c,4)}"
        per_gap = [1] * 20
        waits = {0: 3, 3: 7}
    def readlist(st):
        r = [(xread(st, 0), ("x", st % nstep, 0)), (wread(st, 0, 0), ("w", st % nstep, 0)), (wread(st, 0, 1), ("w", st % nstep, 0))]
        r += [(xread(st, t), ("x", st % nstep, t)) for t in range(1, nB)]
        for p in range(1, nA): r += [(wread(st, p, q), ("w", st % nstep, p)) for q in range(2)]
        return r
    G = nA * nB
    salu = ["s_add_u32 s57, s57, 1", "s_cmp_eq_u32 s57, 3", "s_cselect_b32 s58, -2, 1", "s_cselect_b32 s57, 0, s57", "s_lshl_b32 s59, s58, 15", "s_lshl_b32 s58, s58, 14"]
    xup = [f"v_add_u32 v{VXA+i}, s58, v{VXA+i}" for i in range(nxa)]
    wup = [f"v_add_u32 v{VWA+i}, s59, v{VWA+i}" for i in range(4)]
    extra = {}
    if shape == 32:
        extra[(0, 6)] = salu[:3]; extra[(0, 7)] = salu[3:]
        extra[(1, 6)] = xup[:2]; extra[(1, 7)] = xup[2:3]
        extra[(2, 6)] = xup[3:] + wup[:2]; extra[(2, 7)] = wup[2:]
        extra[(3, 7)] = []
        bar_gap = 0
    else:
        for i, x_ in enumerate(salu): extra[(0, 20 + i)] = [x_]
        for i, x_ in enumerate(xup + wup): extra[(0, 26 + i)] = [x_]
        bar_gap = 0
    a.lds_q = []
    a("s_barrier")
    stamp(a, cfg, 1)
    cyc(a, cfg, 0)
    for ins, tag in readlist(0): a.lds(ins, tag)
    if len(a.lds_q) > 15: a.wait_lds([("w", 0, 1)])
    entry_q = list(a.lds_q)
    a(".p2align 3\nL_FLOOP:")
    for st in range(nstep):
        rl = readlist(st + 1); pg = list(per_gap)
        last = st == nstep - 1
        for p in range(nA):
            for t in range(nB):
                gap = p * nB + t
                if t == 0 and p in waits:
                    a.wait_lds([("w", st, pp) for pp in range(waits[p] + 1)] + [("x", st, tt) for tt in range(nB)])
                if not cfg.get('nomfma'): a(mfma(st, p, t))
                if last and gap == bar_gap:
                    a.wait_lds_all(); a("s_barrier")
                if (not last or gap > bar_gap) and pg:
                    for _ in range(pg.pop(0)):
                        ins, tag = rl.pop(0); a.lds(ins, tag)
                for x_ in extra.get((st, gap), []): a(x_)
                if last and gap == G - 2: a("s_add_u32 s56, s56, 1\ns_cmp_lt_u32 s56, 8")
        assert not rl
    if len(a.lds_q) > len(entry_q): a.wait_lds([("w", 0, 1)])
    assert a.lds_q == entry_q, (a.lds_q, entry_q)
    a("s_cbranch_scc1 L_FLOOP")
    a.lds_q = []
    stamp(a, cfg, 2)
    cyc(a, cfg, 1)
    ST, CS, T, O = (16, 32, 72, 80) if shape == 32 else (16, 48, 72, 80)
    SL = 96
    a(f"s_setprio {cfg.get('pe', 0)}\ns_waitcnt lgkmcnt(0)")
    nst = 2 if shape == 32 else 4
    a.lds("ds_read_b96 v[120:122], v118", "st")
    for t in range(nst): a.lds(f"ds_read_b128 {v(SL+t*4,4)}, v{VST} offset:{t*(512 if shape == 32 else 256)}", "st")
    alt = []
    def store2(ins):
        k = len(alt)
        a(f"s_cbranch_vccz L_SA{k}\n{ins}\nL_SB{k}:")
        alt.append(ins)
    def flag(j):
        a(f"s_add_u32 s40, s77, {(128 if cfg.get('p2d') else 4)*j}\ns_mov_b64 exec, 1")
        store2("buffer_store_dword v121, v119, s[32:35], s40 offen")
        a("s_mov_b64 exec, -1")
    def rd_cs(j):
        if shape == 32:
            for q in range(4): a.lds(f"ds_read_b128 {v(CS+(j&1)*16+q*4,4)}, v{VCS} offset:{j*128+q*16}", ("cs", j))
        else:
            for m in range(2): a.lds(f"ds_read_b128 {v(CS+(j&1)*8+m*4,4)}, v{VCS} offset:{j*128+m*64}", ("cs", j))
    rd_cs(0)
    a(f"s_lshl_b32 s77, s79, {7 if cfg.get('p2d') else 2}\ns_add_u32 s77, s77, s78")
    a.wait_lds(["st"])
    for t in range(nst):
        for i in range(8): a(f"v_mov_b32 v{ST+t*8+i}, v{SL+t*4+(i>>1)}")
    a("v_cmp_ne_u32 vcc, 0, v120\nv_readfirstlane_b32 s92, v121\nv_readfirstlane_b32 s93, v122")
    if cfg.get("prof"): a("v_readfirstlane_b32 s66, v120")
    stamp(a, cfg, 3)
    cyc(a, cfg, 0, 8)
    hm = cfg.get("hm", 0)
    grp = cfg.get("grp", 1)
    st_ = (lambda x_: a(x_ + " sc1")) if hm == 1 else store2
    pend = []
    for j in range(4):
        if j + 1 < 4: rd_cs(j + 1)
        a.wait_lds([("cs", j)])
        if j == 2: a(f"s_cmp_ge_u32 s79, 84\ns_cbranch_scc1 L_MTAIL")
        a(f"s_add_u32 s39, s79, {j}\ns_lshl_b32 s39, s39, 10")
        OO = O + (j & 1) * 8
        for hf in range(2):
            if shape == 32:
                c = ACC + (j * 2 + hf) * 16
                geglu(a, [(c + 2*p, c + 8 + 2*p, CS + (j&1)*16 + 2*p, CS + (j&1)*16 + 8 + 2*p, ST + hf*8) for p in range(4)], T, OO + hf*4)
            else:
                items = []
                for t in (2 * hf, 2 * hf + 1):
                    cg_, cu_ = ACC + ((2*j) * 4 + t) * 4, ACC + ((2*j+1) * 4 + t) * 4
                    for p in range(2): items.append((cg_ + 2*p, cu_ + 2*p, CS + 8*(j&1) + 2*p, CS + 8*(j&1) + 4 + 2*p, ST + t*8))
                geglu(a, items, T, OO + hf*4)
        if len(pend) >= grp:
            a("s_waitcnt vmcnt(0)")
            for p_ in pend: flag(p_)
            pend = []
        if j == 1: tail_pend = pend + [1]
        for hf in range(2):
            if shape == 32: st_(f"buffer_store_dwordx4 {v(OO+hf*4,4)}, v{VH+hf}, s[32:35], s39 offen")
            else:
                st_(f"buffer_store_dwordx2 {v(OO+hf*4,2)}, v{VH+2*hf}, s[32:35], s39 offen")
                st_(f"buffer_store_dwordx2 {v(OO+hf*4+2,2)}, v{VH+2*hf+1}, s[32:35], s39 offen")
        if cfg.get("rb"): a("buffer_load_dword v124, v123, s[32:35], s39 offen sc1")
        pend.append(j)
    a.lds_q = []
    cyc(a, cfg, 1, 8)
    stamp(a, cfg, 4)
    a("s_waitcnt vmcnt(0)")
    for p_ in pend: flag(p_)
    a("L_MDONE:")
    stamp(a, cfg, 5)
    final(a, cfg)
    a("L_MTAIL:\ns_waitcnt vmcnt(0)")
    for p_ in tail_pend: flag(p_)
    stamp(a, cfg, 4)
    a("s_branch L_MDONE")
    for k, ins in enumerate(alt): a(f"L_SA{k}:\n{ins} sc1\ns_branch L_SB{k}")

def mma_dft(a, cfg):
    ACC, OUT, FF, BF = 128, 192, 64, 96
    VXA, VWA = 8, 12
    XF, WF = 16, 32
    a(f"""
    s_lshr_b32 s38, s23, 1
    s_and_b32 s39, s23, 1
    s_lshl_b32 s39, s39, 5
    s_add_u32 s38, s38, s39
    s_lshl_b32 s39, s22, 1
    s_add_u32 s38, s38, s39
    s_lshl_b32 s39, s20, 9
    s_add_u32 s38, s38, s39
    s_lshl_b32 s38, s38, 10
    v_lshrrev_b32 v2, 3, v0
    v_and_b32 v3, 7, v0
    v_lshlrev_b32 v4, 16, v2
    v_lshl_add_u32 v4, v3, 4, v4
    v_mov_b32 v5, 0
    """)
    for c in range(8): a(f"buffer_load_dwordx4 {v(16+4*c,4)}, v4, s[24:27], s38 offen offset:{c*128}")
    a("buffer_load_dwordx2 v[6:7], v5, s[88:91], 0 offen sc1")
    a(f"""
    s_getpc_b64 s[44:45]
L_PC:
    s_add_u32 s44, s44, L_CSTAB-L_PC
    s_addc_u32 s45, s45, 0
    s_lshl_b32 s39, s23, 6
    s_lshl_b32 s40, s37, 5
    s_add_u32 s79, s39, s40           ; e base
    v_and_b32 v1, 31, v0
    v_add_u32 v60, s79, v1
    v_lshlrev_b32 v60, 2, v60
    global_load_dword v62, v60, s[44:45]
    global_load_dword v63, v60, s[44:45] offset:1024
    """)
    a(f"""
    v_lshrrev_b32 v61, 5, v0          ; h
    s_lshl_b32 s78, s22, 1
    s_add_u32 s78, s78, s36           ; s0
    v_cvt_f32_u32 v56, v1
    v_mul_f32 v56, {fhex(1/2048)}, v56
    v_lshlrev_b32 v57, 8, v61
    v_add_u32 v57, s78, v57
    v_cvt_f32_u32 v57, v57
    v_mul_f32 v57, v57, v56
    v_cmp_eq_u32 vcc, 0, v1
    """)
    def fgen(q, d):
        for e in range(2):
            i = 2 * d + e
            k = 32 * (q >> 1) + 64 * (16 * (q & 1) + 8 * (i >> 2) + (i & 3))
            a(f"v_fmamk_f32 v{48+e}, v56, {fhex(float(k))}, v57")
        a(f"""v_cos_f32 v50, v48
        v_cos_f32 v51, v49
        v_sin_f32 v52, v48
        v_sin_f32 v53, v49
        v_cvt_pk_bf16_f32 v{FF+q*4+d}, v50, v51
        v_mov_b32 v54, {'0x3f803f80' if q < 2 else '0xbf80bf80'}
        v_cvt_pk_bf16_f32 v55, v52, v53
        v_cndmask_b32 v{FF+16+q*4+d}, v55, v54, vcc""")
    for q in range(4):
        for d in range(4): fgen(q, d)
    for i in range(64): a(f"v_mov_b32 v{ACC+i}, 0")
    a("s_mov_b32 s48, 0xffff0000\nv_mov_b32 v48, 0\nv_mov_b32 v49, 0\nv_mov_b32 v50, 0\nv_mov_b32 v51, 0")
    for c in range(8):
        a(f"s_waitcnt vmcnt({10 - c})")
        for i in range(4):
            d = 16 + 4 * c + i
            a(f"""v_and_b32 v52, s48, v{d}
            v_lshlrev_b32 v53, 16, v{d}
            v_add_f32 v48, v48, v52
            v_add_f32 v49, v49, v53
            v_fmac_f32 v50, v52, v52
            v_fmac_f32 v51, v53, v53""")
    a(f"""
    v_add_f32 v48, v48, v49
    v_add_f32 v50, v50, v51
    s_nop 1
    v_add_f32_dpp v48, v48, v48 quad_perm:[1,0,3,2] row_mask:0xf bank_mask:0xf
    v_add_f32_dpp v50, v50, v50 quad_perm:[1,0,3,2] row_mask:0xf bank_mask:0xf
    s_nop 1
    v_add_f32_dpp v48, v48, v48 quad_perm:[2,3,0,1] row_mask:0xf bank_mask:0xf
    v_add_f32_dpp v50, v50, v50 quad_perm:[2,3,0,1] row_mask:0xf bank_mask:0xf
    s_nop 1
    v_add_f32_dpp v48, v48, v48 row_half_mirror row_mask:0xf bank_mask:0xf
    v_add_f32_dpp v50, v50, v50 row_half_mirror row_mask:0xf bank_mask:0xf
    v_mul_f32 v48, {fhex(1/512)}, v48          ; mean
    v_mul_f32 v50, {fhex(1/512)}, v50
    v_fma_f32 v50, -v48, v48, v50              ; var
    v_max_f32 v50, 0, v50
    v_cvt_pk_bf16_f32 v52, -v48, v50
    v_lshlrev_b32 v16, 16, v52                 ; -bf16(mean)
    v_and_b32 v50, s48, v52                    ; bf16(var)
    v_add_f32 v50, {fhex(1e-5)}, v50
    v_cvt_pk_bf16_f32 v50, v50, v50
    v_and_b32 v50, s48, v50
    v_sqrt_f32 v50, v50
    s_lshl_b32 s38, s22, 7
    s_lshl_b32 s39, s23, 5
    s_add_u32 s38, s38, s39
    s_lshl_b32 s39, s20, 3
    s_add_u32 s38, s38, s39
    s_lshl_b32 s38, s38, 4
    s_add_u32 s38, s38, {ST_OFF}
    v_cvt_pk_bf16_f32 v50, v50, v50
    v_and_b32 v17, s48, v50                    ; sd
    v_lshlrev_b32 v4, 4, v2
    s_mov_b32 s56, 0
    s_waitcnt vmcnt(0)
L_DN:
    v_readfirstlane_b32 s92, v6
    s_add_u32 s56, s56, 1
    s_cmp_ge_u32 s56, {SPIN_MAX}
    s_cbranch_scc1 L_DN_OK
    s_cmp_lg_u32 s92, 0
    s_cbranch_scc1 L_DN_OK
    buffer_load_dwordx2 v[6:7], v5, s[88:91], 0 offen sc1
    s_waitcnt vmcnt(0)
    s_branch L_DN
L_DN_OK:
    v_mov_b32 v18, v6
    v_mov_b32 v19, v7
    s_mov_b32 exec_lo, 0x01010101
    s_mov_b32 exec_hi, 0x01010101
    buffer_store_dwordx4 v[16:19], v4, s[32:35], s38 offen sc1
    s_mov_b64 exec, -1
    """)
    stamp(a, cfg, 6)
    a("v_readfirstlane_b32 s93, v7")
    a(f"""
    v_bfe_u32 v3, v0, 1, 3
    v_xor_b32 v3, v3, v61
    v_lshlrev_b32 v3, 4, v3
    v_lshl_add_u32 v3, v1, 7, v3
    s_lshl_b32 s38, s36, 13
    v_add_u32 v{VXA}, s38, v3
    s_lshl_b32 s38, s37, 12
    s_add_u32 s38, s38, {LDS_W}
    v_add_u32 v{VWA}, s38, v3
    """)
    for i in range(1, 4): a(f"v_xor_b32 v{VXA+i}, {32*i}, v{VXA}\nv_xor_b32 v{VWA+i}, {32*i}, v{VWA}")
    a("s_mov_b32 s56, 0\ns_mov_b32 s57, 0")
    stamp(a, cfg, 0)
    def FS(st): return (16 if (st & 3) < 2 else 96) + (st & 1) * 16
    def rdl(st):
        s_ = st % 4; b = FS(st)
        return [(f"ds_read_b128 {v(b,4)}, v{VXA+s_}", ("x", s_, 0)), (f"ds_read_b128 {v(b+8,4)}, v{VWA+s_}", ("w", s_, 0)),
                (f"ds_read_b128 {v(b+12,4)}, v{VWA+s_} offset:8192", ("w", s_, 1)), (f"ds_read_b128 {v(b+4,4)}, v{VXA+s_} offset:4096", ("x", s_, 1))]
    a.lds_q = []
    a("s_barrier")
    stamp(a, cfg, 1)
    for st in (0, 1):
        for ins, tag in rdl(st): a.lds(ins, tag)
    entry_q = list(a.lds_q)
    a(".p2align 3\nL_DLOOP:")
    salu = ["s_add_u32 s57, s57, 1\ns_cmp_eq_u32 s57, 3\ns_cselect_b32 s58, -2, 1", "s_cselect_b32 s57, 0, s57\ns_lshl_b32 s58, s58, 14"]
    for st in range(4):
        rl = rdl(st + 2); b = FS(st)
        for n, (rt, cs) in enumerate([(0, 0), (0, 1), (1, 0), (1, 1)]):
            if n == 0: a.wait_lds([("x", st, 0), ("x", st, 1), ("w", st, 0), ("w", st, 1)])
            c = ACC + (rt * 2 + cs) * 16
            if not cfg.get('nomfma'): a(f"v_mfma_f32_32x32x16_bf16 {v(c,16)}, {v(b+rt*4,4)}, {v(b+8+cs*4,4)}, {v(c,16)}")
            if st == 2 and n == 0:
                a.wait_lds_all(); a("s_barrier")
            if st < 2 or st == 3 or n > 0:
                k = 1 if not (st == 2 and n == 1) else 2
                for _ in range(k):
                    ins, tag = rl.pop(0); a.lds(ins, tag)
            if st == 0 and n < 2: a(salu[n])
            if st == 0 and n >= 2: a(f"v_add_u32 v{VXA+n-2}, s58, v{VXA+n-2}\nv_add_u32 v{VWA+n-2}, s58, v{VWA+n-2}")
            if st == 2 and n >= 2: a(f"v_add_u32 v{VXA+n}, s58, v{VXA+n}\nv_add_u32 v{VWA+n}, s58, v{VWA+n}")
            if st == 3 and n == 2: a("s_add_u32 s56, s56, 1\ns_cmp_lt_u32 s56, 8")
        assert not rl
    assert a.lds_q == entry_q, (a.lds_q, entry_q)
    a("s_cbranch_scc1 L_DLOOP")
    a.lds_q = []
    stamp(a, cfg, 2)
    a(f"""
    s_waitcnt lgkmcnt(0)
    s_lshl_b32 s39, s36, 8
    s_add_u32 s39, s39, {LDS_AUX}
    v_lshlrev_b32 v3, 4, v61
    v_add_u32 v3, s39, v3
    v_mov_b32 v4, v62
    v_mov_b32 v5, v62
    v_mov_b32 v6, v63
    v_mov_b32 v7, v63
    v_cmp_eq_u32 vcc, 0, v1
    """)
    for rt in range(2):
        for Q in range(4): a(f"ds_read_b128 {v(16+Q*4,4)}, v3 offset:{rt*128 + Q*32}")
        for Q in range(4): a(f"ds_read_b128 {v(32+Q*4,4)}, v3 offset:{512 + rt*128 + Q*32}")
        a("s_waitcnt lgkmcnt(0)")
        for cs in range(2):
            c = ACC + (rt * 2 + cs) * 16
            for p in range(8): a(f"v_pk_fma_f32 {v(c+2*p,2)}, {v(16+2*p,2)}, {v(4+2*cs,2)}, {v(c+2*p,2)}")
            for p in range(8): a(f"v_pk_mul_f32 {v(c+2*p,2)}, {v(c+2*p,2)}, {v(32+2*p,2)}")
            for p in range(8): a(f"v_cvt_pk_bf16_f32 v{BF + cs*16 + rt*8 + p}, v{c+2*p}, v{c+2*p+1}")
    a("s_nop 1")
    for q in range(4):
        for CN in range(2):
            for ab in range(2):
                c = OUT + (CN * 2 + ab) * 16
                a(f"v_mfma_f32_32x32x16_bf16 {v(c,16)}, {v(FF+CN*16+q*4,4)}, {v(BF+ab*16+q*4,4)}, {'0' if q == 0 else v(c,16)}")
    P, R, T, Q = OUT, OUT + 16, OUT + 32, OUT + 48
    a(f"""
    v_add_u32 v8, s79, v1             ; e
    v_sub_u32 v9, 512, v8
    v_and_b32 v9, 511, v9
    v_cmp_eq_u32 vcc, 0, v8
    v_mov_b32 v10, 256
    v_mov_b32 v11, -1
    v_and_b32 v12, 0xfffffffc, v8
    v_cndmask_b32 v8, v8, v10, vcc
    v_cndmask_b32_e64 v11, v11, 0, vcc
    v_and_b32 v10, 3, v0
    v_lshl_add_u32 v10, v61, 2, v10
    v_mul_u32_u24 v10, {ZROW}, v10
    v_sub_u32 v13, 509, v12
    v_lshl_add_u32 v12, v12, 2, v10   ; Z1 offset
    v_lshl_add_u32 v13, v13, 2, v10   ; Z2 offset
    v_lshlrev_b32 v8, 2, v8
    v_lshlrev_b32 v9, 2, v9
    v_cvt_f32_u32 v10, v61
    v_mul_u32_u24 v3, {4*ZROW}, v61
    v_add_u32 v3, 1024, v3
    s_mul_i32 s38, s78, {33*ZROW}
    s_add_u32 s38, s38, {Z_OFF}
    s_add_u32 s39, s38, {32*ZROW}
    s_mov_b32 s44, 0x55555555
    s_mov_b32 s45, s44
    s_mov_b32 s46, 0x33333333
    s_mov_b32 s47, s46
    v_cvt_pk_bf16_f32 v14, v{T}, v{Q}
    v_cvt_pk_bf16_f32 v15, v{T}, -v{Q}
    v_mul_f32 v{T}, v{T}, v10
    v_mul_f32 v{Q}, v{Q}, v10
    v_and_b32 v15, v15, v11
    s_mov_b32 exec_hi, 0
    buffer_store_dword v14, v8, s[32:35], s39 offen sc1
    buffer_store_dword v15, v9, s[32:35], s39 offen sc1
    s_mov_b64 exec, -1
    """)
    O1, O2, TT = 16, 32, 128
    for p in range(8):
        r0 = 2 * p
        a(f"""v_pk_add_f32 v[48:49], {v(P+r0,2)}, {v(Q+r0,2)}
        v_pk_add_f32 v[50:51], {v(R+r0,2)}, {v(T+r0,2)} neg_lo:[0,1] neg_hi:[0,1]
        v_pk_add_f32 v[52:53], {v(P+r0,2)}, {v(Q+r0,2)} neg_lo:[0,1] neg_hi:[0,1]
        v_pk_add_f32 v[54:55], {v(R+r0,2)}, {v(T+r0,2)} neg_lo:[1,1] neg_hi:[1,1]
        v_cvt_pk_bf16_f32 v{O1+r0}, v48, v50
        v_cvt_pk_bf16_f32 v{O1+r0+1}, v49, v51
        v_cvt_pk_bf16_f32 v{O2+r0}, v52, v54
        v_cvt_pk_bf16_f32 v{O2+r0+1}, v53, v55""")
    a("s_cmp_eq_u32 s79, 0\ns_cbranch_scc0 L_NO256\ns_mov_b32 exec_lo, 1\ns_mov_b32 exec_hi, 1")
    for r in range(16):
        a(f"s_add_u32 s39, s38, {(8*(r>>2) + (r&3))*ZROW}\nbuffer_store_dword v{O1+r}, v3, s[32:35], s39 offen sc1")
    a("s_mov_b64 exec, -1\ns_nop 1")
    for r in range(16): a(f"v_and_b32 v{O1+r}, v{O1+r}, v11")
    a("L_NO256:")
    def dpp(perm): return f"quad_perm:{perm} row_mask:0xf bank_mask:0xf"
    a("s_mov_b64 vcc, s[44:45]\ns_nop 0")
    for r in range(0, 32, 2): a(f"v_cndmask_b32_dpp v{TT+r}, v{O1+r+1}, v{O1+r}, vcc {dpp('[1,0,3,2]')}")
    a("s_not_b64 vcc, vcc")
    for r in range(0, 32, 2): a(f"v_cndmask_b32_dpp v{TT+r+1}, v{O1+r}, v{O1+r+1}, vcc {dpp('[1,0,3,2]')}")
    def dst(b, j): return O1 + b * 4 + (j if b < 4 else 3 - j)
    a("s_mov_b64 vcc, s[46:47]")
    for b in range(8):
        for j in range(2): a(f"v_cndmask_b32_dpp v{dst(b,j)}, v{TT+b*4+j+2}, v{TT+b*4+j}, vcc {dpp('[2,3,0,1]')}")
    a("s_not_b64 vcc, vcc")
    for b in range(8):
        for j in range(2): a(f"v_cndmask_b32_dpp v{dst(b,j+2)}, v{TT+b*4+j}, v{TT+b*4+j+2}, vcc {dpp('[2,3,0,1]')}")
    for Qd in range(4):
        a(f"""s_add_u32 s39, s38, {Qd*8*ZROW}
        buffer_store_dwordx4 {v(O1+Qd*4,4)}, v12, s[32:35], s39 offen sc1
        buffer_store_dwordx4 {v(O2+Qd*4,4)}, v13, s[32:35], s39 offen sc1""")
    stamp(a, cfg, 4)
    a(f"""
    v_mov_b32 v48, {LDS_AUX + LDS_CNT_OFF}
    v_mov_b32 v49, 1
    s_lshl_b32 s53, s22, 2
    s_add_u32 s53, s53, s23
    s_lshl_b32 s53, s53, 7
    s_add_u32 s53, s53, {FL_OFF}
    s_mov_b64 exec, 1
    s_waitcnt vmcnt(0)
    ds_add_rtn_u32 v18, v48, v49
    v_mov_b32 v20, s92
    v_mov_b32 v21, s93
    v_mov_b32 v22, 0
    s_waitcnt lgkmcnt(0)
    v_readfirstlane_b32 s54, v18
    s_nop 3
    s_cmp_eq_u32 s54, 3
    s_cselect_b32 s53, s53, {OOB}
    buffer_store_dwordx2 v[20:21], v22, s[32:35], s53 offen sc1
    s_mov_b64 exec, -1
    """)
    stamp(a, cfg, 5)
    a("s_branch L_FIN")

def gen(cfg):
    a = Asm()
    entry(a, cfg)
    helper(a, cfg)
    colsum(a, cfg)
    a("L_MMA:\ns_lshr_b32 s36, s20, 1\ns_and_b32 s37, s20, 1\ns_waitcnt lgkmcnt(0)")
    common_srds(a)
    a("s_cmp_eq_u32 s21, 2\ns_cbranch_scc0 L_MMA2")
    get_nonce(a, "L_MI_N", 4)
    a("s_branch L_FIN\nL_MMA2:")
    a("s_cmp_eq_u32 s21, 0\ns_cbranch_scc0 L_MMA_DFT")
    mma_ffn(a, cfg)
    a("L_MMA_DFT:")
    mma_dft(a, cfg)
    a("L_END:\ns_endpgm")
    cs = np.load("cs_table.npy")
    tab = ".p2align 8\n.type L_CSTAB,@object\nL_CSTAB:\n" + "\n".join(".long " + ", ".join("0x%08x" % x for x in cs[i:i+8].view(np.uint32)) for i in range(0, 512, 8)) + "\n.size L_CSTAB, 2048\n"
    HEAD = open("recurrent_scan__spectral_fnet__geglu_ffn__prompt.s.ref").read().split("; Override launch")[0]
    s = HEAD + f"; @launch grid=(256,1,1) block=(512,1,1) lds={LDS_TOTAL}\n" + '.amdgcn_target "amdgcn-amd-amdhsa--gfx950"\n'
    return s + kernel(KN, a.text() + tab, 256)

if __name__ == "__main__":
    import sys
    cfg = {"shape": 32}
    for kv in sys.argv[2:]:
        k, val = kv.split("="); cfg[k] = int(val, 0)
    open(sys.argv[1], "w").write(gen(cfg))
```

```python
from dsl import *
import math, numpy as np
KN = "recurrent_scan__spectral_fnet__geglu_ffn__prompt_kernel"
Z_OFF, ST_OFF, FL_OFF, CS_OFF, XID_OFF, FLG_OFF, WS_BYTES = 0x600000, 0x900000, 0x908000, 0x90A000, 0x910000, 0x918000, 0xA00000
ZROW = 2048
LDS_CNT_OFF = 3072
LDS_MODE = 159744 + 3088
OOB = 0x7F000000
LDS_W = 49152
LDS_E = 147456
LDS_AUX = 159744
LDS_CS = LDS_AUX + 2048
LDS_ST2 = 155648
LDS_CA = LDS_AUX + 3104
LDS_TOTAL = 163840
GC = -2.0 * math.sqrt(2.0 / math.pi) * math.log2(math.e)
LOG2E = math.log2(math.e)
SPIN_MAX = 1 << 15
PROF_BASE = 0x1000000

def SR(idx): return {10: 6, 11: 7}.get(idx, 60 + idx)
def stamp(a, cfg, idx):
    if cfg.get("pb") and not cfg.get("pbx") and idx in (3, 4, 5, 6, 7) and not cfg.get("inm"): return
    if cfg.get("prof"):
        a(f"s_memrealtime s[40:41]\ns_waitcnt lgkmcnt(0)\ns_mov_b32 s{SR(idx)}, s40")
def cyc(a, cfg, which, idx=7):
    if cfg.get("prof"):
        if which == 0: a(f"s_memtime s[40:41]\ns_waitcnt lgkmcnt(0)\ns_mov_b32 s{60+idx}, s40")
        else: a(f"s_memtime s[40:41]\ns_waitcnt lgkmcnt(0)\ns_sub_u32 s{60+idx}, s40, s{60+idx}")
def prof_flush(a, cfg):
    if not cfg.get("prof"): return
    a(f"s_lshl_b32 s42, s2, 3\ns_add_u32 s42, s42, s20\ns_lshl_b32 s42, s42, 6\ns_add_u32 s42, s42, {PROF_BASE}")
    a("s_mov_b32 s44, s16\ns_mov_b32 s45, s17\ns_mov_b32 s46, 0x10000000\ns_mov_b32 s47, 0x00020000")
    a("s_mov_b64 exec, 1\nv_mov_b32 v1, 0")
    for i in range(12):
        a(f"v_mov_b32 v2, s{SR(i)}\nbuffer_store_dword v2, v1, s[44:47], s42 offen offset:{4*i}" + (" sc1" if "enc" in cfg else ""))
    a("v_mov_b32 v2, s57\nbuffer_store_dword v2, v1, s[44:47], s42 offen offset:48")
    a("v_mov_b32 v2, s101\nbuffer_store_dword v2, v1, s[44:47], s42 offen offset:52")
    a("s_waitcnt vmcnt(0)\ns_mov_b64 exec, -1")

def entry(a, cfg):
    a("""
    s_cmp_ge_u32 s2, 256
    s_cbranch_scc1 L_END
    s_load_dwordx2 s[4:5], s[0:1], 0
    s_load_dwordx4 s[8:11], s[0:1], 24
    s_load_dwordx4 s[12:15], s[0:1], 48
    s_load_dwordx2 s[18:19], s[0:1], 64
    s_load_dwordx2 s[82:83], s[0:1], 72
    s_load_dwordx2 s[80:81], s[0:1], 80
    s_load_dwordx2 s[16:17], s[0:1], 88
    v_lshrrev_b32 v1, 6, v0
    v_and_b32 v0, 63, v0
    s_and_b32 s3, s2, 7
    v_readfirstlane_b32 s20, v1
    s_lshr_b32 s6, s2, 3          ; loc
    """)
    if cfg.get("p2d"):
        a("""
        s_lshr_b32 s7, s3, 1          ; a
        s_and_b32 s3, s3, 1           ; b
        s_lshl_b32 s36, s7, 2         ; 4a
        s_sub_u32 s37, 6, s3          ; nc
        s_lshl_b32 s38, s37, 2        ; nffn
        s_mul_i32 s39, s3, 9
        s_add_u32 s39, s39, 43
        s_mul_i32 s39, s39, s6
        s_lshr_b32 s39, s39, 8        ; q
        s_add_u32 s22, s36, s39       ; rho
        s_mul_i32 s39, s39, s37
        s_sub_u32 s23, s6, s39
        s_mul_i32 s39, s3, 6
        s_add_u32 s23, s23, s39       ; cg
        s_mov_b32 s21, 0
        s_cmp_lt_u32 s6, s38
        s_cbranch_scc1 L_ROLED
        s_sub_u32 s6, s6, s38
        s_and_b32 s39, s6, 3
        s_add_u32 s22, s36, s39       ; w
        s_lshr_b32 s39, s6, 2
        s_lshl_b32 s23, s3, 1
        s_add_u32 s23, s23, s39       ; eq
        s_mov_b32 s21, 1
        s_cmp_lt_u32 s6, 8
        s_cbranch_scc1 L_ROLED
        s_sub_u32 s6, s6, 8
        s_add_u32 s23, s36, s6
        s_mov_b32 s21, 2
        s_cmp_lt_u32 s23, 11
        s_cbranch_scc1 L_CS
        s_branch L_ROLED
        """)
    a("""
    s_lshl_b32 s36, s3, 1
    s_cmp_ge_u32 s6, 11
    s_cselect_b32 s37, 1, 0
    s_add_u32 s22, s36, s37       ; rho
    s_mul_i32 s37, s37, 11
    s_sub_u32 s23, s6, s37        ; cg
    s_mov_b32 s21, 0
    s_cmp_lt_u32 s6, 22
    s_cbranch_scc1 L_ROLED
    s_sub_u32 s6, s6, 22
    s_lshr_b32 s37, s6, 2
    s_add_u32 s22, s36, s37       ; w
    s_and_b32 s23, s6, 3          ; eq
    s_mov_b32 s21, 1
    s_cmp_lt_u32 s6, 8
    s_cbranch_scc1 L_ROLED
    s_sub_u32 s6, s6, 8
    s_add_u32 s23, s36, s6
    s_mov_b32 s21, 2
    s_cmp_lt_u32 s23, 11
    s_cbranch_scc1 L_CS
L_ROLED:
    s_mul_i32 s3, s22, 11
    s_lshl_b32 s37, s22, 2
    s_add_u32 s37, s37, 176
    s_cmp_eq_u32 s21, 0
    s_cselect_b32 s3, s3, s37
    s_add_u32 s3, s3, s23
    s_cmp_lt_u32 s20, 4
    s_cbranch_scc1 L_MMA
    """)

def get_nonce(a, lab, vt):
    a(f"""
    v_mov_b32 v{vt+2}, 0
    s_mov_b32 s56, 0
{lab}:
    buffer_load_dwordx2 {v(vt,2)}, v{vt+2}, s[88:91], 0 offen sc1
    s_add_u32 s56, s56, 1
    s_waitcnt vmcnt(0)
    v_readfirstlane_b32 s92, v{vt}
    v_readfirstlane_b32 s93, v{vt+1}
    s_cmp_ge_u32 s56, {SPIN_MAX}
    s_cbranch_scc1 {lab}_OK
    s_cmp_eq_u32 s92, 0
    s_cbranch_scc1 {lab}
{lab}_OK:
    """)

def xid_publish(a, vt):
    a(f"""
    s_getreg_b32 s100, hwreg(HW_REG_XCC_ID, 0, 4)
    s_lshl_b32 s53, s2, 7
    s_add_u32 s53, s53, {XID_OFF}
    s_cmp_eq_u32 s36, 0
    s_cselect_b32 s53, s53, {OOB}
    v_mov_b32 v{vt}, s100
    v_mov_b32 v{vt+1}, s92
    v_mov_b32 v{vt+2}, 0
    s_mov_b64 exec, 1
    """)
    a.vm(f"buffer_store_dwordx2 {v(vt,2)}, v{vt+2}, s[32:35], s53 offen sc1", "xid")
    a("s_mov_b64 exec, -1")

def colsum(a, cfg):
    a(f"""
L_CS:
    v_lshrrev_b32 v2, 4, v0
    v_and_b32 v3, 15, v0
    v_mul_u32_u24 v2, 2752, v2
    v_lshl_add_u32 v2, v3, 4, v2
    s_lshl_b32 s38, s23, 8
    s_lshr_b32 s39, s20, 1
    s_mul_i32 s39, s39, {128*2752}
    s_add_u32 s38, s38, s39
    s_and_b32 s39, s20, 1
    s_cmp_eq_u32 s39, 0
    s_waitcnt lgkmcnt(0)
    s_cselect_b32 s28, s12, s14
    s_cselect_b32 s29, s13, s15
    s_mov_b32 s30, 1409024
    s_mov_b32 s31, 0x00020000
    """)
    common_srds(a)
    a("s_sub_u32 s36, s20, 4\nv_mov_b32 v146, 0\nbuffer_load_dwordx2 v[144:145], v146, s[88:91], 0 offen sc1")
    for i in range(32):
        a(f"buffer_load_dwordx4 {v(16+4*i,4)}, v2, s[28:31], s38 offen\ns_add_u32 s38, s38, {4*2752}")
    a("s_mov_b32 s48, 0xffff0000")
    for i in range(8): a(f"v_mov_b32 v{8+i}, 0")
    for i in range(32):
        if i % 4 == 0: a(f"s_waitcnt vmcnt({28 - i})")
        if i == 0:
            a(f"""
            v_readfirstlane_b32 s92, v144
            v_readfirstlane_b32 s93, v145
            s_nop 1
            s_cmp_lg_u32 s92, 0
            s_cbranch_scc1 L_CS_N1
            """)
            get_nonce(a, "L_CS_N0", 144)
            a("L_CS_N1:")
            xid_publish(a, 144)
        for d in range(4):
            r = 16 + 4 * i + d
            a(f"v_lshlrev_b32 v4, 16, v{r}\nv_and_b32 v5, s48, v{r}\nv_add_f32 v{8+2*d}, v{8+2*d}, v4\nv_add_f32 v{9+2*d}, v{9+2*d}, v5")
    a(f"""
    s_lshl_b32 s38, s20, 11
    v_lshlrev_b32 v2, 5, v0
    v_add_u32 v2, s38, v2
    ds_write_b128 v2, v[8:11]
    ds_write_b128 v2, v[12:15] offset:16
    s_waitcnt lgkmcnt(0)
    s_barrier
    s_cmp_lt_u32 s20, 4
    s_cbranch_scc0 L_CS_H
    s_lshr_b32 s38, s20, 1
    s_lshl_b32 s38, s38, 11
    s_and_b32 s39, s20, 1
    s_lshl_b32 s39, s39, 8
    s_add_u32 s38, s38, s39
    v_lshlrev_b32 v2, 2, v0
    v_add_u32 v2, s38, v2
    """)
    for kq in range(4):
        for rg in range(4): a(f"ds_read_b32 v{16+kq*4+rg}, v2 offset:{kq*4096 + rg*512}")
        if kq == 1: a("s_waitcnt lgkmcnt(0)")
    a("s_waitcnt lgkmcnt(0)\ns_barrier")
    for i in range(1, 16): a(f"v_add_f32 v16, v16, v{16+i}")
    a(f"""
    v_mov_b32 v17, s92
    s_lshl_b32 s38, s23, 11
    s_lshl_b32 s39, s20, 9
    s_add_u32 s38, s38, s39
    s_add_u32 s38, s38, {CS_OFF}
    v_lshlrev_b32 v2, 3, v0
    buffer_store_dwordx2 v[16:17], v2, s[32:35], s38 offen sc1
    """)
    stamp(a, cfg, 5)
    a("""
    s_branch L_FIN
L_CS_H:
    s_barrier
    s_sub_u32 s36, s20, 4
    s_branch L_HI
    """)

def common_srds(a):
    a(f"""
    s_mov_b32 s24, s4
    s_mov_b32 s25, s5
    s_mov_b32 s26, 2097152
    s_mov_b32 s27, 0x00020000
    s_mov_b32 s32, s16
    s_mov_b32 s33, s17
    s_mov_b32 s34, {WS_BYTES}
    s_mov_b32 s35, 0x00020000
    s_mov_b32 s88, s80
    s_mov_b32 s89, s81
    s_mov_b32 s90, 256
    s_mov_b32 s91, 0x00020000
    """)

ACC2, Y2, AS2, AF2, XR2, HF2, GF2, ZF2 = 192, 176, 152, 136, 128, 16, 112, 152
HR2 = 12
VH2, VWD2, VO2 = 2, 4, 5
VT2 = 8
SLOT = {"E": (3, 0, LDS_E, 2048)}
for sl in range(3):
    for i in range(2): SLOT[f"X{sl}{i}"] = (0, sl * 16384 + i * 2048, sl * 16384 + i * 2048, 4096)
    for i in range(4):
        if sl < 2: SLOT[f"W{sl}{i}"] = (1, sl * 32768 + i * 2048, LDS_W + sl * 32768 + i * 2048, 8192)
        else: SLOT[f"W{sl}{i}"] = (2, i * 2048, LDS_W + 65536 + i * 2048, 8192)
POS_SLOT = ["W20", "W21", "W22", "E", "X20", "X21", "W23", "X00", "X01", "W00", "W01", "W20", "W21", "W22", "W02", "W03", "X10", "X11", "W10", "W11", "W12", "W13"]
LOC_E = [0, 4, 8, 12, 16, 20, 1, 5, 9, 13, 17, 21, 2, 6, 10, 14, 18, 3, 7, 11, 15, 19]
LOC_O = [2, 6, 10, 14, 18, 3, 7, 11, 15, 19, 0, 4, 8, 12, 16, 20, 1, 5, 9, 13, 17, 21]
DCL = [{2: 0, 6: 1, -17: 2}[o - e] for e, o in zip(LOC_E, LOC_O)]
MULT_S = {2048: "s70", 4096: "s71", 8192: "s72"}
def rot_base(a, pos, sa, sb):
    a(f"s_cmp_le_u32 s99, {pos}\ns_cselect_b32 s53, s{sb}, s{sa}")
def wd_dma(a, pos):
    kind, imm, m0c, mult = SLOT[POS_SLOT[pos]]
    rot_base(a, pos, 94, 95)
    for i in range(2):
        a(f"s_add_u32 m0, {MULT_S[mult]}, {m0c + i*1024}\ns_add_u32 s53, s53, {pos*16384 if i == 0 else 8192}")
        a.vm(f"buffer_load_dwordx4 v{VWD2}, s[84:87], s53 offen lds", ("wd", pos))
def tr2(a, cfg, pos, dst):
    kind, imm, m0c, mult = SLOT[POS_SLOT[pos]]
    qoff = 1024 if cfg["shape"] == 32 else 512
    for ct in range(2):
        for q in range(2):
            a.lds(f"ds_read_b64_tr_b16 {v(dst+ct*4+q*2,2)}, v{VT2+kind*2+ct} offset:{imm + q*qoff}", ("a", pos, ct))

def p2_setup(a, cfg):
    shape = cfg["shape"]
    a(f"""
    s_lshl_b32 s70, s36, 11
    s_lshl_b32 s71, s36, 12
    s_lshl_b32 s72, s36, 13
    s_mul_i32 s73, s36, 22
    s_and_b32 s74, s2, 7
    s_lshl_b32 s74, s74, 2
    s_lshr_b32 s75, s2, 6
    s_add_u32 s74, s74, s75           ; g
    s_mul_i32 s98, s75, 57            ; (g&3) -> 0, 11, 5(.5), 16: 11*(g&1) + 5*(g>>1&1)
    s_and_b32 s98, s75, 1
    s_mul_i32 s98, s98, 11
    s_lshr_b32 s75, s75, 1
    s_mul_i32 s75, s75, 5
    s_add_u32 s98, s98, s75
    s_bfe_u32 s75, s2, 0x30003
    s_mul_i32 s97, s75, {cfg.get("rotm", 3)}
    s_add_u32 s98, s98, s97
    s_cmp_ge_u32 s98, 22
    s_cselect_b32 s97, 22, 0
    s_sub_u32 s98, s98, s97           ; rot
    {'s_mov_b32 s98, 0' if cfg.get('norot') else ''}
    s_sub_u32 s99, 22, s98
    s_add_u32 s98, s98, s73
    s_sub_u32 s97, s98, 22
    s_lshl_b32 s94, s98, 14
    s_lshl_b32 s95, s97, 14
    s_lshl_b32 s96, s98, 10
    s_lshl_b32 s97, s97, 10
    s_mov_b32 s84, s18
    s_mov_b32 s85, s19
    s_mov_b32 s86, 1409024
    s_mov_b32 s87, 0x00020000
    v_lshrrev_b32 v6, 3, v0           ; k'
    v_and_b32 v7, 7, v0
    v_lshlrev_b32 v6, 10, v6
    v_lshl_add_u32 v6, v7, 4, v6
    v_and_b32 v7, 16, v0              ; ((k'>>1)&1) * 16
    v_lshlrev_b32 v7, 2, v7
    v_xor_b32 v6, v6, v7
    s_lshl_b32 s53, s75, 7
    v_add_u32 v{VWD2}, s53, v6
    """)
def p2_setup2(a, cfg):
    shape = cfg["shape"]
    a(f"""
    s_mul_i32 s53, s74, {2*88064}
    v_lshlrev_b32 v6, 4, v0
    v_add_u32 v{VH2}, s53, v6
    v_add_u32 v{VH2+1}, 88064, v{VH2}
    v_lshrrev_b32 v7, 5, v0
    v_bfe_u32 v6, v0, 2, 2            ; r
    v_lshl_add_u32 v7, v7, {2 if shape == 32 else 3}, v6
    v_lshlrev_b32 v7, 7, v7
    v_lshrrev_b32 v6, 1, v6
    v_lshl_add_u32 v7, v6, 6, v7
    v_bfe_u32 v6, v0, 4, 1
    v_lshl_add_u32 v7, v6, 5, v7
    v_and_b32 v6, 3, v0
    v_lshl_add_u32 v7, v6, 3, v7
    v_add_u32 v{VT2}, s71, v7
    s_add_u32 s53, s72, {LDS_W}
    v_add_u32 v{VT2+2}, s53, v7
    v_add_u32 v{VT2+4}, 65536, v{VT2+2}
    s_add_u32 s53, s70, {LDS_E}
    v_add_u32 v{VT2+6}, s53, v7
    v_xor_b32 v{VT2+1}, 64, v{VT2}
    v_xor_b32 v{VT2+3}, 64, v{VT2+2}
    v_xor_b32 v{VT2+5}, 64, v{VT2+4}
    v_xor_b32 v{VT2+7}, 64, v{VT2+6}
    """)
def helper(a, cfg):
    shape = cfg["shape"]
    VX, VW = 16, 20
    a("s_sub_u32 s36, s20, 4")
    a(f"""
    s_cmp_eq_u32 s21, 2
    s_cbranch_scc1 L_HI
    v_lshrrev_b32 v2, 3, v0           ; l>>3
    v_lshrrev_b32 v3, 4, v0           ; l>>4
    v_and_b32 v4, 7, v0
    v_xor_b32 v4, v4, v3
    v_xor_b32 v5, 4, v4
    v_lshlrev_b32 v4, 4, v4
    v_lshlrev_b32 v5, 4, v5
    s_lshr_b32 s37, s36, 1
    s_and_b32 s38, s36, 1
    s_lshl_b32 s38, s38, 5
    s_add_u32 s37, s37, s38
    s_lshl_b32 s38, s22, 1
    s_add_u32 s37, s37, s38
    s_lshl_b32 s37, s37, 10
    v_lshlrev_b32 v6, 16, v2
    v_add_u32 v6, s37, v6
    v_add_u32 v{VX}, v6, v4
    v_add_u32 v{VX+1}, v6, v5
    v_add_u32 v{VX+1}, 0x80000, v{VX+1}
    v_add_u32 v{VX+2}, 0x100000, v{VX}
    v_add_u32 v{VX+3}, 0x100000, v{VX+1}
    s_lshl_b32 s49, s36, 12
    s_cmp_eq_u32 s21, 0
    s_cbranch_scc0 L_HD
    """)
    for typ in ("F", "D"):
        a.vm_q = []; a.lds_q = []
        L = "L_H" + typ
        if typ == "D": a.label("L_HD")
        if typ == "F":
            a(f"""
            v_bfe_u32 v4, v0, 1, 3
            v_lshlrev_b32 v5, 1, v3
            s_and_b32 s37, s36, 1             ; mat
            s_lshr_b32 s38, s36, 1
            v_xor_b32 v4, v4, v5
            v_xor_b32 v4, {'s37' if shape == 32 else 's38'}, v4
            v_lshlrev_b32 v4, 5, v4
            v_and_b32 v5, 1, v0
            v_lshl_add_u32 v4, v5, 4, v4
            v_mul_u32_u24 v3, 2752, v3
            s_lshl_b32 s39, s23, 8
            v_add3_u32 v{VW}, v3, v4, s39
            s_mul_i32 s50, s38, {2*11008}
            s_lshl_b32 s51, s37, 14
            s_lshl_b32 s39, s38, 11
            s_add_u32 s51, s51, s39           ; W m0 base
            s_cmp_eq_u32 s37, 0
            s_waitcnt lgkmcnt(0)
            s_cselect_b32 s28, s12, s14
            s_cselect_b32 s29, s13, s15
            s_mov_b32 s30, 1409024
            """)
        else:
            a(f"""
            s_and_b32 s37, s36, 1
            s_lshl_b32 s37, s37, 5
            s_lshl_b32 s38, s23, 6
            s_add_u32 s37, s37, s38
            v_add_u32 v2, s37, v2
            v_lshl_add_u32 v{VW}, v2, 10, v4
            v_xor_b32 v5, 64, v{VW}
            v_add_u32 v{VW+1}, 0x2000, v5
            v_add_u32 v{VW+2}, 0x4000, v{VW}
            v_add_u32 v{VW+3}, 0x6000, v5
            s_cmp_lt_u32 s36, 2
            s_cselect_b32 s38, 0x40000, 0
            v_cmp_eq_u32 vcc, 0, v2
            v_mov_b32 v5, s38
            s_nop 0
            v_cndmask_b32 v5, 0, v5, vcc
            v_add_u32 v{VW}, v{VW}, v5
            s_cmp_lt_u32 s36, 2
            s_waitcnt lgkmcnt(0)
            s_cselect_b32 s28, s8, s10
            s_cselect_b32 s29, s9, s11
            s_mov_b32 s30, 524288
            """)
        a("""s_mov_b32 s31, 0x00020000
        s_mov_b32 s24, s4
        s_mov_b32 s25, s5
        s_mov_b32 s26, 2097152
        s_mov_b32 s27, 0x00020000""")
        def dma_groups(c):
            sl = c % 3
            order = [("x", 0), ("w", 0), ("x", 1), ("w", 1), ("x", 2), ("w", 2), ("x", 3), ("w", 3)] + ([("w", i) for i in range(4, 8)] if typ == "F" else [])
            out = []
            for kind, i in order:
                if kind == "x":
                    g = f"s_add_u32 m0, s49, {sl*16384 + i*1024}\n"
                    g += f"s_movk_i32 s52, {c*128}\n"
                    g += f"buffer_load_dwordx4 v{VX+i}, s[24:27], s52 offen lds\n"
                elif typ == "F":
                    kq = 4 * (i >> 1) + (i & 1)
                    g = f"s_add_u32 m0, s51, {LDS_W + sl*32768 + kq*1024}\ns_add_u32 s53, s50, {c*176128 + kq*11008}\nbuffer_load_dwordx4 v{VW}, s[28:31], s53 offen lds\n"
                else:
                    g = f"s_add_u32 m0, s49, {LDS_W + sl*16384 + i*1024}\ns_nop 0\nbuffer_load_dwordx4 v{VW+i}, s[28:31], s52 offen lds\n"
                if cfg.get('nox') and kind == 'x': g = g.replace('s52 offen', 's59 offen')
                if cfg.get('now') and kind == 'w': g = g.replace('s53 offen', 's59 offen').replace('s52 offen', 's59 offen')
                out.append(g)
            return out
        def issue(c, extra=()):
            extra = list(extra)
            gl = dma_groups(c)
            for n, g in enumerate(gl):
                a(g); a.vm_q.append(("c", c))
                if extra and n >= 1: extra.pop(0)()
            for e in extra: e()
        a(f"s_mov_b32 s59, {OOB}")
        stamp(a, cfg, 0)
        issue(0)
        def touch_setup():
            a(f"""
            s_lshr_b32 s57, s2, 3
            s_sub_u32 s57, s57, 22
            s_mul_i32 s57, s57, 172
            s_mul_i32 s58, s36, 43
            s_add_u32 s57, s57, s58
            s_lshl_b32 s57, s57, 10
            v_lshlrev_b32 v24, 4, v0
            v_mov_b32 v26, {LDS_AUX + LDS_CNT_OFF}
            v_mov_b32 v25, 0
            ds_write_b32 v26, v25
            """)
        def touch(n):
            a(f"s_add_u32 s53, s57, {n*1024}")
            a.vm("buffer_load_dwordx4 v[28:31], v24, s[84:87], s53 offen", "touch")
        def warm_h():
            if typ == "F":
                a(f"""
                s_lshl_b32 s40, s3, 12
                s_add_u32 s40, s40, {256*2752}
                v_min_u32 v52, 31, v0
                v_lshlrev_b32 v52, 7, v52
                s_cmp_lt_u32 s36, 2
                s_cbranch_scc0 {L}_W2
                buffer_load_dword v53, v52, s[28:31], s40 offen
                s_branch {L}_W9
{L}_W2:
                s_lshl_b32 s40, s3, 1
                s_add_u32 s40, s40, s36
                s_sub_u32 s40, s40, 2
                s_mul_i32 s40, s40, 6
                v_min_u32 v52, 23, v0
                v_and_b32 v53, 3, v52
                v_lshrrev_b32 v52, 2, v52
                v_add_u32 v52, s40, v52
                v_min_u32 v52, 2047, v52
                v_lshlrev_b32 v53, 7, v53
                v_and_b32 v54, 31, v52
    v_lshl_add_u32 v53, v54, 16, v53
    v_bfe_u32 v54, v52, 5, 1
    v_lshl_add_u32 v53, v54, 15, v53
    v_lshrrev_b32 v54, 6, v52
    v_lshl_add_u32 v52, v54, 10, v53
                buffer_load_dword v53, v52, s[24:27], 0 offen offset:512
{L}_W9:
                """)
            else:
                a(f"""
                s_sub_u32 s40, s3, 176
                s_lshl_b32 s40, s40, 1
                s_and_b32 s41, s36, 1
                s_add_u32 s40, s40, s41
                s_lshl_b32 s40, s40, 11
                s_add_u32 s40, s40, 512
                v_min_u32 v52, 11, v0
                v_and_b32 v53, 3, v52
                v_lshrrev_b32 v52, 2, v52
                v_lshlrev_b32 v52, 10, v52
                v_lshl_add_u32 v52, v53, 7, v52
                buffer_load_dword v53, v52, s[28:31], s40 offen
                """)
            a.vm_q.append("warm")
        def warm_d():
            a(f"""
            s_lshl_b32 s40, s3, 2
            s_add_u32 s40, s40, s36
            s_mul_i32 s40, s40, {12*128}
            v_min_u32 v52, 11, v0
            v_lshlrev_b32 v52, 7, v52
            """)
            a.vm("buffer_load_dword v54, v52, s[84:87], s40 offen", "warm")
        def warm_l2(n, cnt):
            a(f"""
            s_lshr_b32 s40, s2, 3
            s_lshl_b32 s40, s40, 2
            s_add_u32 s40, s40, s36
            s_mul_i32 s40, s40, {92*128}
            s_add_u32 s40, s40, {n*cnt*128}
            v_min_u32 v52, {cnt-1}, v0
            v_lshlrev_b32 v52, 7, v52
            """)
            a.vm("buffer_load_dword v54, v52, s[84:87], s40 offen", "warm")
        def nonce_chk():
            a(f"""
            s_mov_b32 s56, 0
{L}_NCHK:
            v_readfirstlane_b32 s92, v32
            v_readfirstlane_b32 s93, v33
            s_add_u32 s56, s56, 1
            s_cmp_lg_u32 s92, 0
            s_cbranch_scc1 {L}_NOK
            s_cmp_ge_u32 s56, {SPIN_MAX}
            s_cbranch_scc1 {L}_NOK
            buffer_load_dwordx2 v[32:33], v35, s[88:91], 0 offen sc1
            s_waitcnt vmcnt(0)
            s_branch {L}_NCHK
{L}_NOK:
            """)
            xid_publish(a, 36)
        ex = [lambda: common_srds(a), lambda: p2_setup(a, cfg), lambda: p2_setup2(a, cfg)]
        if typ == "D": ex.append(touch_setup)
        else: ex.append(lambda: a(f"v_mov_b32 v56, {LDS_CA}\nv_mov_b32 v58, 0\nv_mov_b32 v59, 0\nv_mov_b32 v57, 1\nds_write_b64 v56, v[58:59]"))
        issue(1, ex)
        a.wait_vm([("c", 0)])
        a("s_waitcnt lgkmcnt(0)")
        stamp(a, cfg, 1)
        gq = list(range(16)); cq = list(range(43))
        NT = [0] * 6 if typ == "F" else [cfg.get("nt", 0)] * 6
        for c in range(6):
            if cfg.get("pb") == 1 and c > 0: stamp(a, dict(cfg, pbx=1), [0, 3, 4, 5, 6, 7][c])
            a("s_barrier")
            if cfg.get("pb") == 2 and c > 0: stamp(a, dict(cfg, pbx=1), [0, 3, 4, 5, 6, 7][c])
            ex = []
            if c == 0 and not cfg.get("nowarm"): ex.append(warm_h)
            if c == cfg.get("warmc", 1) and not cfg.get("nowarm"): ex.append(warm_d)
            if cfg.get("l2w") and c >= 2: ex.append(lambda c=c: warm_l2(c - 2, 23))
            if c == 0: ex.append(lambda: (a("v_mov_b32 v35, 0"), a.vm("buffer_load_dwordx2 v[32:33], v35, s[88:91], 0 offen sc1", "nonce")))
            if c == 2: ex.append(nonce_chk)
            gs = []
            if typ == "D" and c < 5 and not cfg.get("noearly"): ex.append(lambda c=c: wd_dma(a, [0, 1, 2, 3, 6][c]))
            ts = [cq.pop(0) for _ in range(NT[c])]
            while gs or ts:
                n = gs.pop(0) if gs else None; t_ = ts.pop(0) if ts else None
                ex.append(lambda n=n, t_=t_: touch(t_))
            issue(c + 2, ex)
            a.wait_vm([("c", c + 1)])
        a("s_barrier")
        stamp(a, cfg, 2)
        a(f"""
        v_and_b32 v44, 31, v0
        s_lshl_b32 s37, s36, 5
        v_add_u32 v45, s37, v44
        s_lshl_b32 s38, s22, 7
        v_add_u32 v46, s38, v45
        v_lshlrev_b32 v46, 4, v46
        s_mov_b32 s37, {ST_OFF}
        """)
        a.vm("buffer_load_dwordx4 v[36:39], v46, s[32:35], s37 offen sc1", "st")
        if cfg.get("p2d"): a(f"s_lshl_b32 s38, s74, 14\ns_add_u32 s38, s38, {FLG_OFF}\nv_min_u32 v51, 21, v0\nv_add_u32 v51, s73, v51\nv_lshlrev_b32 v51, 7, v51")
        else: a(f"s_lshl_b32 s38, s74, 9\ns_add_u32 s38, s38, {FLG_OFF}\nv_and_b32 v51, 3, v0\nv_lshlrev_b32 v51, 7, v51")
        a.vm("buffer_load_dword v51, v51, s[32:35], s38 offen sc1", "flt")
        if typ == "F":
            a(f"""
            s_lshl_b32 s57, s23, 11
            s_lshl_b32 s58, s36, 9
            s_add_u32 s57, s57, s58
            s_add_u32 s57, s57, {CS_OFF}
            v_lshlrev_b32 v47, 3, v0
            v_bfe_u32 v48, v0, 3, 1
            s_and_b32 s58, s22, 1
            s_lshl_b32 s58, s58, 1
            v_add_u32 v48, s58, v48
            v_lshlrev_b32 v48, 3, v48
            v_and_b32 v49, 7, v0
            v_add_u32 v48, v48, v49
            v_lshlrev_b32 v48, 10, v48
            s_lshr_b32 s58, s22, 1
            s_lshl_b32 s58, s58, 7
            s_add_u32 s58, s58, {XID_OFF}
            """)
            a.vm("buffer_load_dwordx2 v[42:43], v48, s[32:35], s58 offen sc1", "st")
            def cb_inc():
                a("s_mov_b64 exec, 1\nds_add_u32 v56, v57 offset:4\ns_mov_b64 exec, -1")
            def ca_wait(n, lab):
                a(f"""
                s_mov_b32 s44, 0
{lab}:
                ds_read_b32 v58, v56
                s_add_u32 s44, s44, 1
                s_waitcnt lgkmcnt(0)
                v_readfirstlane_b32 s45, v58
                s_cmp_ge_u32 s44, {SPIN_MAX*16}
                s_cbranch_scc1 {lab}_OK
                s_cmp_lt_u32 s45, {n}
                s_cbranch_scc1 {lab}
{lab}_OK:
                """)
                a.lds_q = []
            a.vm("buffer_load_dwordx2 v[40:41], v47, s[32:35], s57 offen sc1", "st")
            for p in range(5): wd_dma(a, p)
            a.wait_vm([("c", 7)])
            cb_inc()
            stamp(a, cfg, 6)
            for p in range(5, 7): wd_dma(a, p)
        else:
            a.wait_vm([("c", 7)])
            stamp(a, cfg, 6)
            a("s_barrier")
            stamp(a, cfg, 8)
        a.wait_vm(["st"])
        a(f"""
        s_mov_b32 s56, 0
{L}_STCHK:
        v_cmp_eq_u32 vcc, s92, v38
        v_cmp_eq_u32 s[38:39], s93, v39
        {'v_cmp_eq_u32 s[44:45], s92, v41' if typ == "F" else ''}
        s_add_u32 s56, s56, 1
        s_nop 2
        s_and_b64 vcc, vcc, s[38:39]
        {'s_and_b64 vcc, vcc, s[44:45]' if typ == "F" else ''}
        s_cmp_eq_u64 vcc, -1
        s_cbranch_scc1 {L}_STOK
        s_cmp_ge_u32 s56, {SPIN_MAX}
        s_cbranch_scc1 {L}_STOK
        buffer_load_dwordx4 v[36:39], v46, s[32:35], s37 offen sc1
        {'buffer_load_dwordx2 v[40:41], v47, s[32:35], s57 offen sc1' if typ == "F" else ''}
        s_waitcnt vmcnt(0)
        s_branch {L}_STCHK
{L}_STOK:
        v_rcp_f32 v44, v37
        """)
        if cfg.get("prof"): a("s_mov_b32 s71, s71\ns_mov_b32 s101, s56")
        stamp(a, cfg, 11)
        if typ == "F":
            a(f"""
            v_mul_f32 v66, v37, v37
            v_lshlrev_b32 v45, 5, v45
            v_mul_f32 v62, {fhex(GC)}, v44
            v_mul_f32 v64, v44, v44
            v_mul_f32 v64, {fhex(0.044715)}, v64
            v_mul_f32 v64, v64, v62
            v_mov_b32 v60, v36
            v_mov_b32 v61, v36
            v_mov_b32 v63, v62
            v_mov_b32 v65, v64
            v_mov_b32 v67, v66
            v_add_u32 v45, {LDS_ST2}, v45
            ds_write_b128 v45, v[60:63]
            ds_write_b128 v45, v[64:67] offset:16
            v_lshrrev_b32 v45, 4, v0
            v_lshlrev_b32 v45, 7, v45
            s_and_b32 s38, s36, 1
            s_lshl_b32 s38, s38, 9
            s_lshr_b32 s39, s36, 1
            s_lshl_b32 s39, s39, {5 if shape == 32 else 6}
            s_add_u32 s38, s38, s39
            s_add_u32 s38, s38, {LDS_CS}
            """)
            if shape == 32:
                a("""v_and_b32 v46, 3, v0
                v_lshl_add_u32 v45, v46, 2, v45
                v_bfe_u32 v46, v0, 2, 1
                v_lshl_add_u32 v45, v46, 6, v45
                v_bfe_u32 v46, v0, 3, 1
                v_lshl_add_u32 v45, v46, 4, v45""")
            else:
                a("v_and_b32 v46, 15, v0\nv_lshl_add_u32 v45, v46, 2, v45")
            a(f"""
            v_add_u32 v45, s38, v45
            ds_write_b32 v45, v40
            v_cmp_eq_u32 vcc, s92, v43
            v_cmp_eq_u32 s[38:39], s100, v42
            v_mov_b32 v44, {LDS_MODE}
            v_mov_b32 v49, s92
            v_mov_b32 v50, s93
            s_nop 0
            s_and_b64 vcc, vcc, s[38:39]
            s_cmp_eq_u64 vcc, -1
            s_cselect_b32 s38, {0 if (cfg.get('remote') or cfg.get('p2d')) else 1}, 0
            v_mov_b32 v48, s38
            s_cmp_eq_u32 s36, 0
            s_cselect_b64 exec, 1, 0
            ds_write_b96 v44, v[48:50]
            s_mov_b64 exec, -1
            """)
            a.wait_lds_all()
            cb_inc()
            stamp(a, cfg, 3)
            a.wait_vm([("wd", 2)])
            for p in range(3): tr2(a, cfg, p, AS2 + p * 8)
            ca_wait(4, "L_CA4")
            stamp(a, cfg, 8)
            for p in range(7, 16): wd_dma(a, p)
            ca_wait(8, "L_CA8")
            for p in range(16, 22): wd_dma(a, p)
            a("s_branch L_P2")
        else:
            a(f"""
            v_lshlrev_b32 v45, 2, v45
            v_add_u32 v45, {LDS_AUX}, v45
            ds_write_b32 v45, v36
            ds_write_b32 v45, v44 offset:512
            s_waitcnt lgkmcnt(0)
            s_barrier
            """)
            stamp(a, cfg, 3)
            if cfg.get("noearly"): a("s_branch L_HI2")
            else:
                for p in range(3): tr2(a, cfg, p, AS2 + p * 8)
                for p in list(range(21, 13, -1)) + [10, 9, 8, 7, 5, 4]: wd_dma(a, p)
                a.wait_lds_all()
                for p in (13, 12, 11): wd_dma(a, p)
                a("s_branch L_P2")
    a.vm_q = []; a.lds_q = []
    a("L_HI:\ns_waitcnt lgkmcnt(0)")
    stamp(a, cfg, 0)
    common_srds(a); p2_setup(a, cfg); p2_setup2(a, cfg)
    a("s_cmp_lt_u32 s23, 11\ns_cbranch_scc1 L_HI2")
    get_nonce(a, "L_HI_N", 32)
    xid_publish(a, 36)
    a("L_HI2:")
    a.vm_q = []
    for p in [0, 1, 2] + list(range(21, 13, -1)) + list(range(10, 2, -1)): wd_dma(a, p)
    a.wait_vm([("wd", 2)])
    for p in range(3): tr2(a, cfg, p, AS2 + p * 8)
    a.wait_lds_all()
    for p in range(11, 14): wd_dma(a, p)
    a.vm_q = []
    phase2(a, cfg)

def flagchk(a, lab, vd, vaddr, so="s54"):
    a(f"""
    s_mov_b32 s56, 0
{lab}:
    v_cmp_eq_u32 vcc, s92, v{vd}
    v_cmp_eq_u32 s[38:39], s93, v{vd+1}
    s_add_u32 s56, s56, 1
    s_nop 2
    s_and_b64 vcc, vcc, s[38:39]
    s_cmp_eq_u64 vcc, -1
    s_cbranch_scc1 {lab}_OK
    s_cmp_ge_u32 s56, {SPIN_MAX}
    s_cbranch_scc1 {lab}_OK
    s_sleep 16
    buffer_load_dwordx2 {v(vd,2)}, v{vaddr}, s[32:35], {so} offen sc1
    s_waitcnt vmcnt(0)
    s_branch {lab}
{lab}_OK:
    """)

def phase2(a, cfg):
    a("L_P2:")
    stamp(a, cfg, 4)
    TA, TD, TM = 128, 129, 130
    a(f"""
    s_cmp_eq_u32 s36, 3
    s_cselect_b32 s44, 19, 21
    v_min_u32 v{TA}, s44, v0
    v_add_u32 v{TA}, s73, v{TA}
    v_lshlrev_b32 v{TA}, 2, v{TA}
    s_lshl_b32 s55, s74, 9
    s_add_u32 s55, s55, {FLG_OFF}
    s_mov_b32 s57, 0
    v_lshlrev_b32 v6, 4, v0
    s_add_u32 s53, s72, {LDS_W}
    v_add_u32 v7, s53, v6
    s_lshr_b32 s50, s36, 1
    s_lshl_b32 s50, s50, 5
    s_add_u32 s50, s50, s74
    s_and_b32 s51, s36, 1
    s_lshl_b32 s51, s51, 10
    s_add_u32 s50, s50, s51
    s_lshl_b32 s50, s50, 10
    s_lshl_b32 s51, s75, 7
    s_add_u32 s50, s50, s51
    s_add_u32 s51, s50, {8*65536}
    v_lshrrev_b32 v5, 3, v0
    v_and_b32 v6, 7, v0
    v_xor_b32 v6, v6, v5
    v_lshlrev_b32 v5, 16, v5
    v_lshl_add_u32 v5, v6, 4, v5
    """)
    def hload(n, part=None):
        h = HF2 + (n % HR2) * 8
        if part in (None, 0):
            rot_base(a, n, 96, 97)
            a(f"s_add_u32 s53, s53, {n*1024}\ns_cmp_ge_u32 s53, 88064\ns_cselect_b32 s43, {OOB}, s53")
        for rt in ((0, 1) if part is None else (part,)): a.vm(f"buffer_load_dwordx4 {v(h+4*rt,4)}, v{VH2+rt}, s[32:35], s43 offen sc1", ("h", n))
    def mm(n, fill):
        h = HF2 + (n % HR2) * 8
        a.wait_vm([("h", n)])
        a.wait_lds([("a", n, 0), ("a", n, 1)])
        A = AS2 + n * 8 if n < 3 else AF2 + (n & 1) * 8
        k = 0
        for ct in range(2):
            for rt in range(2):
                c = ACC2 + (rt * 2 + ct) * 16
                if not cfg.get("nomm2") or n == 0: a(f"v_mfma_f32_32x32x16_bf16 {v(c,16)}, {v(A+ct*4,4)}, {v(h+rt*4,4)}, {'0' if n == 0 else v(c,16)}")
                fill[k](); k += 1
    PD = cfg.get("pd", 10)
    def feed(n, part=None): hload(n, part)
    a(f"""
    s_mov_b32 s56, 0
L_HW:
    buffer_load_dword v{TM}, v{TA}, s[32:35], s55 offen sc1
    s_add_u32 s56, s56, 1
    s_waitcnt vmcnt(0)
    v_cmp_eq_u32 vcc, s92, v{TM}
    s_cmp_ge_u32 s56, {SPIN_MAX}
    s_cbranch_scc1 L_HW_OK
    s_nop 1
    s_cmp_eq_u64 vcc, -1
    s_cbranch_scc1 L_HW_OK
    s_sleep {cfg.get('hsl', 1)}
    s_branch L_HW
L_HW_OK:
    s_mov_b32 s57, s56
    """)
    a.vm_q = []
    stamp(a, cfg, 5)
    hload(0)
    for n in range(1, PD): feed(n)
    tr2(a, cfg, 3, AF2 + 8)
    for n in range(22):
        nop = lambda: None
        t2 = (lambda: tr2(a, cfg, n + 1, AF2 + ((n + 1) & 1) * 8)) if (n >= 3 and n + 1 < 22) else nop
        f0 = (lambda: feed(n + PD, 0)) if n + PD < 22 else nop
        f1 = (lambda: feed(n + PD, 1)) if n + PD < 22 else nop
        xl = nop
        if n in (4, 5):
            def xl(u=n - 4):
                a(f"s_add_u32 m0, s70, {LDS_E + u*1024}\ns_nop 0")
                a.vm(f"buffer_load_dwordx4 v5, s[24:27], s{50+u} offen lds", "xr")
        mm(n, [t2, f0, f1, xl])
        if not cfg.get("nost"):
            if n + PD == 16: stamp(a, cfg, 7)
    stamp(a, cfg, 9)
    if cfg.get("wb1"): a("s_lshr_b32 s44, s2, 3\ns_lshl_b32 s44, s44, 2\ns_add_u32 s44, s44, s36\ns_cmp_eq_u32 s44, 124\ns_cbranch_scc0 L_NOWB\nbuffer_wbl2 sc1\nL_NOWB:")
    a("s_nop 7\ns_nop 1")
    for o in (0, 2, 1, 3):
        for q in range(4): a(f"ds_write_b128 v7, {v(ACC2+o*16+q*4,4)} offset:{(o&1)*4096 + (o>>1)*32768 + q*1024}")
    a("s_waitcnt lgkmcnt(0)\ns_barrier")
    stamp(a, cfg, 10)
    prof_flush(a, cfg)
    a("s_endpgm")

def final(a, cfg):
    Y, ZF, GF, XR, TF = 16, 32, 48, 64, 72
    a(f"""
L_FIN:
    s_setprio 0
    s_and_b32 s74, s2, 7
    s_lshl_b32 s74, s74, 2
    s_lshr_b32 s75, s2, 6
    s_add_u32 s74, s74, s75           ; g
    s_bfe_u32 s75, s2, 0x30003        ; cg2
    s_and_b32 s45, s20, 1             ; ct
    s_lshr_b32 s46, s20, 1            ; rt
    s_mov_b32 s54, {FL_OFF}
    s_sub_u32 s47, 7, s75
    s_sub_u32 s48, 8, s75
    s_and_b32 s48, s48, 3
    s_cmp_lt_u32 s75, 4
    s_cselect_b32 s47, s75, s47
    s_cselect_b32 s48, s75, s48
    s_sub_u32 s48, s48, s47
    v_and_b32 v8, 15, v0
    v_lshlrev_b32 v8, 2, v8
    v_bfe_u32 v9, v0, 4, 1
    v_mul_lo_u32 v9, s48, v9
    v_add3_u32 v8, v8, v9, s47
    v_lshlrev_b32 v8, 7, v8
    """)
    a.vm_q = []
    a.vm(f"buffer_load_dwordx2 {v(TF,2)}, v8, s[32:35], s54 offen sc1", "fd")
    a(f"""
    s_lshl_b32 s47, s75, 6
    s_lshl_b32 s48, s45, 5
    s_add_u32 s47, s47, s48
    s_lshl_b32 s48, s46, 5
    s_add_u32 s48, s48, s74           ; residue
    s_lshl_b32 s48, s48, 10
    s_lshl_b32 s53, s47, 1
    s_add_u32 s48, s48, s53
    v_and_b32 v6, 31, v0
    v_lshrrev_b32 v7, 5, v0
    v_lshlrev_b32 v5, 16, v6
    v_lshl_add_u32 v5, v7, 4, v5
    v_add_u32 v5, s48, v5
    s_lshl_b32 s48, s45, 2
    v_add_u32 v10, s48, v7
    v_and_b32 v11, 7, v0
    v_xor_b32 v10, v10, v11
    v_lshlrev_b32 v10, 4, v10
    v_lshl_add_u32 v10, v6, 7, v10
    s_lshl_b32 s48, s46, 12
    s_add_u32 s48, s48, {LDS_E}
    v_add_u32 v10, s48, v10
    v_xor_b32 v11, 32, v10
    """)
    a(f"""
    s_cmp_lg_u32 s74, 0
    s_cselect_b32 s76, s46, 0         ; mirror
    s_sub_u32 s77, s46, s76           ; delta
    s_sub_u32 s78, 32, s74
    s_cmp_eq_u32 s46, 0
    s_cselect_b32 s78, s74, s78       ; tz
    s_mul_i32 s78, s78, {ZROW}
    s_add_u32 s78, s78, {Z_OFF}
    v_add_u32 v1, s47, v6
    v_sub_u32 v2, 512, v1
    v_and_b32 v2, 511, v2
    v_sub_u32 v3, 31, v6
    s_cmp_eq_u32 s76, 1
    s_cselect_b64 vcc, -1, 0
    v_cndmask_b32 v1, v1, v2, vcc
    v_cndmask_b32 v6, v6, v3, vcc
    v_sub_u32 v2, 512, v1
    v_and_b32 v2, 255, v2
    v_or_b32 v2, 256, v2
    v_cmp_gt_u32 vcc, 256, v1
    s_nop 1
    v_cndmask_b32 v1, v2, v1, vcc
    v_mul_u32_u24 v2, {4*33*ZROW}, v7
    v_lshl_add_u32 v1, v1, 2, v2      ; Z offset
    v_lshlrev_b32 v6, 1, v6
    v_add_u32 v6, s77, v6
    v_cvt_f32_u32 v6, v6
    v_mul_f32 v6, {fhex(1/64)}, v6
    v_cvt_f32_u32 v7, v7
    v_mul_f32 v7, 4.0, v7
    v_mul_f32 v7, v7, v6
    """)
    def g_gen(n):
        q, d = n >> 2, n & 3
        a(f"""v_fmamk_f32 v2, v6, {fhex(float(8*q+d))}, v7
        v_cos_f32 v3, v2
        v_sin_f32 v4, v2
        s_nop 0
        v_cvt_pk_bf16_f32 v{GF+n}, v3, v4""")
    for n in range(8): g_gen(n)
    a.wait_vm(["fd"])
    flagchk(a, "L_FD", TF, 8)
    stamp(a, cfg, 9)
    for q in range(4):
        for d in range(4):
            a(f"s_add_u32 s53, s78, {(8*q + d)*33*ZROW}")
            a.vm(f"buffer_load_dword v{ZF+q*4+d}, v1, s[32:35], s53 offen sc1", "z")
    for n in range(8, 16): g_gen(n)
    a(f"""
    s_mov_b32 s48, 0xffff0000
    s_lshl_b32 s53, s45, 12
    s_lshl_b32 s54, s46, 15
    s_add_u32 s53, s53, s54
    s_add_u32 s53, s53, {LDS_W}
    v_lshlrev_b32 v9, 4, v0
    v_add_u32 v9, s53, v9""")
    a.wait_vm_all()
    for q in range(4):
        a(f"v_mfma_f32_32x32x16_bf16 {v(Y,16)}, {v(ZF+q*4,4)}, {v(GF+q*4,4)}, {'0' if q == 0 else v(Y,16)}")
    a("s_mov_b32 s24, s82\ns_mov_b32 s25, s83")
    stamp(a, cfg, 10)
    a("s_barrier")
    a.lds_q = []
    R = 96
    a.lds(f"ds_read_b128 {v(XR,4)}, v10", "x")
    a.lds(f"ds_read_b128 {v(XR+4,4)}, v11", "x")
    for w in range(4):
        if w == 3:
            a.wait_lds([("r", 0)])
            a(f"""v_permlane32_swap_b32 v{XR}, v{XR+2}
            v_permlane32_swap_b32 v{XR+1}, v{XR+3}
            v_permlane32_swap_b32 v{XR+4}, v{XR+6}
            v_permlane32_swap_b32 v{XR+5}, v{XR+7}""")
        for q in range(4): a.lds(f"ds_read_b128 {v(R+w*16+q*4,4)}, v9 offset:{w*8192 + q*1024}", ("r", w))
    for Q in range(4):
        for e in range(2):
            src = XR + Q * 2 + e
            a(f"v_lshlrev_b32 v{80+Q*4+2*e}, 16, v{src}\nv_and_b32 v{80+Q*4+2*e+1}, s48, v{src}")
    for w in range(1, 4):
        a.wait_lds([("r", w)])
        for i in range(0, 16, 2): a(f"v_pk_add_f32 {v(R+i,2)}, {v(R+i,2)}, {v(R+w*16+i,2)}")
    for i in range(16): a(f"v_mul_f32 v{R+16+i}, {fhex(-LOG2E)}, v{R+i}")
    for i in range(16): a(f"v_exp_f32 v{R+16+i}, v{R+16+i}")
    for i in range(0, 16, 2): a(f"v_pk_mul_f32 {v(R+i,2)}, {v(R+i,2)}, {v(Y+i,2)}")
    for i in range(16): a(f"v_add_f32 v{R+16+i}, 1.0, v{R+16+i}")
    for i in range(16): a(f"v_rcp_f32 v{R+16+i}, v{R+16+i}")
    a("s_nop 0")
    for i in range(0, 16, 2): a(f"v_pk_fma_f32 {v(R+i,2)}, {v(R+i,2)}, {v(R+16+i,2)}, {v(80+i,2)}")
    for i in range(8): a(f"v_cvt_pk_bf16_f32 v{64+i}, v{R+2*i}, v{R+2*i+1}")
    of = cfg.get("outflag", 0)
    fl = ["", " sc1", " nt", " sc0 sc1"][of]
    a(f"""s_nop 1
    v_permlane32_swap_b32 v64, v66
    v_permlane32_swap_b32 v65, v67
    v_permlane32_swap_b32 v68, v70
    v_permlane32_swap_b32 v69, v71
    buffer_store_dwordx4 v[64:67], v5, s[24:27], 0 offen{fl}
    buffer_store_dwordx4 v[68:71], v5, s[24:27], 0 offen offset:32{fl}""")
    if cfg.get("prof"): a("s_waitcnt vmcnt(0)")
    stamp(a, cfg, 11)
    prof_flush(a, cfg)
    if "enc" in cfg:
        k, wv, lo, hi, op = cfg["enc"], cfg.get("encw", 0), cfg.get("enclo", 0), cfg.get("enchi", 176), ("min" if cfg.get("encmin") else "max")
        a(f"""
        s_or_b32 s42, s2, s20
        s_cmp_eq_u32 s42, 0
        s_cbranch_scc0 L_END
        s_add_u32 s42, s92, 4000
L_E1:
        s_memrealtime s[40:41]
        s_waitcnt lgkmcnt(0)
        s_sub_u32 s41, s40, s42
        s_cmp_lt_i32 s41, 0
        s_cbranch_scc1 L_E1
        v_mov_b32 v3, {'0x7fffffff' if op == 'min' else '0x80000000'}
        """)
        for i in range(4):
            a(f"v_add_u32 v4, {64*i}, v0\nv_max_u32 v4, {lo}, v4\nv_min_u32 v4, {hi-1}, v4\nv_lshlrev_b32 v4, 9, v4")
            for w in range(4):
                a(f"s_mov_b32 s42, {PROF_BASE + (wv*4 + w)*64 + k*4}\nbuffer_load_dword v5, v4, s[44:47], s42 offen sc1\ns_waitcnt vmcnt(0)\nv_subrev_u32 v5, s92, v5\nv_{op}_i32 v3, v3, v5")
        a(f"""
        s_mov_b32 s43, 0
        v_readlane_b32 s50, v3, 0
L_E2:
        s_nop 3
        v_readlane_b32 s51, v3, s43
        s_nop 3
        s_{op}_i32 s50, s50, s51
        s_add_u32 s43, s43, 1
        s_cmp_lt_u32 s43, 64
        s_cbranch_scc1 L_E2
        s_mul_i32 s50, s50, 10
        s_add_u32 s42, s92, s50
        s_add_u32 s42, s42, 6000
L_E3:
        s_memrealtime s[40:41]
        s_waitcnt lgkmcnt(0)
        s_sub_u32 s41, s40, s42
        s_cmp_lt_i32 s41, 0
        s_cbranch_scc1 L_E3
        """)
    a("s_endpgm")

def geglu(a, items, T, O):
    for g, u, cg, cu, st in items: a(f"v_pk_fma_f32 {v(g,2)}, {v(st,2)}, {v(cg,2)}, {v(g,2)}")
    for i, (g, u, cg, cu, st) in enumerate(items): a(f"v_pk_mul_f32 {v(T+2*i,2)}, {v(g,2)}, {v(g,2)}")
    for i, (g, u, cg, cu, st) in enumerate(items): a(f"v_pk_fma_f32 {v(T+2*i,2)}, {v(T+2*i,2)}, {v(st+4,2)}, {v(st+2,2)}")
    for i, (g, u, cg, cu, st) in enumerate(items): a(f"v_pk_mul_f32 {v(T+2*i,2)}, {v(T+2*i,2)}, {v(g,2)}")
    for i in range(8): a(f"v_exp_f32 v{T+i}, v{T+i}")
    for g, u, cg, cu, st in items: a(f"v_pk_fma_f32 {v(u,2)}, {v(st,2)}, {v(cu,2)}, {v(u,2)}")
    for i, (g, u, cg, cu, st) in enumerate(items): a(f"v_pk_fma_f32 {v(T+2*i,2)}, {v(T+2*i,2)}, {v(st+6,2)}, {v(st+6,2)}")
    for i in range(8): a(f"v_rcp_f32 v{T+i}, v{T+i}")
    for g, u, cg, cu, st in items: a(f"v_pk_mul_f32 {v(u,2)}, {v(u,2)}, {v(g,2)}")
    for i, (g, u, cg, cu, st) in enumerate(items): a(f"v_pk_mul_f32 {v(u,2)}, {v(u,2)}, {v(T+2*i,2)}")
    for i, (g, u, cg, cu, st) in enumerate(items): a(f"v_cvt_pk_bf16_f32 v{O+i}, v{u}, v{u+1}")

def mma_ffn(a, cfg):
    shape = cfg["shape"]
    ACC = 128
    VXA, VWA = 8, 12
    XF, WF = (16, 32) if shape == 32 else (16, 48)
    a(f"""
    s_or_b32 s38, s2, s20
    s_cmp_eq_u32 s38, 0
    s_cbranch_scc0 L_NONONCE
    s_memrealtime s[92:93]
    s_waitcnt lgkmcnt(0)
    s_or_b32 s92, s92, 1
    v_mov_b32 v2, s92
    v_mov_b32 v3, s93
    v_mov_b32 v4, 0
    s_mov_b64 exec, 1
    buffer_store_dwordx2 v[2:3], v4, s[88:91], 0 offen sc1
    s_mov_b64 exec, -1
L_NONONCE:
    """)
    if shape == 32:
        a(f"""
        v_and_b32 v1, 31, v0
        v_lshrrev_b32 v2, 5, v0
        v_bfe_u32 v3, v0, 1, 3
        v_xor_b32 v3, v3, v2
        v_lshlrev_b32 v3, 4, v3
        v_lshl_add_u32 v3, v1, 7, v3
        s_lshl_b32 s38, s36, 13
        v_add_u32 v{VXA}, s38, v3
        v_xor_b32 v{VXA+1}, 32, v{VXA}
        v_xor_b32 v{VXA+2}, 64, v{VXA}
        v_xor_b32 v{VXA+3}, 96, v{VXA}
        v_bfe_u32 v3, v0, 2, 2            ; r
        v_bfe_u32 v4, v0, 4, 1            ; mat
        v_lshl_add_u32 v5, v2, 3, v3      ; 8h + r
        v_lshlrev_b32 v5, 8, v5
        v_lshl_add_u32 v5, v4, 14, v5
        v_lshl_or_b32 v3, v3, 1, v4       ; g = r<<1 | mat
        """)
        nxa = 4
    else:
        a(f"""
        v_and_b32 v1, 15, v0
        v_lshrrev_b32 v2, 4, v0           ; g
        v_bfe_u32 v3, v0, 1, 3
        v_xor_b32 v3, v3, v2
        v_lshlrev_b32 v3, 4, v3
        v_lshl_add_u32 v3, v1, 7, v3
        s_lshl_b32 s38, s36, 13
        v_add_u32 v{VXA}, s38, v3
        v_xor_b32 v{VXA+1}, 64, v{VXA}
        v_bfe_u32 v3, v0, 2, 2            ; r
        v_and_b32 v4, 1, v2
        v_lshl_add_u32 v5, v2, 3, v3      ; 8g + r
        v_lshlrev_b32 v5, 8, v5
        v_lshl_or_b32 v3, v3, 1, v4       ; (r<<1) | (g&1)
        """)
        nxa = 2
    a(f"""
    s_lshl_b32 s38, s37, 2
    v_xor_b32 v3, s38, v3             ; u ^ g for j = 0
    v_lshl_add_u32 v5, v3, 5, v5
    v_and_b32 v4, 3, v0
    v_lshl_add_u32 v5, v4, 3, v5
    v_add_u32 v{VWA}, {LDS_W}, v5
    v_xor_b32 v{VWA+1}, 32, v{VWA}
    v_xor_b32 v{VWA+2}, 64, v{VWA}
    v_xor_b32 v{VWA+3}, 96, v{VWA}
    """)
    for i in range(128):
        a(f"v_mov_b32 v{ACC+i}, 0")
    if cfg.get("warmlate"): warm(a, cfg, "F")
    VCS, VST, VH = 112, 113, 114
    a(f"""
    s_lshl_b32 s38, s37, 9
    s_add_u32 s38, s38, {LDS_CS}
    v_lshlrev_b32 v3, {6 if shape == 32 else 4}, v2
    v_add_u32 v{VCS}, s38, v3
    s_lshl_b32 s38, s36, 11
    s_add_u32 s38, s38, {LDS_ST2}
    v_lshlrev_b32 v4, 5, v1
    v_add_u32 v{VST}, s38, v4
    s_lshl_b32 s38, s22, 1
    s_add_u32 s38, s38, s36           ; g
    s_lshl_b32 s78, s38, {14 if cfg.get("p2d") else 9}
    s_add_u32 s78, s78, {FLG_OFF}
    s_mul_i32 s38, s38, {2*88064}
    """)
    if shape == 32:
        a(f"""
        v_lshlrev_b32 v5, 4, v0
        v_add_u32 v{VH}, s38, v5
        v_add_u32 v{VH+1}, 88064, v{VH}
        """)
    else:
        a(f"""
        v_lshrrev_b32 v5, 1, v2
        v_lshlrev_b32 v5, 9, v5
        v_and_b32 v7, 1, v2
        v_lshl_add_u32 v7, v7, 3, v5      ; (g>>1)*512 + (g&1)*8
        v_lshl_add_u32 v5, v1, 4, v7
        v_add_u32 v{VH}, s38, v5
        v_add_u32 v{VH+1}, 256, v{VH}
        v_add_u32 v{VH+2}, 88064, v{VH}
        v_add_u32 v{VH+3}, {88064+256}, v{VH}
        """)
    a(f"""v_mov_b32 v118, {LDS_MODE}
    v_mov_b32 v119, 0
    v_and_b32 v5, 15, v0
    v_lshlrev_b32 v5, 6, v5
    v_bfe_u32 v7, v0, 4, 1
    v_mul_u32_u24 v7, 88064, v7
    v_add3_u32 v123, v5, v7, s38
    v_mov_b32 v122, {LDS_CA}
    v_mov_b32 v124, 1""")
    a(f"""
    s_lshl_b32 s79, s23, 3
    s_lshl_b32 s39, s37, 2
    s_add_u32 s79, s79, s39
    s_mov_b32 s56, 0
    s_mov_b32 s57, 0
    s_setprio {cfg.get('pm', 0)}
    """)
    stamp(a, cfg, 0)
    if shape == 32:
        nstep, nA, nB = 4, 4, 2
        XS, WS = 8, 16
        def xread(st, t): return f"ds_read_b128 {v(XF + (st&1)*XS + t*4, 4)}, v{VXA+st%nstep} offset:{t*4096}"
        def wread(st, p, q): return f"ds_read_b64_tr_b16 {v(WF + (st&1)*WS + p*4 + q*2, 2)}, v{VWA+p} offset:{(st%nstep)*4096 + q*1024}"
        def mfma(st, p, t):
            c = ACC + (p * 2 + t) * 16
            return f"v_mfma_f32_32x32x16_bf16 {v(c,16)}, {v(WF+(st&1)*WS+p*4,4)}, {v(XF+(st&1)*XS+t*4,4)}, {v(c,16)}"
        per_gap = [2, 2, 2, 2, 1, 1]
        waits = {0: 1, 2: 3}
    else:
        nstep, nA, nB = 2, 8, 4
        XS, WS = 16, 32
        def xread(st, t): return f"ds_read_b128 {v(XF + (st&1)*XS + t*4, 4)}, v{VXA+st%nstep} offset:{t*2048}"
        def wread(st, p, q): return f"ds_read_b64_tr_b16 {v(WF + (st&1)*WS + p*4 + q*2, 2)}, v{VWA+(p>>1)} offset:{(p&1)*16384 + (st%nstep)*8192 + q*1024}"
        def mfma(st, p, t):
            c = ACC + (p * 4 + t) * 4
            return f"v_mfma_f32_16x16x32_bf16 {v(c,4)}, {v(WF+(st&1)*WS+p*4,4)}, {v(XF+(st&1)*XS+t*4,4)}, {v(c,4)}"
        per_gap = [1] * 20
        waits = {0: 3, 3: 7}
    def readlist(st):
        r = [(xread(st, 0), ("x", st % nstep, 0)), (wread(st, 0, 0), ("w", st % nstep, 0)), (wread(st, 0, 1), ("w", st % nstep, 0))]
        r += [(xread(st, t), ("x", st % nstep, t)) for t in range(1, nB)]
        for p in range(1, nA): r += [(wread(st, p, q), ("w", st % nstep, p)) for q in range(2)]
        return r
    G = nA * nB
    salu = ["s_add_u32 s57, s57, 1", "s_cmp_eq_u32 s57, 3", "s_cselect_b32 s58, -2, 1", "s_cselect_b32 s57, 0, s57", "s_lshl_b32 s59, s58, 15", "s_lshl_b32 s58, s58, 14"]
    xup = [f"v_add_u32 v{VXA+i}, s58, v{VXA+i}" for i in range(nxa)]
    wup = [f"v_add_u32 v{VWA+i}, s59, v{VWA+i}" for i in range(4)]
    extra = {}
    if shape == 32:
        extra[(0, 6)] = salu[:3]; extra[(0, 7)] = salu[3:]
        extra[(1, 6)] = xup[:2]; extra[(1, 7)] = xup[2:3]
        extra[(2, 6)] = xup[3:] + wup[:2]; extra[(2, 7)] = wup[2:]
        extra[(3, 7)] = []
        bar_gap = 0
    else:
        for i, x_ in enumerate(salu): extra[(0, 20 + i)] = [x_]
        for i, x_ in enumerate(xup + wup): extra[(0, 26 + i)] = [x_]
        bar_gap = 0
    a.lds_q = []
    a("s_barrier")
    stamp(a, cfg, 1)
    cyc(a, cfg, 0)
    for ins, tag in readlist(0): a.lds(ins, tag)
    if len(a.lds_q) > 15: a.wait_lds([("w", 0, 1)])
    entry_q = list(a.lds_q)
    a(".p2align 3\nL_FLOOP:")
    for st in range(nstep):
        rl = readlist(st + 1); pg = list(per_gap)
        last = st == nstep - 1
        for p in range(nA):
            for t in range(nB):
                gap = p * nB + t
                if t == 0 and p in waits:
                    a.wait_lds([("w", st, pp) for pp in range(waits[p] + 1)] + [("x", st, tt) for tt in range(nB)])
                if not cfg.get('nomfma'): a(mfma(st, p, t))
                if last and gap == bar_gap:
                    a.wait_lds_all(); a("s_cmp_ge_u32 s56, 6\ns_cbranch_scc1 L_SOFT\ns_barrier\nL_SOFTB:")
                if (not last or gap > bar_gap) and pg:
                    for _ in range(pg.pop(0)):
                        ins, tag = rl.pop(0); a.lds(ins, tag)
                for x_ in extra.get((st, gap), []): a(x_)
                if last and gap == G - 2: a("s_add_u32 s56, s56, 1\ns_cmp_lt_u32 s56, 8")
        assert not rl
    if len(a.lds_q) > len(entry_q): a.wait_lds([("w", 0, 1)])
    assert a.lds_q == entry_q, (a.lds_q, entry_q)
    a("s_cbranch_scc1 L_FLOOP")
    a.lds_q = []
    stamp(a, cfg, 2)
    cyc(a, cfg, 1)
    ST, CS, T, O = (16, 32, 72, 80) if shape == 32 else (16, 48, 72, 80)
    SL = 96
    a(f"s_setprio {cfg.get('pe', 0)}\ns_waitcnt lgkmcnt(0)")
    nst = 2 if shape == 32 else 4
    a(f"""
    s_mov_b32 s44, 0
L_CB8:
    ds_read_b32 v120, v122 offset:4
    s_add_u32 s44, s44, 1
    s_waitcnt lgkmcnt(0)
    v_readfirstlane_b32 s45, v120
    s_cmp_ge_u32 s44, {SPIN_MAX*16}
    s_cbranch_scc1 L_CB8_OK
    s_cmp_lt_u32 s45, 8
    s_cbranch_scc1 L_CB8
L_CB8_OK:
    """)
    a.lds("ds_read_b96 v[120:122], v118", "st")
    for t in range(nst):
        for q in range(2): a.lds(f"ds_read_b128 {v(ST+t*8+q*4,4)}, v{VST} offset:{t*(1024 if shape == 32 else 512) + q*16}", "st")
    alt = []
    def store2(ins):
        k = len(alt)
        a(f"s_cbranch_vccz L_SA{k}\n{ins}\nL_SB{k}:")
        alt.append(ins)
    def flag(j):
        a(f"s_add_u32 s40, s77, {(128 if cfg.get('p2d') else 4)*j}\ns_mov_b64 exec, 1")
        store2("buffer_store_dword v121, v119, s[32:35], s40 offen")
        a("s_mov_b64 exec, -1")
    def rd_cs(j):
        if shape == 32:
            for q in range(4): a.lds(f"ds_read_b128 {v(CS+(j&1)*16+q*4,4)}, v{VCS} offset:{j*128+q*16}", ("cs", j))
        else:
            for m in range(2): a.lds(f"ds_read_b128 {v(CS+(j&1)*8+m*4,4)}, v{VCS} offset:{j*128+m*64}", ("cs", j))
    rd_cs(0)
    a(f"s_lshl_b32 s77, s79, {7 if cfg.get('p2d') else 2}\ns_add_u32 s77, s77, s78")
    a.wait_lds(["st"])
    a("v_cmp_ne_u32 vcc, 0, v120\nv_readfirstlane_b32 s92, v121\nv_readfirstlane_b32 s93, v122")
    if cfg.get("prof"): a("v_readfirstlane_b32 s66, v120")
    stamp(a, cfg, 3)
    cyc(a, cfg, 0, 8)
    hm = cfg.get("hm", 0)
    grp = cfg.get("grp", 1)
    st_ = (lambda x_: a(x_ + " sc1")) if hm == 1 else store2
    def hstore(OO, hf):
        if shape == 32: st_(f"buffer_store_dwordx4 {v(OO+hf*4,4)}, v{VH+hf}, s[32:35], s39 offen")
        else:
            st_(f"buffer_store_dwordx2 {v(OO+hf*4,2)}, v{VH+2*hf}, s[32:35], s39 offen")
            st_(f"buffer_store_dwordx2 {v(OO+hf*4+2,2)}, v{VH+2*hf+1}, s[32:35], s39 offen")
    pend = []
    for j in range(4):
        if j + 1 < 4: rd_cs(j + 1)
        a.wait_lds([("cs", j)])
        if j == 2: a(f"s_cmp_ge_u32 s79, 84\ns_cbranch_scc1 L_MTAIL")
        a(f"s_add_u32 s39, s79, {j}\ns_lshl_b32 s39, s39, 10")
        OO = O + (j & 1) * 8
        for hf in range(2):
            if shape == 32:
                c = ACC + (j * 2 + hf) * 16
                geglu(a, [(c + 2*p, c + 8 + 2*p, CS + (j&1)*16 + 2*p, CS + (j&1)*16 + 8 + 2*p, ST + hf*8) for p in range(4)], T, OO + hf*4)
            else:
                items = []
                for t in (2 * hf, 2 * hf + 1):
                    cg_, cu_ = ACC + ((2*j) * 4 + t) * 4, ACC + ((2*j+1) * 4 + t) * 4
                    for p in range(2): items.append((cg_ + 2*p, cu_ + 2*p, CS + 8*(j&1) + 2*p, CS + 8*(j&1) + 4 + 2*p, ST + t*8))
                geglu(a, items, T, OO + hf*4)
            if grp == 4: hstore(OO, hf)
        if len(pend) >= grp:
            a("s_waitcnt vmcnt(0)")
            for p_ in pend: flag(p_)
            pend = []
        if j == 1: tail_pend = pend + [1]
        if grp != 4:
            for hf in range(2): hstore(OO, hf)
        if cfg.get("rb"): a("buffer_load_dword v124, v123, s[32:35], s39 offen sc1")
        pend.append(j)
    a.lds_q = []
    cyc(a, cfg, 1, 8)
    stamp(a, cfg, 4)
    a("s_waitcnt vmcnt(0)")
    for p_ in pend: flag(p_)
    a("L_MDONE:")
    stamp(a, cfg, 5)
    final(a, cfg)
    a("L_MTAIL:\ns_waitcnt vmcnt(0)")
    for p_ in tail_pend: flag(p_)
    stamp(a, cfg, 4)
    a("s_branch L_MDONE")
    a(f"""
L_SOFT:
    s_mov_b64 exec, 1
    ds_add_u32 v122, v124
    s_mov_b64 exec, -1
    s_cmp_eq_u32 s56, 6
    s_cbranch_scc0 L_SOFTB
    s_mov_b32 s44, 0
L_SOFT1:
    ds_read_b32 v120, v122 offset:4
    s_add_u32 s44, s44, 1
    s_waitcnt lgkmcnt(0)
    v_readfirstlane_b32 s45, v120
    s_cmp_ge_u32 s44, {SPIN_MAX*16}
    s_cbranch_scc1 L_SOFTB
    s_cmp_lt_u32 s45, 4
    s_cbranch_scc1 L_SOFT1
    s_branch L_SOFTB
    """)
    for k, ins in enumerate(alt): a(f"L_SA{k}:\n{ins} sc1\ns_branch L_SB{k}")

def mma_dft(a, cfg):
    ACC, OUT, FF, BF = 128, 192, 64, 96
    VXA, VWA = 8, 12
    XF, WF = 16, 32
    if cfg.get("warmlate"): warm(a, cfg, "D")
    a(f"""
    s_lshr_b32 s38, s23, 1
    s_and_b32 s39, s23, 1
    s_lshl_b32 s39, s39, 5
    s_add_u32 s38, s38, s39
    s_lshl_b32 s39, s22, 1
    s_add_u32 s38, s38, s39
    s_lshl_b32 s39, s20, 9
    s_add_u32 s38, s38, s39
    s_lshl_b32 s38, s38, 10
    v_lshrrev_b32 v2, 3, v0
    v_and_b32 v3, 7, v0
    v_lshlrev_b32 v4, 16, v2
    v_lshl_add_u32 v4, v3, 4, v4
    v_mov_b32 v5, 0
    """)
    for c in range(8): a(f"buffer_load_dwordx4 {v(16+4*c,4)}, v4, s[24:27], s38 offen offset:{c*128}")
    a("buffer_load_dwordx2 v[6:7], v5, s[88:91], 0 offen sc1")
    a(f"s_lshl_b32 s53, s22, 2\ns_add_u32 s53, s53, s23\ns_lshl_b32 s53, s53, 7\ns_add_u32 s53, s53, {FL_OFF}\nbuffer_load_dword v59, v5, s[32:35], s53 offen")
    a(f"""
    s_getpc_b64 s[44:45]
L_PC:
    s_add_u32 s44, s44, L_CSTAB-L_PC
    s_addc_u32 s45, s45, 0
    s_lshl_b32 s39, s23, 6
    s_lshl_b32 s40, s37, 5
    s_add_u32 s79, s39, s40           ; e base
    v_and_b32 v1, 31, v0
    v_add_u32 v60, s79, v1
    v_lshlrev_b32 v60, 2, v60
    global_load_dword v62, v60, s[44:45]
    global_load_dword v63, v60, s[44:45] offset:1024
    """)
    a(f"""
    v_lshrrev_b32 v61, 5, v0          ; h
    s_lshl_b32 s78, s22, 1
    s_add_u32 s78, s78, s36           ; s0
    v_cvt_f32_u32 v56, v1
    v_mul_f32 v56, {fhex(1/2048)}, v56
    v_lshlrev_b32 v57, 8, v61
    v_add_u32 v57, s78, v57
    v_cvt_f32_u32 v57, v57
    v_mul_f32 v57, v57, v56
    v_cmp_eq_u32 vcc, 0, v1
    """)
    def fgen(q, d):
        for e in range(2):
            i = 2 * d + e
            k = 32 * (q >> 1) + 64 * (16 * (q & 1) + 8 * (i >> 2) + (i & 3))
            a(f"v_fmamk_f32 v{48+e}, v56, {fhex(float(k))}, v57")
        a(f"""v_cos_f32 v50, v48
        v_cos_f32 v51, v49
        v_sin_f32 v52, v48
        v_sin_f32 v53, v49
        v_cvt_pk_bf16_f32 v{FF+q*4+d}, v50, v51
        v_mov_b32 v54, {'0x3f803f80' if q < 2 else '0xbf80bf80'}
        v_cvt_pk_bf16_f32 v55, v52, v53
        v_cndmask_b32 v{FF+16+q*4+d}, v55, v54, vcc""")
    for q in range(4):
        for d in range(4): fgen(q, d)
    for i in range(64): a(f"v_mov_b32 v{ACC+i}, 0")
    a("s_mov_b32 s48, 0xffff0000\nv_mov_b32 v48, 0\nv_mov_b32 v49, 0\nv_mov_b32 v50, 0\nv_mov_b32 v51, 0")
    for c in range(8):
        a(f"s_waitcnt vmcnt({11 - c})")
        for i in range(4):
            d = 16 + 4 * c + i
            a(f"""v_and_b32 v52, s48, v{d}
            v_lshlrev_b32 v53, 16, v{d}
            v_add_f32 v48, v48, v52
            v_add_f32 v49, v49, v53
            v_fmac_f32 v50, v52, v52
            v_fmac_f32 v51, v53, v53""")
    a(f"""
    v_add_f32 v48, v48, v49
    v_add_f32 v50, v50, v51
    s_nop 1
    v_add_f32_dpp v48, v48, v48 quad_perm:[1,0,3,2] row_mask:0xf bank_mask:0xf
    v_add_f32_dpp v50, v50, v50 quad_perm:[1,0,3,2] row_mask:0xf bank_mask:0xf
    s_nop 1
    v_add_f32_dpp v48, v48, v48 quad_perm:[2,3,0,1] row_mask:0xf bank_mask:0xf
    v_add_f32_dpp v50, v50, v50 quad_perm:[2,3,0,1] row_mask:0xf bank_mask:0xf
    s_nop 1
    v_add_f32_dpp v48, v48, v48 row_half_mirror row_mask:0xf bank_mask:0xf
    v_add_f32_dpp v50, v50, v50 row_half_mirror row_mask:0xf bank_mask:0xf
    v_mul_f32 v48, {fhex(1/512)}, v48          ; mean
    v_mul_f32 v50, {fhex(1/512)}, v50
    v_fma_f32 v50, -v48, v48, v50              ; var
    v_max_f32 v50, 0, v50
    v_cvt_pk_bf16_f32 v52, -v48, v50
    v_lshlrev_b32 v16, 16, v52                 ; -bf16(mean)
    v_and_b32 v50, s48, v52                    ; bf16(var)
    v_add_f32 v50, {fhex(1e-5)}, v50
    v_cvt_pk_bf16_f32 v50, v50, v50
    v_and_b32 v50, s48, v50
    v_sqrt_f32 v50, v50
    s_lshl_b32 s38, s22, 7
    s_lshl_b32 s39, s23, 5
    s_add_u32 s38, s38, s39
    s_lshl_b32 s39, s20, 3
    s_add_u32 s38, s38, s39
    s_lshl_b32 s38, s38, 4
    s_add_u32 s38, s38, {ST_OFF}
    v_cvt_pk_bf16_f32 v50, v50, v50
    v_and_b32 v17, s48, v50                    ; sd
    v_lshlrev_b32 v4, 4, v2
    s_mov_b32 s56, 0
    s_waitcnt vmcnt(0)
L_DN:
    v_readfirstlane_b32 s92, v6
    s_add_u32 s56, s56, 1
    s_cmp_ge_u32 s56, {SPIN_MAX}
    s_cbranch_scc1 L_DN_OK
    s_cmp_lg_u32 s92, 0
    s_cbranch_scc1 L_DN_OK
    buffer_load_dwordx2 v[6:7], v5, s[88:91], 0 offen sc1
    s_waitcnt vmcnt(0)
    s_branch L_DN
L_DN_OK:
    v_mov_b32 v18, v6
    v_mov_b32 v19, v7
    s_mov_b32 exec_lo, 0x01010101
    s_mov_b32 exec_hi, 0x01010101
    buffer_store_dwordx4 v[16:19], v4, s[32:35], s38 offen sc1
    s_mov_b64 exec, -1
    """)
    stamp(a, cfg, 6)
    a("v_readfirstlane_b32 s93, v7")
    a(f"""
    v_bfe_u32 v3, v0, 1, 3
    v_xor_b32 v3, v3, v61
    v_lshlrev_b32 v3, 4, v3
    v_lshl_add_u32 v3, v1, 7, v3
    s_lshl_b32 s38, s36, 13
    v_add_u32 v{VXA}, s38, v3
    s_lshl_b32 s38, s37, 12
    s_add_u32 s38, s38, {LDS_W}
    v_add_u32 v{VWA}, s38, v3
    """)
    for i in range(1, 4): a(f"v_xor_b32 v{VXA+i}, {32*i}, v{VXA}\nv_xor_b32 v{VWA+i}, {32*i}, v{VWA}")
    a("s_mov_b32 s56, 0\ns_mov_b32 s57, 0")
    stamp(a, cfg, 0)
    def FS(st): return (16 if (st & 3) < 2 else 96) + (st & 1) * 16
    def rdl(st):
        s_ = st % 4; b = FS(st)
        return [(f"ds_read_b128 {v(b,4)}, v{VXA+s_}", ("x", s_, 0)), (f"ds_read_b128 {v(b+8,4)}, v{VWA+s_}", ("w", s_, 0)),
                (f"ds_read_b128 {v(b+12,4)}, v{VWA+s_} offset:8192", ("w", s_, 1)), (f"ds_read_b128 {v(b+4,4)}, v{VXA+s_} offset:4096", ("x", s_, 1))]
    a.lds_q = []
    a("s_barrier")
    stamp(a, cfg, 1)
    for st in (0, 1):
        for ins, tag in rdl(st): a.lds(ins, tag)
    entry_q = list(a.lds_q)
    a(".p2align 3\nL_DLOOP:")
    salu = ["s_add_u32 s57, s57, 1\ns_cmp_eq_u32 s57, 3\ns_cselect_b32 s58, -2, 1", "s_cselect_b32 s57, 0, s57\ns_lshl_b32 s58, s58, 14"]
    for st in range(4):
        rl = rdl(st + 2); b = FS(st)
        for n, (rt, cs) in enumerate([(0, 0), (0, 1), (1, 0), (1, 1)]):
            if n == 0: a.wait_lds([("x", st, 0), ("x", st, 1), ("w", st, 0), ("w", st, 1)])
            c = ACC + (rt * 2 + cs) * 16
            if not cfg.get('nomfma'): a(f"v_mfma_f32_32x32x16_bf16 {v(c,16)}, {v(b+rt*4,4)}, {v(b+8+cs*4,4)}, {v(c,16)}")
            if st == 2 and n == 0:
                a.wait_lds_all(); a("s_barrier")
            if st < 2 or st == 3 or n > 0:
                k = 1 if not (st == 2 and n == 1) else 2
                for _ in range(k):
                    ins, tag = rl.pop(0); a.lds(ins, tag)
            if st == 0 and n < 2: a(salu[n])
            if st == 0 and n >= 2: a(f"v_add_u32 v{VXA+n-2}, s58, v{VXA+n-2}\nv_add_u32 v{VWA+n-2}, s58, v{VWA+n-2}")
            if st == 2 and n >= 2: a(f"v_add_u32 v{VXA+n}, s58, v{VXA+n}\nv_add_u32 v{VWA+n}, s58, v{VWA+n}")
            if st == 3 and n == 2: a("s_add_u32 s56, s56, 1\ns_cmp_lt_u32 s56, 8")
        assert not rl
    assert a.lds_q == entry_q, (a.lds_q, entry_q)
    a("s_cbranch_scc1 L_DLOOP")
    a.lds_q = []
    stamp(a, cfg, 2)
    a(f"""
    s_waitcnt lgkmcnt(0)
    s_lshl_b32 s39, s36, 8
    s_add_u32 s39, s39, {LDS_AUX}
    v_lshlrev_b32 v3, 4, v61
    v_add_u32 v3, s39, v3
    v_mov_b32 v4, v62
    v_mov_b32 v5, v62
    v_mov_b32 v6, v63
    v_mov_b32 v7, v63
    v_cmp_eq_u32 vcc, 0, v1
    """)
    for rt in range(2):
        for Q in range(4): a(f"ds_read_b128 {v(16+Q*4,4)}, v3 offset:{rt*128 + Q*32}")
        for Q in range(4): a(f"ds_read_b128 {v(32+Q*4,4)}, v3 offset:{512 + rt*128 + Q*32}")
        a("s_waitcnt lgkmcnt(0)")
        for cs in range(2):
            c = ACC + (rt * 2 + cs) * 16
            for p in range(8): a(f"v_pk_fma_f32 {v(c+2*p,2)}, {v(16+2*p,2)}, {v(4+2*cs,2)}, {v(c+2*p,2)}")
            for p in range(8): a(f"v_pk_mul_f32 {v(c+2*p,2)}, {v(c+2*p,2)}, {v(32+2*p,2)}")
            for p in range(8): a(f"v_cvt_pk_bf16_f32 v{BF + cs*16 + rt*8 + p}, v{c+2*p}, v{c+2*p+1}")
    a("s_nop 1")
    for q in range(4):
        for CN in range(2):
            for ab in range(2):
                c = OUT + (CN * 2 + ab) * 16
                a(f"v_mfma_f32_32x32x16_bf16 {v(c,16)}, {v(FF+CN*16+q*4,4)}, {v(BF+ab*16+q*4,4)}, {'0' if q == 0 else v(c,16)}")
    P, R, T, Q = OUT, OUT + 16, OUT + 32, OUT + 48
    a(f"""
    v_add_u32 v8, s79, v1             ; e
    v_cmp_eq_u32 vcc, 0, v8
    v_mov_b32 v11, -1
    v_and_b32 v12, 0xfffffffc, v8
    v_and_b32 v10, 3, v0
    v_cndmask_b32_e64 v11, v11, 0, vcc
    v_lshl_add_u32 v10, v61, 2, v10
    v_lshlrev_b32 v10, 11, v10
    v_lshl_add_u32 v12, v12, 2, v10
    v_lshlrev_b32 v8, 2, v8
    v_cvt_f32_u32 v10, v61
    s_mul_i32 s38, s78, {33*ZROW}
    s_add_u32 s38, s38, {Z_OFF}
    s_add_u32 s39, s38, {32*ZROW}
    s_mov_b32 s44, 0x55555555
    s_mov_b32 s45, s44
    s_mov_b32 s46, 0x33333333
    s_mov_b32 s47, s46
    v_cvt_pk_bf16_f32 v14, v{T}, v{Q}
    v_cvt_pk_bf16_f32 v15, v{T}, -v{Q}
    v_mul_f32 v{T}, v{T}, v10
    v_mul_f32 v{Q}, v{Q}, v10
    v_and_b32 v14, v14, v11
    s_mov_b32 exec_hi, 0
    buffer_store_dword v14, v8, s[32:35], s39 offen sc1
    buffer_store_dword v15, v8, s[32:35], s39 offen offset:1024 sc1
    s_mov_b64 exec, -1
    """)
    O1, O2, TT = 16, 32, 128
    for p in range(8):
        r0 = 2 * p
        a(f"""v_pk_add_f32 v[48:49], {v(P+r0,2)}, {v(Q+r0,2)}
        v_pk_add_f32 v[50:51], {v(R+r0,2)}, {v(T+r0,2)} neg_lo:[0,1] neg_hi:[0,1]
        v_pk_add_f32 v[52:53], {v(P+r0,2)}, {v(Q+r0,2)} neg_lo:[0,1] neg_hi:[0,1]
        v_pk_add_f32 v[54:55], {v(R+r0,2)}, {v(T+r0,2)} neg_lo:[1,1] neg_hi:[1,1]
        v_cvt_pk_bf16_f32 v{O1+r0}, v48, v50
        v_cvt_pk_bf16_f32 v{O1+r0+1}, v49, v51
        v_cvt_pk_bf16_f32 v{O2+r0}, v52, v54
        v_cvt_pk_bf16_f32 v{O2+r0+1}, v53, v55""")
    for r in range(16): a(f"v_and_b32 v{O1+r}, v{O1+r}, v11")
    def dpp(perm): return f"quad_perm:{perm} row_mask:0xf bank_mask:0xf"
    a("s_mov_b64 vcc, s[44:45]\ns_nop 0")
    for r in range(0, 32, 2): a(f"v_cndmask_b32_dpp v{TT+r}, v{O1+r+1}, v{O1+r}, vcc {dpp('[1,0,3,2]')}")
    a("s_not_b64 vcc, vcc")
    for r in range(0, 32, 2): a(f"v_cndmask_b32_dpp v{TT+r+1}, v{O1+r}, v{O1+r+1}, vcc {dpp('[1,0,3,2]')}")
    def dst(b, j): return O1 + b * 4 + j
    a("s_mov_b64 vcc, s[46:47]")
    for b in range(8):
        for j in range(2): a(f"v_cndmask_b32_dpp v{dst(b,j)}, v{TT+b*4+j+2}, v{TT+b*4+j}, vcc {dpp('[2,3,0,1]')}")
    a("s_not_b64 vcc, vcc")
    for b in range(8):
        for j in range(2): a(f"v_cndmask_b32_dpp v{dst(b,j+2)}, v{TT+b*4+j}, v{TT+b*4+j+2}, vcc {dpp('[2,3,0,1]')}")
    for Qd in range(4):
        a(f"""s_add_u32 s39, s38, {Qd*8*ZROW}
        buffer_store_dwordx4 {v(O1+Qd*4,4)}, v12, s[32:35], s39 offen sc1
        buffer_store_dwordx4 {v(O2+Qd*4,4)}, v12, s[32:35], s39 offen offset:1024 sc1""")
    stamp(a, cfg, 4)
    a(f"""
    v_mov_b32 v48, {LDS_AUX + LDS_CNT_OFF}
    v_mov_b32 v49, 1
    s_lshl_b32 s53, s22, 2
    s_add_u32 s53, s53, s23
    s_lshl_b32 s53, s53, 7
    s_add_u32 s53, s53, {FL_OFF}
    s_mov_b64 exec, 1
    s_waitcnt vmcnt(0)
    ds_add_rtn_u32 v18, v48, v49
    v_mov_b32 v20, s92
    v_mov_b32 v21, s93
    v_mov_b32 v22, 0
    s_waitcnt lgkmcnt(0)
    v_readfirstlane_b32 s54, v18
    s_nop 3
    s_cmp_eq_u32 s54, 3
    s_cselect_b32 s53, s53, {OOB}
    buffer_store_dwordx2 v[20:21], v22, s[32:35], s53 offen sc1
    s_mov_b64 exec, -1
    """)
    stamp(a, cfg, 5)
    a("s_branch L_FIN")

def warm(a, cfg, sfx=""):
    if cfg.get("nowarm"): return
    a(f"""
    s_cmp_lt_u32 s20, 2
    s_cbranch_scc0 L_WARM2
    s_mul_i32 s40, s3, {15*128}
    s_add_u32 s40, s40, {96*2752}
    v_min_u32 v125, 14, v0
    v_lshlrev_b32 v125, 7, v125
    s_cmp_eq_u32 s20, 1
    s_cselect_b32 s44, s14, s12
    s_cselect_b32 s45, s15, s13
    s_mov_b32 s46, 1409024
    s_mov_b32 s47, 0x00020000
    buffer_load_dword v126, v125, s[44:47], s40 offen
    s_branch L_WARMED
L_WARM2:
    s_mov_b32 s40, s3
    s_cmp_eq_u32 s20, 2
    s_cbranch_scc0 L_WARM3
    ; x: 9 rows per workgroup, lines 2,3
    s_mul_i32 s40, s3, 9
    v_min_u32 v125, 17, v0
    v_and_b32 v126, 1, v125
    v_lshrrev_b32 v125, 1, v125
    v_add_u32 v125, s40, v125
    v_min_u32 v125, 2047, v125
    v_lshlrev_b32 v126, 7, v126
    v_and_b32 v127, 31, v125
    v_lshl_add_u32 v126, v127, 16, v126
    v_bfe_u32 v127, v125, 5, 1
    v_lshl_add_u32 v126, v127, 15, v126
    v_lshrrev_b32 v127, 6, v125
    v_lshl_add_u32 v125, v127, 10, v126
    buffer_load_dword v126, v125, s[24:27], 0 offen offset:256
    s_branch L_WARMED
L_WARM3:
    ; hidden DFT matrices: rows 2j, 2j+1 (j < 129), lines 2,3
    s_lshl_b32 s41, s40, 11
    s_add_u32 s41, s41, 256
    s_cmp_lt_u32 s40, 129
    s_cselect_b32 s40, s41, {OOB}
    v_and_b32 v125, 1, v0
    v_lshlrev_b32 v125, 7, v125
    v_bfe_u32 v126, v0, 1, 1
    v_lshl_add_u32 v125, v126, 10, v125
    s_mov_b32 s44, s8
    s_mov_b32 s45, s9
    s_mov_b32 s46, 524288
    s_mov_b32 s47, 0x00020000
    s_mov_b32 s48, s10
    s_mov_b32 s49, s11
    s_mov_b32 s50, 524288
    s_mov_b32 s51, 0x00020000
    buffer_load_dword v126, v125, s[44:47], s40 offen
    buffer_load_dword v127, v125, s[48:51], s40 offen
L_WARMED:
    """.replace("L_WARM", "L_WARM" + sfx))

def gen(cfg):
    a = Asm()
    entry(a, cfg)
    helper(a, cfg)
    colsum(a, cfg)
    a("L_MMA:\ns_lshr_b32 s36, s20, 1\ns_and_b32 s37, s20, 1\ns_waitcnt lgkmcnt(0)")
    common_srds(a)
    a("s_cmp_eq_u32 s21, 2\ns_cbranch_scc0 L_MMA2")
    get_nonce(a, "L_MI_N", 4)
    a("s_branch L_FIN\nL_MMA2:")
    if not cfg.get("warmlate"): warm(a, cfg)
    a("s_cmp_eq_u32 s21, 0\ns_cbranch_scc0 L_MMA_DFT")
    mma_ffn(a, dict(cfg, inm=1))
    a("L_MMA_DFT:")
    mma_dft(a, dict(cfg, inm=1))
    a("L_END:\ns_endpgm")
    cs = np.load("cs_table.npy")
    tab = ".p2align 8\n.type L_CSTAB,@object\nL_CSTAB:\n" + "\n".join(".long " + ", ".join("0x%08x" % x for x in cs[i:i+8].view(np.uint32)) for i in range(0, 512, 8)) + "\n.size L_CSTAB, 2048\n"
    HEAD = open("recurrent_scan__spectral_fnet__geglu_ffn__prompt.s.ref").read().split("; Override launch")[0]
    s = HEAD + f"; @launch grid=(256,1,1) block=(512,1,1) lds={LDS_TOTAL}\n" + '.amdgcn_target "amdgcn-amd-amdhsa--gfx950"\n'
    return s + kernel(KN, a.text() + tab, 256)

if __name__ == "__main__":
    import sys
    cfg = {"shape": 32}
    for kv in sys.argv[2:]:
        k, val = kv.split("="); cfg[k] = int(val, 0)
    open(sys.argv[1], "w").write(gen(cfg))
```

```python
from dsl import *
import math, numpy as np
KN = "recurrent_scan__spectral_fnet__geglu_ffn__prompt_kernel"
Z_OFF, ST_OFF, FL_OFF, CS_OFF, XID_OFF, FLG_OFF, WS_BYTES = 0x600000, 0x900000, 0x908000, 0x90A000, 0x910000, 0x918000, 0xA00000
ZROW = 2048
LDS_CNT_OFF = 3072
LDS_MODE = 159744 + 3088
OOB = 0x7F000000
LDS_W = 49152
LDS_E = 147456
LDS_AUX = 159744
LDS_CS = LDS_AUX + 2048
LDS_ST2 = 155648
LDS_CA = LDS_AUX + 3104
LDS_TOTAL = 163840
GC = -2.0 * math.sqrt(2.0 / math.pi) * math.log2(math.e)
LOG2E = math.log2(math.e)
SPIN_MAX = 1 << 15
PROF_BASE = 0x1000000

def SR(idx): return {10: 6, 11: 7}.get(idx, 60 + idx)
def stamp(a, cfg, idx):
    if cfg.get("pb") and not cfg.get("pbx") and idx in (3, 4, 5, 6, 7) and not cfg.get("inm"): return
    if cfg.get("prof"):
        a(f"s_memrealtime s[40:41]\ns_waitcnt lgkmcnt(0)\ns_mov_b32 s{SR(idx)}, s40")
def cyc(a, cfg, which, idx=7):
    if cfg.get("prof"):
        if which == 0: a(f"s_memtime s[40:41]\ns_waitcnt lgkmcnt(0)\ns_mov_b32 s{60+idx}, s40")
        else: a(f"s_memtime s[40:41]\ns_waitcnt lgkmcnt(0)\ns_sub_u32 s{60+idx}, s40, s{60+idx}")
def prof_flush(a, cfg):
    if not cfg.get("prof"): return
    a(f"s_lshl_b32 s42, s2, 3\ns_add_u32 s42, s42, s20\ns_lshl_b32 s42, s42, 6\ns_add_u32 s42, s42, {PROF_BASE}")
    a("s_mov_b32 s44, s16\ns_mov_b32 s45, s17\ns_mov_b32 s46, 0x10000000\ns_mov_b32 s47, 0x00020000")
    a("s_mov_b64 exec, 1\nv_mov_b32 v1, 0")
    for i in range(12):
        a(f"v_mov_b32 v2, s{SR(i)}\nbuffer_store_dword v2, v1, s[44:47], s42 offen offset:{4*i}" + (" sc1" if "enc" in cfg else ""))
    a("v_mov_b32 v2, s57\nbuffer_store_dword v2, v1, s[44:47], s42 offen offset:48")
    a("v_mov_b32 v2, s101\nbuffer_store_dword v2, v1, s[44:47], s42 offen offset:52")
    a("s_waitcnt vmcnt(0)\ns_mov_b64 exec, -1")

def entry(a, cfg):
    a("""
    s_cmp_ge_u32 s2, 256
    s_cbranch_scc1 L_END
    s_load_dwordx2 s[4:5], s[0:1], 0
    s_load_dwordx4 s[8:11], s[0:1], 24
    s_load_dwordx4 s[12:15], s[0:1], 48
    s_load_dwordx2 s[18:19], s[0:1], 64
    s_load_dwordx2 s[82:83], s[0:1], 72
    s_load_dwordx2 s[80:81], s[0:1], 80
    s_load_dwordx2 s[16:17], s[0:1], 88
    v_lshrrev_b32 v1, 6, v0
    v_and_b32 v0, 63, v0
    s_and_b32 s3, s2, 7
    v_readfirstlane_b32 s20, v1
    s_lshr_b32 s6, s2, 3          ; loc
    """)
    if cfg.get("p2d"):
        a("""
        s_lshr_b32 s7, s3, 1          ; a
        s_and_b32 s3, s3, 1           ; b
        s_lshl_b32 s36, s7, 2         ; 4a
        s_sub_u32 s37, 6, s3          ; nc
        s_lshl_b32 s38, s37, 2        ; nffn
        s_mul_i32 s39, s3, 9
        s_add_u32 s39, s39, 43
        s_mul_i32 s39, s39, s6
        s_lshr_b32 s39, s39, 8        ; q
        s_add_u32 s22, s36, s39       ; rho
        s_mul_i32 s39, s39, s37
        s_sub_u32 s23, s6, s39
        s_mul_i32 s39, s3, 6
        s_add_u32 s23, s23, s39       ; cg
        s_mov_b32 s21, 0
        s_cmp_lt_u32 s6, s38
        s_cbranch_scc1 L_ROLED
        s_sub_u32 s6, s6, s38
        s_and_b32 s39, s6, 3
        s_add_u32 s22, s36, s39       ; w
        s_lshr_b32 s39, s6, 2
        s_lshl_b32 s23, s3, 1
        s_add_u32 s23, s23, s39       ; eq
        s_mov_b32 s21, 1
        s_cmp_lt_u32 s6, 8
        s_cbranch_scc1 L_ROLED
        s_sub_u32 s6, s6, 8
        s_add_u32 s23, s36, s6
        s_mov_b32 s21, 2
        s_cmp_lt_u32 s23, 11
        s_cbranch_scc1 L_CS
        s_branch L_ROLED
        """)
    a("""
    s_lshl_b32 s36, s3, 1
    s_cmp_ge_u32 s6, 11
    s_cselect_b32 s37, 1, 0
    s_add_u32 s22, s36, s37       ; rho
    s_mul_i32 s37, s37, 11
    s_sub_u32 s23, s6, s37        ; cg
    s_mov_b32 s21, 0
    s_cmp_lt_u32 s6, 22
    s_cbranch_scc1 L_ROLED
    s_sub_u32 s6, s6, 22
    s_lshr_b32 s37, s6, 2
    s_add_u32 s22, s36, s37       ; w
    s_and_b32 s23, s6, 3          ; eq
    s_mov_b32 s21, 1
    s_cmp_lt_u32 s6, 8
    s_cbranch_scc1 L_ROLED
    s_sub_u32 s6, s6, 8
    s_add_u32 s23, s36, s6
    s_mov_b32 s21, 2
    s_cmp_lt_u32 s23, 11
    s_cbranch_scc1 L_CS
L_ROLED:
    s_mul_i32 s3, s22, 11
    s_lshl_b32 s37, s22, 2
    s_add_u32 s37, s37, 176
    s_cmp_eq_u32 s21, 0
    s_cselect_b32 s3, s3, s37
    s_add_u32 s3, s3, s23
    s_cmp_lt_u32 s20, 4
    s_cbranch_scc1 L_MMA
    """)

def fresh(a, ok, retry):
    a(f"""
    s_cmp_ge_u32 s56, {SPIN_MAX}
    s_cbranch_scc1 {ok}
    s_cmp_eq_u32 s92, 0
    s_cbranch_scc1 {retry}
    s_memrealtime s[40:41]
    s_waitcnt lgkmcnt(0)
    s_sub_u32 s41, s40, s92
    s_cmp_lt_i32 s41, 800
    s_cbranch_scc1 {ok}
    s_cmp_ge_u32 s56, 40
    s_cbranch_scc1 {ok}
    """)

def get_nonce(a, lab, vt):
    a(f"""
    v_mov_b32 v{vt+2}, 0
    s_mov_b32 s56, 0
{lab}:
    buffer_load_dwordx2 {v(vt,2)}, v{vt+2}, s[88:91], 0 offen sc1
    s_add_u32 s56, s56, 1
    s_waitcnt vmcnt(0)
    v_readfirstlane_b32 s92, v{vt}
    v_readfirstlane_b32 s93, v{vt+1}
    s_nop 1
    """)
    fresh(a, lab + "_OK", lab)
    a(f"s_branch {lab}\n{lab}_OK:")

def xid_publish(a, vt):
    a(f"""
    s_getreg_b32 s100, hwreg(HW_REG_XCC_ID, 0, 4)
    s_lshl_b32 s53, s2, 7
    s_add_u32 s53, s53, {XID_OFF}
    s_cmp_eq_u32 s36, 0
    s_cselect_b32 s53, s53, {OOB}
    v_mov_b32 v{vt}, s100
    v_mov_b32 v{vt+1}, s92
    v_mov_b32 v{vt+2}, 0
    s_mov_b64 exec, 1
    """)
    a.vm(f"buffer_store_dwordx2 {v(vt,2)}, v{vt+2}, s[32:35], s53 offen sc1", "xid")
    a("s_mov_b64 exec, -1")

def colsum(a, cfg):
    a(f"""
L_CS:
    v_lshrrev_b32 v2, 4, v0
    v_and_b32 v3, 15, v0
    v_mul_u32_u24 v2, 2752, v2
    v_lshl_add_u32 v2, v3, 4, v2
    s_lshl_b32 s38, s23, 8
    s_lshr_b32 s39, s20, 1
    s_mul_i32 s39, s39, {128*2752}
    s_add_u32 s38, s38, s39
    s_and_b32 s39, s20, 1
    s_cmp_eq_u32 s39, 0
    s_waitcnt lgkmcnt(0)
    s_cselect_b32 s28, s12, s14
    s_cselect_b32 s29, s13, s15
    s_mov_b32 s30, 1409024
    s_mov_b32 s31, 0x00020000
    """)
    common_srds(a)
    a("s_sub_u32 s36, s20, 4\nv_mov_b32 v146, 0\nbuffer_load_dwordx2 v[144:145], v146, s[88:91], 0 offen sc1")
    for i in range(32):
        a(f"buffer_load_dwordx4 {v(16+4*i,4)}, v2, s[28:31], s38 offen\ns_add_u32 s38, s38, {4*2752}")
    a("s_mov_b32 s48, 0xffff0000")
    for i in range(8): a(f"v_mov_b32 v{8+i}, 0")
    for i in range(32):
        if i % 4 == 0: a(f"s_waitcnt vmcnt({28 - i})")
        if i == 0:
            a(f"""
            v_readfirstlane_b32 s92, v144
            v_readfirstlane_b32 s93, v145
            s_mov_b32 s56, 0
            """)
            fresh(a, "L_CS_N1", "L_CS_N2")
            a("L_CS_N2:")
            get_nonce(a, "L_CS_N0", 144)
            a("L_CS_N1:")
            xid_publish(a, 144)
        for d in range(4):
            r = 16 + 4 * i + d
            a(f"v_lshlrev_b32 v4, 16, v{r}\nv_and_b32 v5, s48, v{r}\nv_add_f32 v{8+2*d}, v{8+2*d}, v4\nv_add_f32 v{9+2*d}, v{9+2*d}, v5")
    a(f"""
    s_lshl_b32 s38, s20, 11
    v_lshlrev_b32 v2, 5, v0
    v_add_u32 v2, s38, v2
    ds_write_b128 v2, v[8:11]
    ds_write_b128 v2, v[12:15] offset:16
    s_waitcnt lgkmcnt(0)
    s_barrier
    s_cmp_lt_u32 s20, 4
    s_cbranch_scc0 L_CS_H
    s_lshr_b32 s38, s20, 1
    s_lshl_b32 s38, s38, 11
    s_and_b32 s39, s20, 1
    s_lshl_b32 s39, s39, 8
    s_add_u32 s38, s38, s39
    v_lshlrev_b32 v2, 2, v0
    v_add_u32 v2, s38, v2
    """)
    for kq in range(4):
        for rg in range(4): a(f"ds_read_b32 v{16+kq*4+rg}, v2 offset:{kq*4096 + rg*512}")
        if kq == 1: a("s_waitcnt lgkmcnt(0)")
    a("s_waitcnt lgkmcnt(0)\ns_barrier")
    for i in range(1, 16): a(f"v_add_f32 v16, v16, v{16+i}")
    a(f"""
    v_mov_b32 v17, s92
    s_lshl_b32 s38, s23, 11
    s_lshl_b32 s39, s20, 9
    s_add_u32 s38, s38, s39
    s_add_u32 s38, s38, {CS_OFF}
    v_lshlrev_b32 v2, 3, v0
    buffer_store_dwordx2 v[16:17], v2, s[32:35], s38 offen sc1
    """)
    stamp(a, cfg, 5)
    a("""
    s_branch L_FIN
L_CS_H:
    s_barrier
    s_sub_u32 s36, s20, 4
    s_branch L_HI
    """)

def common_srds(a):
    a(f"""
    s_mov_b32 s24, s4
    s_mov_b32 s25, s5
    s_mov_b32 s26, 2097152
    s_mov_b32 s27, 0x00020000
    s_mov_b32 s32, s16
    s_mov_b32 s33, s17
    s_mov_b32 s34, {WS_BYTES}
    s_mov_b32 s35, 0x00020000
    s_mov_b32 s88, s80
    s_mov_b32 s89, s81
    s_mov_b32 s90, 256
    s_mov_b32 s91, 0x00020000
    """)

ACC2, Y2, AS2, AF2, XR2, HF2, GF2, ZF2 = 192, 176, 152, 136, 128, 16, 112, 152
HR2 = 12
VH2, VWD2, VO2 = 2, 4, 5
VT2 = 8
SLOT = {"E": (3, 0, LDS_E, 2048)}
for sl in range(3):
    for i in range(2): SLOT[f"X{sl}{i}"] = (0, sl * 16384 + i * 2048, sl * 16384 + i * 2048, 4096)
    for i in range(4):
        if sl < 2: SLOT[f"W{sl}{i}"] = (1, sl * 32768 + i * 2048, LDS_W + sl * 32768 + i * 2048, 8192)
        else: SLOT[f"W{sl}{i}"] = (2, i * 2048, LDS_W + 65536 + i * 2048, 8192)
POS_SLOT = ["W20", "W21", "W22", "E", "X20", "X21", "W23", "X00", "X01", "W00", "W01", "W20", "W21", "W22", "W02", "W03", "X10", "X11", "W10", "W11", "W12", "W13"]
LOC_E = [0, 4, 8, 12, 16, 20, 1, 5, 9, 13, 17, 21, 2, 6, 10, 14, 18, 3, 7, 11, 15, 19]
LOC_O = [2, 6, 10, 14, 18, 3, 7, 11, 15, 19, 0, 4, 8, 12, 16, 20, 1, 5, 9, 13, 17, 21]
DCL = [{2: 0, 6: 1, -17: 2}[o - e] for e, o in zip(LOC_E, LOC_O)]
MULT_S = {2048: "s70", 4096: "s71", 8192: "s72"}
def wd_dma(a, pos):
    kind, imm, m0c, mult = SLOT[POS_SLOT[pos]]
    for i in range(2):
        a(f"s_add_u32 m0, {MULT_S[mult]}, {m0c + i*1024}\ns_add_u32 s53, s{94+DCL[pos]}, {LOC_E[pos]*16384 + i*8192}")
        a.vm(f"buffer_load_dwordx4 v{VWD2}, s[84:87], s53 offen lds", ("wd", pos))
def tr2(a, cfg, pos, dst):
    kind, imm, m0c, mult = SLOT[POS_SLOT[pos]]
    qoff = 1024 if cfg["shape"] == 32 else 512
    for ct in range(2):
        for q in range(2):
            a.lds(f"ds_read_b64_tr_b16 {v(dst+ct*4+q*2,2)}, v{VT2+kind*2+ct} offset:{imm + q*qoff}", ("a", pos, ct))

def p2_setup(a, cfg):
    shape = cfg["shape"]
    a(f"""
    s_lshl_b32 s70, s36, 11
    s_lshl_b32 s71, s36, 12
    s_lshl_b32 s72, s36, 13
    s_mul_i32 s73, s36, 22
    s_and_b32 s53, s36, 1
    s_mul_i32 s97, s53, 2
    s_mul_i32 s98, s53, 6
    s_mul_i32 s99, s53, -17
    s_add_u32 s97, s97, s73
    s_add_u32 s98, s98, s73
    s_add_u32 s99, s99, s73
    s_lshl_b32 s94, s97, 14
    s_lshl_b32 s95, s98, 14
    s_lshl_b32 s96, s99, 14
    s_lshl_b32 s97, s97, 10
    s_lshl_b32 s98, s98, 10
    s_lshl_b32 s99, s99, 10
    s_and_b32 s74, s2, 7
    s_lshl_b32 s74, s74, 2
    s_lshr_b32 s75, s2, 6
    s_add_u32 s74, s74, s75           ; g
    s_bfe_u32 s75, s2, 0x30003
    s_mov_b32 s84, s18
    s_mov_b32 s85, s19
    s_mov_b32 s86, 1409024
    s_mov_b32 s87, 0x00020000
    v_lshrrev_b32 v6, 3, v0           ; k'
    v_and_b32 v7, 7, v0
    v_lshlrev_b32 v6, 10, v6
    v_lshl_add_u32 v6, v7, 4, v6
    v_and_b32 v7, 16, v0              ; ((k'>>1)&1) * 16
    v_lshlrev_b32 v7, 2, v7
    v_xor_b32 v6, v6, v7
    s_lshl_b32 s53, s75, 7
    v_add_u32 v{VWD2}, s53, v6
    """)
def p2_setup2(a, cfg):
    shape = cfg["shape"]
    a(f"""
    s_mul_i32 s53, s74, {2*88064}
    v_lshlrev_b32 v6, 4, v0
    v_add_u32 v{VH2}, s53, v6
    v_add_u32 v{VH2+1}, 88064, v{VH2}
    v_lshrrev_b32 v7, 5, v0
    v_bfe_u32 v6, v0, 2, 2            ; r
    v_lshl_add_u32 v7, v7, {2 if shape == 32 else 3}, v6
    v_lshlrev_b32 v7, 7, v7
    v_lshrrev_b32 v6, 1, v6
    v_lshl_add_u32 v7, v6, 6, v7
    v_bfe_u32 v6, v0, 4, 1
    v_lshl_add_u32 v7, v6, 5, v7
    v_and_b32 v6, 3, v0
    v_lshl_add_u32 v7, v6, 3, v7
    v_add_u32 v{VT2}, s71, v7
    s_add_u32 s53, s72, {LDS_W}
    v_add_u32 v{VT2+2}, s53, v7
    v_add_u32 v{VT2+4}, 65536, v{VT2+2}
    s_add_u32 s53, s70, {LDS_E}
    v_add_u32 v{VT2+6}, s53, v7
    v_xor_b32 v{VT2+1}, 64, v{VT2}
    v_xor_b32 v{VT2+3}, 64, v{VT2+2}
    v_xor_b32 v{VT2+5}, 64, v{VT2+4}
    v_xor_b32 v{VT2+7}, 64, v{VT2+6}
    """)
def helper(a, cfg):
    shape = cfg["shape"]
    VX, VW = 16, 20
    a("s_sub_u32 s36, s20, 4")
    a(f"""
    s_cmp_eq_u32 s21, 2
    s_cbranch_scc1 L_HI
    v_lshrrev_b32 v2, 3, v0           ; l>>3
    v_lshrrev_b32 v3, 4, v0           ; l>>4
    v_and_b32 v4, 7, v0
    v_xor_b32 v4, v4, v3
    v_xor_b32 v5, 4, v4
    v_lshlrev_b32 v4, 4, v4
    v_lshlrev_b32 v5, 4, v5
    s_lshr_b32 s37, s36, 1
    s_and_b32 s38, s36, 1
    s_lshl_b32 s38, s38, 5
    s_add_u32 s37, s37, s38
    s_lshl_b32 s38, s22, 1
    s_add_u32 s37, s37, s38
    s_lshl_b32 s37, s37, 10
    v_lshlrev_b32 v6, 16, v2
    v_add_u32 v6, s37, v6
    v_add_u32 v{VX}, v6, v4
    v_add_u32 v{VX+1}, v6, v5
    v_add_u32 v{VX+1}, 0x80000, v{VX+1}
    v_add_u32 v{VX+2}, 0x100000, v{VX}
    v_add_u32 v{VX+3}, 0x100000, v{VX+1}
    s_lshl_b32 s49, s36, 12
    s_cmp_eq_u32 s21, 0
    s_cbranch_scc0 L_HD
    """)
    for typ in ("F", "D"):
        a.vm_q = []; a.lds_q = []
        L = "L_H" + typ
        if typ == "D": a.label("L_HD")
        if typ == "F":
            a(f"""
            v_bfe_u32 v4, v0, 1, 3
            v_lshlrev_b32 v5, 1, v3
            s_and_b32 s37, s36, 1             ; mat
            s_lshr_b32 s38, s36, 1
            v_xor_b32 v4, v4, v5
            v_xor_b32 v4, {'s37' if shape == 32 else 's38'}, v4
            v_lshlrev_b32 v4, 5, v4
            v_and_b32 v5, 1, v0
            v_lshl_add_u32 v4, v5, 4, v4
            v_mul_u32_u24 v3, 2752, v3
            s_lshl_b32 s39, s23, 8
            v_add3_u32 v{VW}, v3, v4, s39
            s_mul_i32 s50, s38, {2*11008}
            s_lshl_b32 s51, s37, 14
            s_lshl_b32 s39, s38, 11
            s_add_u32 s51, s51, s39           ; W m0 base
            s_cmp_eq_u32 s37, 0
            s_waitcnt lgkmcnt(0)
            s_cselect_b32 s28, s12, s14
            s_cselect_b32 s29, s13, s15
            s_mov_b32 s30, 1409024
            """)
        else:
            a(f"""
            s_and_b32 s37, s36, 1
            s_lshl_b32 s37, s37, 5
            s_lshl_b32 s38, s23, 6
            s_add_u32 s37, s37, s38
            v_add_u32 v2, s37, v2
            v_lshl_add_u32 v{VW}, v2, 10, v4
            v_xor_b32 v5, 64, v{VW}
            v_add_u32 v{VW+1}, 0x2000, v5
            v_add_u32 v{VW+2}, 0x4000, v{VW}
            v_add_u32 v{VW+3}, 0x6000, v5
            s_cmp_lt_u32 s36, 2
            s_cselect_b32 s38, 0x40000, 0
            v_cmp_eq_u32 vcc, 0, v2
            v_mov_b32 v5, s38
            s_nop 0
            v_cndmask_b32 v5, 0, v5, vcc
            v_add_u32 v{VW}, v{VW}, v5
            s_cmp_lt_u32 s36, 2
            s_waitcnt lgkmcnt(0)
            s_cselect_b32 s28, s8, s10
            s_cselect_b32 s29, s9, s11
            s_mov_b32 s30, 524288
            """)
        a("""s_mov_b32 s31, 0x00020000
        s_mov_b32 s24, s4
        s_mov_b32 s25, s5
        s_mov_b32 s26, 2097152
        s_mov_b32 s27, 0x00020000""")
        def dma_groups(c):
            sl = c % 3
            order = [("x", 0), ("w", 0), ("x", 1), ("w", 1), ("x", 2), ("w", 2), ("x", 3), ("w", 3)] + ([("w", i) for i in range(4, 8)] if typ == "F" else [])
            out = []
            for kind, i in order:
                if kind == "x":
                    g = f"s_add_u32 m0, s49, {sl*16384 + i*1024}\n"
                    g += f"s_movk_i32 s52, {c*128}\n"
                    g += f"buffer_load_dwordx4 v{VX+i}, s[24:27], s52 offen lds\n"
                elif typ == "F":
                    kq = 4 * (i >> 1) + (i & 1)
                    g = f"s_add_u32 m0, s51, {LDS_W + sl*32768 + kq*1024}\ns_add_u32 s53, s50, {c*176128 + kq*11008}\nbuffer_load_dwordx4 v{VW}, s[28:31], s53 offen lds\n"
                else:
                    g = f"s_add_u32 m0, s49, {LDS_W + sl*16384 + i*1024}\ns_nop 0\nbuffer_load_dwordx4 v{VW+i}, s[28:31], s52 offen lds\n"
                if cfg.get('nox') and kind == 'x': g = g.replace('s52 offen', 's59 offen')
                if cfg.get('now') and kind == 'w': g = g.replace('s53 offen', 's59 offen').replace('s52 offen', 's59 offen')
                out.append(g)
            return out
        def issue(c, extra=()):
            extra = list(extra)
            gl = dma_groups(c)
            for n, g in enumerate(gl):
                a(g); a.vm_q.append(("c", c))
                if extra and n >= 1: extra.pop(0)()
            for e in extra: e()
        a(f"s_mov_b32 s59, {OOB}")
        stamp(a, cfg, 0)
        issue(0)
        def touch_setup():
            a(f"""
            s_lshr_b32 s57, s2, 3
            s_sub_u32 s57, s57, 22
            s_mul_i32 s57, s57, 172
            s_mul_i32 s58, s36, 43
            s_add_u32 s57, s57, s58
            s_lshl_b32 s57, s57, 10
            v_lshlrev_b32 v24, 4, v0
            v_mov_b32 v26, {LDS_AUX + LDS_CNT_OFF}
            v_mov_b32 v25, 0
            ds_write_b32 v26, v25
            """)
        def touch(n):
            a(f"s_add_u32 s53, s57, {n*1024}")
            a.vm("buffer_load_dwordx4 v[28:31], v24, s[84:87], s53 offen", "touch")
        def warm_h():
            if typ == "F":
                a(f"""
                s_lshl_b32 s40, s3, 12
                s_add_u32 s40, s40, {256*2752}
                v_min_u32 v52, 31, v0
                v_lshlrev_b32 v52, 7, v52
                s_cmp_lt_u32 s36, 2
                s_cbranch_scc0 {L}_W2
                buffer_load_dword v53, v52, s[28:31], s40 offen
                s_branch {L}_W9
{L}_W2:
                s_lshl_b32 s40, s3, 1
                s_add_u32 s40, s40, s36
                s_sub_u32 s40, s40, 2
                s_mul_i32 s40, s40, 6
                v_min_u32 v52, 23, v0
                v_and_b32 v53, 3, v52
                v_lshrrev_b32 v52, 2, v52
                v_add_u32 v52, s40, v52
                v_min_u32 v52, 2047, v52
                v_lshlrev_b32 v53, 7, v53
                v_and_b32 v54, 31, v52
    v_lshl_add_u32 v53, v54, 16, v53
    v_bfe_u32 v54, v52, 5, 1
    v_lshl_add_u32 v53, v54, 15, v53
    v_lshrrev_b32 v54, 6, v52
    v_lshl_add_u32 v52, v54, 10, v53
                buffer_load_dword v53, v52, s[24:27], 0 offen offset:512
{L}_W9:
                """)
            else:
                a(f"""
                s_sub_u32 s40, s3, 176
                s_lshl_b32 s40, s40, 1
                s_and_b32 s41, s36, 1
                s_add_u32 s40, s40, s41
                s_lshl_b32 s40, s40, 11
                s_add_u32 s40, s40, 512
                v_min_u32 v52, 11, v0
                v_and_b32 v53, 3, v52
                v_lshrrev_b32 v52, 2, v52
                v_lshlrev_b32 v52, 10, v52
                v_lshl_add_u32 v52, v53, 7, v52
                buffer_load_dword v53, v52, s[28:31], s40 offen
                """)
            a.vm_q.append("warm")
        def warm_d():
            a(f"""
            s_lshl_b32 s40, s3, 2
            s_add_u32 s40, s40, s36
            s_mul_i32 s40, s40, {12*128}
            v_min_u32 v52, 11, v0
            v_lshlrev_b32 v52, 7, v52
            """)
            a.vm("buffer_load_dword v54, v52, s[84:87], s40 offen", "warm")
        def warm_l2(n, cnt):
            a(f"""
            s_lshr_b32 s40, s2, 3
            s_lshl_b32 s40, s40, 2
            s_add_u32 s40, s40, s36
            s_mul_i32 s40, s40, {92*128}
            s_add_u32 s40, s40, {n*cnt*128}
            v_min_u32 v52, {cnt-1}, v0
            v_lshlrev_b32 v52, 7, v52
            """)
            a.vm("buffer_load_dword v54, v52, s[84:87], s40 offen", "warm")
        def nonce_chk():
            a(f"""
            s_mov_b32 s56, 0
{L}_NCHK:
            v_readfirstlane_b32 s92, v32
            v_readfirstlane_b32 s93, v33
            s_add_u32 s56, s56, 1
            """)
            fresh(a, L + "_NOK", L + "_NRE")
            a(f"""
{L}_NRE:
            buffer_load_dwordx2 v[32:33], v35, s[88:91], 0 offen sc1
            s_waitcnt vmcnt(0)
            s_branch {L}_NCHK
{L}_NOK:
            """)
            xid_publish(a, 36)
        ex = [lambda: common_srds(a), lambda: p2_setup(a, cfg), lambda: p2_setup2(a, cfg)]
        if typ == "D": ex.append(touch_setup)
        else: ex.append(lambda: a(f"v_mov_b32 v56, {LDS_CA}\nv_mov_b32 v58, 0\nv_mov_b32 v59, 0\nv_mov_b32 v57, 1\nds_write_b64 v56, v[58:59]"))
        issue(1, ex)
        a.wait_vm([("c", 0)])
        a("s_waitcnt lgkmcnt(0)")
        stamp(a, cfg, 1)
        gq = list(range(16)); cq = list(range(43))
        NT = [0] * 6 if typ == "F" else [cfg.get("nt", 0)] * 6
        for c in range(6):
            if cfg.get("pb") == 1 and c > 0: stamp(a, dict(cfg, pbx=1), [0, 3, 4, 5, 6, 7][c])
            a("s_barrier")
            if cfg.get("pb") == 2 and c > 0: stamp(a, dict(cfg, pbx=1), [0, 3, 4, 5, 6, 7][c])
            ex = []
            if c == 0 and not cfg.get("nowarm"): ex.append(warm_h)
            if c == cfg.get("warmc", 1) and not cfg.get("nowarm"): ex.append(warm_d)
            if cfg.get("l2w") and c >= 2: ex.append(lambda c=c: warm_l2(c - 2, 23))
            if c == 0: ex.append(lambda: (a("v_mov_b32 v35, 0"), a.vm("buffer_load_dwordx2 v[32:33], v35, s[88:91], 0 offen sc1", "nonce")))
            if c == 2: ex.append(nonce_chk)
            gs = []
            if typ == "D" and c < 5 and not cfg.get("noearly"): ex.append(lambda c=c: wd_dma(a, [0, 1, 2, 3, 6][c]))
            ts = [cq.pop(0) for _ in range(NT[c])]
            while gs or ts:
                n = gs.pop(0) if gs else None; t_ = ts.pop(0) if ts else None
                ex.append(lambda n=n, t_=t_: touch(t_))
            issue(c + 2, ex)
            a.wait_vm([("c", c + 1)])
        a("s_barrier")
        stamp(a, cfg, 2)
        a(f"""
        v_and_b32 v44, 31, v0
        s_lshl_b32 s37, s36, 5
        v_add_u32 v45, s37, v44
        s_lshl_b32 s38, s22, 7
        v_add_u32 v46, s38, v45
        v_lshlrev_b32 v46, 4, v46
        s_mov_b32 s37, {ST_OFF}
        """)
        a.vm("buffer_load_dwordx4 v[36:39], v46, s[32:35], s37 offen sc1", "st")
        if cfg.get("p2d"): a(f"s_lshl_b32 s38, s74, 14\ns_add_u32 s38, s38, {FLG_OFF}\nv_min_u32 v51, 21, v0\nv_add_u32 v51, s73, v51\nv_lshlrev_b32 v51, 7, v51")
        else: a(f"s_lshl_b32 s38, s74, 9\ns_add_u32 s38, s38, {FLG_OFF}\nv_and_b32 v51, 3, v0\nv_lshlrev_b32 v51, 7, v51")
        a.vm("buffer_load_dword v51, v51, s[32:35], s38 offen sc1", "flt")
        if typ == "F":
            a(f"""
            s_lshl_b32 s57, s23, 11
            s_lshl_b32 s58, s36, 9
            s_add_u32 s57, s57, s58
            s_add_u32 s57, s57, {CS_OFF}
            v_lshlrev_b32 v47, 3, v0
            v_bfe_u32 v48, v0, 3, 1
            s_and_b32 s58, s22, 1
            s_lshl_b32 s58, s58, 1
            v_add_u32 v48, s58, v48
            v_lshlrev_b32 v48, 3, v48
            v_and_b32 v49, 7, v0
            v_add_u32 v48, v48, v49
            v_lshlrev_b32 v48, 10, v48
            s_lshr_b32 s58, s22, 1
            s_lshl_b32 s58, s58, 7
            s_add_u32 s58, s58, {XID_OFF}
            """)
            a.vm("buffer_load_dwordx2 v[42:43], v48, s[32:35], s58 offen sc1", "st")
            def cb_inc():
                a("s_mov_b64 exec, 1\nds_add_u32 v56, v57 offset:4\ns_mov_b64 exec, -1")
            def ca_wait(n, lab):
                a(f"""
                s_mov_b32 s44, 0
{lab}:
                ds_read_b32 v58, v56
                s_add_u32 s44, s44, 1
                s_waitcnt lgkmcnt(0)
                v_readfirstlane_b32 s45, v58
                s_cmp_ge_u32 s44, {SPIN_MAX*16}
                s_cbranch_scc1 {lab}_OK
                s_cmp_lt_u32 s45, {n}
                s_cbranch_scc1 {lab}
{lab}_OK:
                """)
                a.lds_q = []
            a.vm("buffer_load_dwordx2 v[40:41], v47, s[32:35], s57 offen sc1", "st")
            n1 = cfg.get("n1", 2)
            for p in range(n1): wd_dma(a, p)
            a.wait_vm([("c", 7)])
            cb_inc()
            stamp(a, cfg, 6)
            for p in range(n1, 7): wd_dma(a, p)
        else:
            a.wait_vm([("c", 7)])
            stamp(a, cfg, 6)
            a("s_barrier")
            stamp(a, cfg, 8)
        a.wait_vm(["st"])
        a(f"""
        s_mov_b32 s56, 0
{L}_STCHK:
        v_cmp_eq_u32 vcc, s92, v38
        v_cmp_eq_u32 s[38:39], s93, v39
        {'v_cmp_eq_u32 s[44:45], s92, v41' if typ == "F" else ''}
        s_add_u32 s56, s56, 1
        s_nop 2
        s_and_b64 vcc, vcc, s[38:39]
        {'s_and_b64 vcc, vcc, s[44:45]' if typ == "F" else ''}
        s_cmp_eq_u64 vcc, -1
        s_cbranch_scc1 {L}_STOK
        s_cmp_ge_u32 s56, {SPIN_MAX}
        s_cbranch_scc1 {L}_STOK
        buffer_load_dwordx4 v[36:39], v46, s[32:35], s37 offen sc1
        {'buffer_load_dwordx2 v[40:41], v47, s[32:35], s57 offen sc1' if typ == "F" else ''}
        s_waitcnt vmcnt(0)
        s_branch {L}_STCHK
{L}_STOK:
        v_rcp_f32 v44, v37
        """)
        if cfg.get("prof"): a("s_mov_b32 s71, s71\ns_mov_b32 s101, s56")
        stamp(a, cfg, 11)
        if typ == "F":
            a(f"""
            v_mul_f32 v66, v37, v37
            v_lshlrev_b32 v45, 5, v45
            v_mul_f32 v62, {fhex(GC)}, v44
            v_mul_f32 v64, v44, v44
            v_mul_f32 v64, {fhex(0.044715)}, v64
            v_mul_f32 v64, v64, v62
            v_mov_b32 v60, v36
            v_mov_b32 v61, v36
            v_mov_b32 v63, v62
            v_mov_b32 v65, v64
            v_mov_b32 v67, v66
            v_add_u32 v45, {LDS_ST2}, v45
            ds_write_b128 v45, v[60:63]
            ds_write_b128 v45, v[64:67] offset:16
            v_lshrrev_b32 v45, 4, v0
            v_lshlrev_b32 v45, 7, v45
            s_and_b32 s38, s36, 1
            s_lshl_b32 s38, s38, 9
            s_lshr_b32 s39, s36, 1
            s_lshl_b32 s39, s39, {5 if shape == 32 else 6}
            s_add_u32 s38, s38, s39
            s_add_u32 s38, s38, {LDS_CS}
            """)
            if shape == 32:
                a("""v_and_b32 v46, 3, v0
                v_lshl_add_u32 v45, v46, 2, v45
                v_bfe_u32 v46, v0, 2, 1
                v_lshl_add_u32 v45, v46, 6, v45
                v_bfe_u32 v46, v0, 3, 1
                v_lshl_add_u32 v45, v46, 4, v45""")
            else:
                a("v_and_b32 v46, 15, v0\nv_lshl_add_u32 v45, v46, 2, v45")
            a(f"""
            v_add_u32 v45, s38, v45
            ds_write_b32 v45, v40
            v_cmp_eq_u32 vcc, s92, v43
            v_cmp_eq_u32 s[38:39], s100, v42
            v_mov_b32 v44, {LDS_MODE}
            v_mov_b32 v49, s92
            v_mov_b32 v50, s93
            s_nop 0
            s_and_b64 vcc, vcc, s[38:39]
            s_cmp_eq_u64 vcc, -1
            s_cselect_b32 s38, {0 if (cfg.get('remote') or cfg.get('p2d')) else 1}, 0
            v_mov_b32 v48, s38
            s_cmp_eq_u32 s36, 0
            s_cselect_b64 exec, 1, 0
            ds_write_b96 v44, v[48:50]
            s_mov_b64 exec, -1
            """)
            a.wait_lds_all()
            cb_inc()
            stamp(a, cfg, 3)
            a.wait_vm([("wd", 2)])
            for p in range(3): tr2(a, cfg, p, AS2 + p * 8)
            ca_wait(4, "L_CA4")
            stamp(a, cfg, 8)
            for p in range(7, 16): wd_dma(a, p)
            ca_wait(8, "L_CA8")
            for p in range(16, 22): wd_dma(a, p)
            a("s_branch L_P2")
        else:
            a(f"""
            v_lshlrev_b32 v45, 2, v45
            v_add_u32 v45, {LDS_AUX}, v45
            ds_write_b32 v45, v36
            ds_write_b32 v45, v44 offset:512
            s_waitcnt lgkmcnt(0)
            s_barrier
            """)
            stamp(a, cfg, 3)
            if cfg.get("noearly"): a("s_branch L_HI2")
            else:
                for p in range(3): tr2(a, cfg, p, AS2 + p * 8)
                for p in list(range(21, 13, -1)) + [10, 9, 8, 7, 5, 4]: wd_dma(a, p)
                a.wait_lds_all()
                for p in (13, 12, 11): wd_dma(a, p)
                a("s_branch L_P2")
    a.vm_q = []; a.lds_q = []
    a("L_HI:\ns_waitcnt lgkmcnt(0)")
    stamp(a, cfg, 0)
    common_srds(a); p2_setup(a, cfg); p2_setup2(a, cfg)
    a("s_cmp_lt_u32 s23, 11\ns_cbranch_scc1 L_HI2")
    get_nonce(a, "L_HI_N", 32)
    xid_publish(a, 36)
    a("L_HI2:")
    a.vm_q = []
    for p in [0, 1, 2] + list(range(21, 13, -1)) + list(range(10, 2, -1)): wd_dma(a, p)
    a.wait_vm([("wd", 2)])
    for p in range(3): tr2(a, cfg, p, AS2 + p * 8)
    a.wait_lds_all()
    for p in range(11, 14): wd_dma(a, p)
    a.vm_q = []
    phase2(a, cfg)

def flagchk(a, lab, vd, vaddr, so="s54"):
    a(f"""
    s_mov_b32 s56, 0
{lab}:
    v_cmp_eq_u32 vcc, s92, v{vd}
    v_cmp_eq_u32 s[38:39], s93, v{vd+1}
    s_add_u32 s56, s56, 1
    s_nop 2
    s_and_b64 vcc, vcc, s[38:39]
    s_cmp_eq_u64 vcc, -1
    s_cbranch_scc1 {lab}_OK
    s_cmp_ge_u32 s56, {SPIN_MAX}
    s_cbranch_scc1 {lab}_OK
    s_sleep 16
    buffer_load_dwordx2 {v(vd,2)}, v{vaddr}, s[32:35], {so} offen sc1
    s_waitcnt vmcnt(0)
    s_branch {lab}
{lab}_OK:
    """)

def phase2(a, cfg):
    a("L_P2:")
    stamp(a, cfg, 4)
    TA, TD, TM = 128, 129, 130
    a(f"""
    s_and_b32 s53, s36, 1
    s_cmp_eq_u32 s53, 0
    s_cselect_b32 s44, 6, 5
    s_cselect_b32 s45, 12, 10
    s_cselect_b32 s46, 17, 16
    s_lshl_b32 s53, s53, 1
    v_min_u32 v{TM}, 21, v0
    v_cmp_le_u32 vcc, s44, v{TM}
    v_cmp_le_u32 s[38:39], s45, v{TM}
    v_cmp_le_u32 s[48:49], s46, v{TM}
    v_mov_b32 v{TA}, 0
    v_mov_b32 v{TD}, 0
    v_mov_b32 v{TM+1}, s44
    v_cndmask_b32 v{TA}, v{TA}, v{TM+1}, vcc
    v_addc_co_u32 v{TD}, vcc, 0, v{TD}, vcc
    v_mov_b32 v{TM+1}, s45
    v_cndmask_b32 v{TA}, v{TA}, v{TM+1}, s[38:39]
    v_addc_co_u32 v{TD}, vcc, 0, v{TD}, s[38:39]
    v_mov_b32 v{TM+1}, s46
    v_cndmask_b32 v{TA}, v{TA}, v{TM+1}, s[48:49]
    v_addc_co_u32 v{TD}, vcc, 0, v{TD}, s[48:49]
    v_sub_u32 v{TA}, v{TM}, v{TA}
    v_add_u32 v{TD}, s53, v{TD}
    v_and_b32 v{TD}, 3, v{TD}
    v_lshl_add_u32 v{TA}, v{TA}, 2, v{TD}
    v_add_u32 v{TA}, s73, v{TA}
    v_lshlrev_b32 v{TA}, {7 if cfg.get("p2d") else 2}, v{TA}
    s_lshl_b32 s55, s74, {14 if cfg.get("p2d") else 9}
    s_add_u32 s55, s55, {FLG_OFF}
    s_cmp_eq_u32 s36, 3
    s_cselect_b32 s43, {OOB}, 0
    s_cselect_b32 s47, {(1 << 15) | (1 << 21)}, 0
    s_mov_b32 s57, 0
    v_lshlrev_b32 v6, 4, v0
    s_add_u32 s53, s72, {LDS_W}
    v_add_u32 v7, s53, v6
    """)
    def hload(n, part=None):
        h = HF2 + (n % HR2) * 8
        base = f"s{97+DCL[n]}"
        if part in (None, 0):
            if LOC_O[n] >= 20: a(f"s_add_u32 s53, {base}, s43\ns_add_u32 s53, s53, {LOC_E[n]*1024}")
            else: a(f"s_add_u32 s53, {base}, {LOC_E[n]*1024}")
        for rt in ((0, 1) if part is None else (part,)): a.vm(f"buffer_load_dwordx4 {v(h+4*rt,4)}, v{VH2+rt}, s[32:35], s53 offen sc1", ("h", n))
    def AREG(n):
        if n < 3: return AS2 + n * 8
        if n >= 18: return [AF2, AF2 + 8, AS2, AS2 + 8][n - 18]
        return AF2 + (n & 1) * 8
    def mfma(n, ct, rt):
        h = HF2 + (n % HR2) * 8; c = ACC2 + (rt * 2 + ct) * 16
        a(f"v_mfma_f32_32x32x16_bf16 {v(c,16)}, {v(AREG(n)+ct*4,4)}, {v(h+rt*4,4)}, {'0' if n == 0 else v(c,16)}")
    def mm(n, fill):
        a.wait_vm([("h", n)])
        a.wait_lds([("a", n, 0), ("a", n, 1)])
        k = 0
        for ct in range(2):
            for rt in range(2):
                mfma(n, ct, rt); fill[k](); k += 1
    PD = cfg.get("pd", 8); P0 = cfg.get("p0", 4); NF = cfg.get("nf", 2); NG = cfg.get("ng", 5)
    slow = []
    def gate(n, mask):
        a(f"s_and_b32 s53, s47, {mask}\ns_cmp_eq_u32 s53, {mask}\ns_cbranch_scc0 L_NS{n}\nL_NR{n}:")
        slow.append((n, mask))
    def feed(n, part=None):
        if part == 1: return hload(n, 1)
        if n == 10:
            a.wait_vm(["f"])
            a(f"v_cmp_eq_u32 vcc, s92, v{TM + 2}\ns_nop 3\ns_or_b32 s47, s47, vcc_lo")
            gate(10, (1 << 22) - 1)
        hload(n, part)
    gate(0, (1 << 10) - 1)
    a.vm_q = []
    stamp(a, cfg, 5)
    for n in range(P0): feed(n)
    tr2(a, cfg, 3, AREG(3))
    nxt = P0
    nop = lambda: None
    for n in range(18):
        t2 = (lambda: tr2(a, cfg, n + 1, AREG(n + 1))) if n >= 3 else nop
        todo = [m for m in (nxt, nxt + 1) if m < 22 and m <= n + PD and (m < 10 or n >= NG)]
        nxt += len(todo)
        if len(todo) == 2: fl = [lambda: (t2(), feed(todo[0], 0)), lambda: feed(todo[0], 1), lambda: feed(todo[1], 0), lambda: feed(todo[1], 1)]
        elif len(todo) == 1: fl = [t2, lambda: feed(todo[0], 0), lambda: feed(todo[0], 1), nop]
        else: fl = [t2, nop, nop, nop]
        if n == NF:
            f3 = fl[3]
            fl[3] = lambda f3=f3: (f3(), a.vm(f"buffer_load_dword v{TM + 2}, v{TA}, s[32:35], s55 offen sc1", "f"))
        if n == 16: fl[3] = lambda: tr2(a, cfg, 20, AREG(20))
        if n == 17: fl[3] = lambda: tr2(a, cfg, 21, AREG(21))
        mm(n, fl)
        if n == 10 and not cfg.get("nost"): stamp(a, cfg, 7)
    assert nxt == 22
    tr2(a, cfg, 19, AREG(19))
    a.wait_vm([("h", 21)])
    order = [(0, 0), (0, 1), (1, 0), (1, 1)]
    def wr(o):
        for q in range(4): a(f"ds_write_b128 v7, {v(ACC2+o*16+q*4,4)} offset:{(o&1)*4096 + (o>>1)*32768 + q*1024}")
    def wr1(o, q): a(f"ds_write_b128 v7, {v(ACC2+o*16+q*4,4)} offset:{(o&1)*4096 + (o>>1)*32768 + q*1024}")
    prev = None
    for ti, (ct, rt) in enumerate(order):
        if ti == 1: a.wait_lds_all()
        for k, n in enumerate((18, 20, 21, 19)):
            a.wait_lds([("a", n, ct)])
            mfma(n, ct, rt)
            if prev is not None:
                if k == 0: a("s_nop 5")
                if k == 1: a("s_nop 3"); wr1(prev, 0)
                if k == 2: wr1(prev, 1); wr1(prev, 2)
                if k == 3: wr1(prev, 3)
        prev = rt * 2 + ct
    stamp(a, cfg, 9)
    a("s_nop 7\ns_nop 3")
    wr(prev)
    a("s_waitcnt lgkmcnt(0)\ns_barrier")
    stamp(a, cfg, 10)
    prof_flush(a, cfg)
    a("s_endpgm")
    for n, mask in slow:
        a(f"""L_NS{n}:
        s_mov_b32 s56, 0
L_NT{n}:
        buffer_load_dword v{TM+1}, v{TA}, s[32:35], s55 offen sc1
        s_add_u32 s56, s56, 1
        s_add_u32 s57, s57, 1
        s_waitcnt vmcnt(0)
        v_cmp_eq_u32 vcc, s92, v{TM+1}
        s_cmp_ge_u32 s56, {SPIN_MAX}
        s_cbranch_scc1 L_NR{n}
        s_nop 1
        s_or_b32 s47, s47, vcc_lo
        s_and_b32 s53, s47, {mask}
        s_cmp_eq_u32 s53, {mask}
        s_cbranch_scc1 L_NR{n}
        s_sleep {cfg.get('hsl', 1)}
        s_branch L_NT{n}""")

def final(a, cfg):
    Y, ZF, GF, XR, TF = 16, 32, 48, 64, 72
    a(f"""
L_FIN:
    s_setprio 0
    s_and_b32 s74, s2, 7
    s_lshl_b32 s74, s74, 2
    s_lshr_b32 s75, s2, 6
    s_add_u32 s74, s74, s75           ; g
    s_bfe_u32 s75, s2, 0x30003        ; cg2
    s_and_b32 s45, s20, 1             ; ct
    s_lshr_b32 s46, s20, 1            ; rt
    s_mov_b32 s54, {FL_OFF}
    s_sub_u32 s47, 7, s75
    s_sub_u32 s48, 8, s75
    s_and_b32 s48, s48, 3
    s_cmp_lt_u32 s75, 4
    s_cselect_b32 s47, s75, s47
    s_cselect_b32 s48, s75, s48
    s_sub_u32 s48, s48, s47
    v_and_b32 v8, 15, v0
    v_lshlrev_b32 v8, 2, v8
    v_bfe_u32 v9, v0, 4, 1
    v_mul_lo_u32 v9, s48, v9
    v_add3_u32 v8, v8, v9, s47
    v_lshlrev_b32 v8, 7, v8
    """)
    a.vm_q = []
    a.vm(f"buffer_load_dwordx2 {v(TF,2)}, v8, s[32:35], s54 offen sc1", "fd")
    a(f"""
    s_lshl_b32 s47, s75, 6
    s_lshl_b32 s48, s45, 5
    s_add_u32 s47, s47, s48
    s_lshl_b32 s48, s46, 5
    s_add_u32 s48, s48, s74           ; residue
    s_lshl_b32 s48, s48, 10
    s_lshl_b32 s53, s47, 1
    s_add_u32 s48, s48, s53
    v_and_b32 v6, 31, v0
    v_lshrrev_b32 v7, 5, v0
    v_lshlrev_b32 v5, 16, v6
    v_lshl_add_u32 v5, v7, 4, v5
    v_add_u32 v5, s48, v5
    """)
    a.vm(f"buffer_load_dwordx4 {v(XR,4)}, v5, s[24:27], 0 offen", "x")
    a.vm(f"buffer_load_dwordx4 {v(XR+4,4)}, v5, s[24:27], 0 offen offset:32", "x")
    a(f"""
    s_cmp_lg_u32 s74, 0
    s_cselect_b32 s76, s46, 0         ; mirror
    s_sub_u32 s77, s46, s76           ; delta
    s_sub_u32 s78, 32, s74
    s_cmp_eq_u32 s46, 0
    s_cselect_b32 s78, s74, s78       ; tz
    s_mul_i32 s78, s78, {ZROW}
    s_add_u32 s78, s78, {Z_OFF}
    v_add_u32 v1, s47, v6
    v_sub_u32 v2, 512, v1
    v_and_b32 v2, 511, v2
    v_sub_u32 v3, 31, v6
    s_cmp_eq_u32 s76, 1
    s_cselect_b64 vcc, -1, 0
    v_cndmask_b32 v1, v1, v2, vcc
    v_cndmask_b32 v6, v6, v3, vcc
    v_sub_u32 v2, 512, v1
    v_and_b32 v2, 255, v2
    v_or_b32 v2, 256, v2
    v_cmp_gt_u32 vcc, 256, v1
    s_nop 1
    v_cndmask_b32 v1, v2, v1, vcc
    v_mul_u32_u24 v2, {4*33*ZROW}, v7
    v_lshl_add_u32 v1, v1, 2, v2      ; Z offset
    v_lshlrev_b32 v6, 1, v6
    v_add_u32 v6, s77, v6
    v_cvt_f32_u32 v6, v6
    v_mul_f32 v6, {fhex(1/64)}, v6
    v_cvt_f32_u32 v7, v7
    v_mul_f32 v7, 4.0, v7
    v_mul_f32 v7, v7, v6
    """)
    def g_gen(n):
        q, d = n >> 2, n & 3
        a(f"""v_fmamk_f32 v2, v6, {fhex(float(8*q+d))}, v7
        v_cos_f32 v3, v2
        v_sin_f32 v4, v2
        s_nop 0
        v_cvt_pk_bf16_f32 v{GF+n}, v3, v4""")
    for n in range(8): g_gen(n)
    a.wait_vm(["fd"])
    flagchk(a, "L_FD", TF, 8)
    stamp(a, cfg, 9)
    for q in range(4):
        for d in range(4):
            a(f"s_add_u32 s53, s78, {(8*q + d)*33*ZROW}")
            a.vm(f"buffer_load_dword v{ZF+q*4+d}, v1, s[32:35], s53 offen sc1", "z")
    for n in range(8, 16): g_gen(n)
    a(f"""
    s_mov_b32 s48, 0xffff0000
    s_lshl_b32 s53, s45, 12
    s_lshl_b32 s54, s46, 15
    s_add_u32 s53, s53, s54
    s_add_u32 s53, s53, {LDS_W}
    v_lshlrev_b32 v9, 4, v0
    v_add_u32 v9, s53, v9""")
    a.wait_vm(["x"])
    a(f"""v_permlane32_swap_b32 v{XR}, v{XR+2}
    v_permlane32_swap_b32 v{XR+1}, v{XR+3}
    v_permlane32_swap_b32 v{XR+4}, v{XR+6}
    v_permlane32_swap_b32 v{XR+5}, v{XR+7}""")
    for Q in range(4):
        for e in range(2):
            src = XR + Q * 2 + e
            a(f"v_lshlrev_b32 v{80+Q*4+2*e}, 16, v{src}\nv_and_b32 v{80+Q*4+2*e+1}, s48, v{src}")
    a.wait_vm_all()
    for q in range(4):
        a(f"v_mfma_f32_32x32x16_bf16 {v(Y,16)}, {v(ZF+q*4,4)}, {v(GF+q*4,4)}, {'0' if q == 0 else v(Y,16)}")
    a("s_mov_b32 s24, s82\ns_mov_b32 s25, s83")
    stamp(a, cfg, 10)
    a("s_barrier")
    a.lds_q = []
    R = 96
    for w in range(4):
        if w == 3: a.wait_lds([("r", 0)])
        for q in range(4): a.lds(f"ds_read_b128 {v(R+w*16+q*4,4)}, v9 offset:{w*8192 + q*1024}", ("r", w))
    for w in range(1, 4):
        a.wait_lds([("r", w)])
        for i in range(0, 16, 2): a(f"v_pk_add_f32 {v(R+i,2)}, {v(R+i,2)}, {v(R+w*16+i,2)}")
    for i in range(16): a(f"v_mul_f32 v{R+16+i}, {fhex(-LOG2E)}, v{R+i}")
    for i in range(16): a(f"v_exp_f32 v{R+16+i}, v{R+16+i}")
    for i in range(0, 16, 2): a(f"v_pk_mul_f32 {v(R+i,2)}, {v(R+i,2)}, {v(Y+i,2)}")
    for i in range(16): a(f"v_add_f32 v{R+16+i}, 1.0, v{R+16+i}")
    for i in range(16): a(f"v_rcp_f32 v{R+16+i}, v{R+16+i}")
    a("s_nop 0")
    for i in range(0, 16, 2): a(f"v_pk_fma_f32 {v(R+i,2)}, {v(R+i,2)}, {v(R+16+i,2)}, {v(80+i,2)}")
    for i in range(8): a(f"v_cvt_pk_bf16_f32 v{64+i}, v{R+2*i}, v{R+2*i+1}")
    of = cfg.get("outflag", 0)
    fl = ["", " sc1", " nt", " sc0 sc1"][of]
    a(f"""s_nop 1
    v_permlane32_swap_b32 v64, v66
    v_permlane32_swap_b32 v65, v67
    v_permlane32_swap_b32 v68, v70
    v_permlane32_swap_b32 v69, v71
    buffer_store_dwordx4 v[64:67], v5, s[24:27], 0 offen{fl}
    buffer_store_dwordx4 v[68:71], v5, s[24:27], 0 offen offset:32{fl}""")
    if cfg.get("prof"): a("s_waitcnt vmcnt(0)")
    stamp(a, cfg, 11)
    prof_flush(a, cfg)
    if "enc" in cfg:
        k, wv, lo, hi, op = cfg["enc"], cfg.get("encw", 0), cfg.get("enclo", 0), cfg.get("enchi", 176), ("min" if cfg.get("encmin") else "max")
        a(f"""
        s_or_b32 s42, s2, s20
        s_cmp_eq_u32 s42, 0
        s_cbranch_scc0 L_END
        s_add_u32 s42, s92, 4000
L_E1:
        s_memrealtime s[40:41]
        s_waitcnt lgkmcnt(0)
        s_sub_u32 s41, s40, s42
        s_cmp_lt_i32 s41, 0
        s_cbranch_scc1 L_E1
        v_mov_b32 v3, {'0x7fffffff' if op == 'min' else '0x80000000'}
        """)
        for i in range(4):
            a(f"v_add_u32 v4, {64*i}, v0\nv_max_u32 v4, {lo}, v4\nv_min_u32 v4, {hi-1}, v4\nv_lshlrev_b32 v4, 9, v4")
            for w in range(4):
                a(f"s_mov_b32 s42, {PROF_BASE + (wv*4 + w)*64 + k*4}\nbuffer_load_dword v5, v4, s[44:47], s42 offen sc1\ns_waitcnt vmcnt(0)\nv_subrev_u32 v5, s92, v5\nv_{op}_i32 v3, v3, v5")
        a(f"""
        s_mov_b32 s43, 0
        v_readlane_b32 s50, v3, 0
L_E2:
        s_nop 3
        v_readlane_b32 s51, v3, s43
        s_nop 3
        s_{op}_i32 s50, s50, s51
        s_add_u32 s43, s43, 1
        s_cmp_lt_u32 s43, 64
        s_cbranch_scc1 L_E2
        s_mul_i32 s50, s50, 10
        s_add_u32 s42, s92, s50
        s_add_u32 s42, s42, 6000
L_E3:
        s_memrealtime s[40:41]
        s_waitcnt lgkmcnt(0)
        s_sub_u32 s41, s40, s42
        s_cmp_lt_i32 s41, 0
        s_cbranch_scc1 L_E3
        """)
    a("s_endpgm")

def geglu(a, items, T, O):
    for g, u, cg, cu, st in items: a(f"v_pk_fma_f32 {v(g,2)}, {v(st,2)}, {v(cg,2)}, {v(g,2)}")
    for i, (g, u, cg, cu, st) in enumerate(items): a(f"v_pk_mul_f32 {v(T+2*i,2)}, {v(g,2)}, {v(g,2)}")
    for i, (g, u, cg, cu, st) in enumerate(items): a(f"v_pk_fma_f32 {v(T+2*i,2)}, {v(T+2*i,2)}, {v(st+4,2)}, {v(st+2,2)}")
    for i, (g, u, cg, cu, st) in enumerate(items): a(f"v_pk_mul_f32 {v(T+2*i,2)}, {v(T+2*i,2)}, {v(g,2)}")
    for i in range(8): a(f"v_exp_f32 v{T+i}, v{T+i}")
    for g, u, cg, cu, st in items: a(f"v_pk_fma_f32 {v(u,2)}, {v(st,2)}, {v(cu,2)}, {v(u,2)}")
    for i, (g, u, cg, cu, st) in enumerate(items): a(f"v_pk_fma_f32 {v(T+2*i,2)}, {v(T+2*i,2)}, {v(st+6,2)}, {v(st+6,2)}")
    for i in range(8): a(f"v_rcp_f32 v{T+i}, v{T+i}")
    for g, u, cg, cu, st in items: a(f"v_pk_mul_f32 {v(u,2)}, {v(u,2)}, {v(g,2)}")
    for i, (g, u, cg, cu, st) in enumerate(items): a(f"v_pk_mul_f32 {v(u,2)}, {v(u,2)}, {v(T+2*i,2)}")
    for i, (g, u, cg, cu, st) in enumerate(items): a(f"v_cvt_pk_bf16_f32 v{O+i}, v{u}, v{u+1}")

def mma_ffn(a, cfg):
    shape = cfg["shape"]
    ACC = 128
    VXA, VWA = 8, 12
    XF, WF = (16, 32) if shape == 32 else (16, 48)
    a(f"""
    s_or_b32 s38, s2, s20
    s_cmp_eq_u32 s38, 0
    s_cbranch_scc0 L_NONONCE
    s_memrealtime s[92:93]
    s_waitcnt lgkmcnt(0)
    s_or_b32 s92, s92, 1
    v_mov_b32 v2, s92
    v_mov_b32 v3, s93
    v_mov_b32 v4, 0
    s_mov_b64 exec, 1
    buffer_store_dwordx2 v[2:3], v4, s[88:91], 0 offen sc1
    s_mov_b64 exec, -1
L_NONONCE:
    """)
    if shape == 32:
        a(f"""
        v_and_b32 v1, 31, v0
        v_lshrrev_b32 v2, 5, v0
        v_bfe_u32 v3, v0, 1, 3
        v_xor_b32 v3, v3, v2
        v_lshlrev_b32 v3, 4, v3
        v_lshl_add_u32 v3, v1, 7, v3
        s_lshl_b32 s38, s36, 13
        v_add_u32 v{VXA}, s38, v3
        v_xor_b32 v{VXA+1}, 32, v{VXA}
        v_xor_b32 v{VXA+2}, 64, v{VXA}
        v_xor_b32 v{VXA+3}, 96, v{VXA}
        v_bfe_u32 v3, v0, 2, 2            ; r
        v_bfe_u32 v4, v0, 4, 1            ; mat
        v_lshl_add_u32 v5, v2, 3, v3      ; 8h + r
        v_lshlrev_b32 v5, 8, v5
        v_lshl_add_u32 v5, v4, 14, v5
        v_lshl_or_b32 v3, v3, 1, v4       ; g = r<<1 | mat
        """)
        nxa = 4
    else:
        a(f"""
        v_and_b32 v1, 15, v0
        v_lshrrev_b32 v2, 4, v0           ; g
        v_bfe_u32 v3, v0, 1, 3
        v_xor_b32 v3, v3, v2
        v_lshlrev_b32 v3, 4, v3
        v_lshl_add_u32 v3, v1, 7, v3
        s_lshl_b32 s38, s36, 13
        v_add_u32 v{VXA}, s38, v3
        v_xor_b32 v{VXA+1}, 64, v{VXA}
        v_bfe_u32 v3, v0, 2, 2            ; r
        v_and_b32 v4, 1, v2
        v_lshl_add_u32 v5, v2, 3, v3      ; 8g + r
        v_lshlrev_b32 v5, 8, v5
        v_lshl_or_b32 v3, v3, 1, v4       ; (r<<1) | (g&1)
        """)
        nxa = 2
    a(f"""
    s_lshl_b32 s38, s37, 2
    v_xor_b32 v3, s38, v3             ; u ^ g for j = 0
    v_lshl_add_u32 v5, v3, 5, v5
    v_and_b32 v4, 3, v0
    v_lshl_add_u32 v5, v4, 3, v5
    v_add_u32 v{VWA}, {LDS_W}, v5
    v_xor_b32 v{VWA+1}, 32, v{VWA}
    v_xor_b32 v{VWA+2}, 64, v{VWA}
    v_xor_b32 v{VWA+3}, 96, v{VWA}
    """)
    for i in range(128):
        a(f"v_mov_b32 v{ACC+i}, 0")
    if cfg.get("warmlate"): warm(a, cfg, "F")
    VCS, VST, VH = 112, 113, 114
    a(f"""
    s_lshl_b32 s38, s37, 9
    s_add_u32 s38, s38, {LDS_CS}
    v_lshlrev_b32 v3, {6 if shape == 32 else 4}, v2
    v_add_u32 v{VCS}, s38, v3
    s_lshl_b32 s38, s36, 11
    s_add_u32 s38, s38, {LDS_ST2}
    v_lshlrev_b32 v4, 5, v1
    v_add_u32 v{VST}, s38, v4
    s_lshl_b32 s38, s22, 1
    s_add_u32 s38, s38, s36           ; g
    s_lshl_b32 s78, s38, {14 if cfg.get("p2d") else 9}
    s_add_u32 s78, s78, {FLG_OFF}
    s_mul_i32 s38, s38, {2*88064}
    """)
    if shape == 32:
        a(f"""
        v_lshlrev_b32 v5, 4, v0
        v_add_u32 v{VH}, s38, v5
        v_add_u32 v{VH+1}, 88064, v{VH}
        """)
    else:
        a(f"""
        v_lshrrev_b32 v5, 1, v2
        v_lshlrev_b32 v5, 9, v5
        v_and_b32 v7, 1, v2
        v_lshl_add_u32 v7, v7, 3, v5      ; (g>>1)*512 + (g&1)*8
        v_lshl_add_u32 v5, v1, 4, v7
        v_add_u32 v{VH}, s38, v5
        v_add_u32 v{VH+1}, 256, v{VH}
        v_add_u32 v{VH+2}, 88064, v{VH}
        v_add_u32 v{VH+3}, {88064+256}, v{VH}
        """)
    a(f"""v_mov_b32 v118, {LDS_MODE}
    v_mov_b32 v119, 0
    v_and_b32 v5, 15, v0
    v_lshlrev_b32 v5, 6, v5
    v_bfe_u32 v7, v0, 4, 1
    v_mul_u32_u24 v7, 88064, v7
    v_add3_u32 v123, v5, v7, s38
    v_mov_b32 v122, {LDS_CA}
    v_mov_b32 v124, 1""")
    a(f"""
    s_lshl_b32 s79, s23, 3
    s_lshl_b32 s39, s37, 2
    s_add_u32 s79, s79, s39
    s_mov_b32 s56, 0
    s_mov_b32 s57, 0
    s_setprio {cfg.get('pm', 0)}
    """)
    stamp(a, cfg, 0)
    if shape == 32:
        nstep, nA, nB = 4, 4, 2
        XS, WS = 8, 16
        def xread(st, t): return f"ds_read_b128 {v(XF + (st&1)*XS + t*4, 4)}, v{VXA+st%nstep} offset:{t*4096}"
        def wread(st, p, q): return f"ds_read_b64_tr_b16 {v(WF + (st&1)*WS + p*4 + q*2, 2)}, v{VWA+p} offset:{(st%nstep)*4096 + q*1024}"
        def mfma(st, p, t):
            c = ACC + (p * 2 + t) * 16
            return f"v_mfma_f32_32x32x16_bf16 {v(c,16)}, {v(WF+(st&1)*WS+p*4,4)}, {v(XF+(st&1)*XS+t*4,4)}, {v(c,16)}"
        per_gap = [2, 2, 2, 2, 1, 1]
        waits = {0: 1, 2: 3}
    else:
        nstep, nA, nB = 2, 8, 4
        XS, WS = 16, 32
        def xread(st, t): return f"ds_read_b128 {v(XF + (st&1)*XS + t*4, 4)}, v{VXA+st%nstep} offset:{t*2048}"
        def wread(st, p, q): return f"ds_read_b64_tr_b16 {v(WF + (st&1)*WS + p*4 + q*2, 2)}, v{VWA+(p>>1)} offset:{(p&1)*16384 + (st%nstep)*8192 + q*1024}"
        def mfma(st, p, t):
            c = ACC + (p * 4 + t) * 4
            return f"v_mfma_f32_16x16x32_bf16 {v(c,4)}, {v(WF+(st&1)*WS+p*4,4)}, {v(XF+(st&1)*XS+t*4,4)}, {v(c,4)}"
        per_gap = [1] * 20
        waits = {0: 3, 3: 7}
    def readlist(st):
        r = [(xread(st, 0), ("x", st % nstep, 0)), (wread(st, 0, 0), ("w", st % nstep, 0)), (wread(st, 0, 1), ("w", st % nstep, 0))]
        r += [(xread(st, t), ("x", st % nstep, t)) for t in range(1, nB)]
        for p in range(1, nA): r += [(wread(st, p, q), ("w", st % nstep, p)) for q in range(2)]
        return r
    G = nA * nB
    salu = ["s_add_u32 s57, s57, 1", "s_cmp_eq_u32 s57, 3", "s_cselect_b32 s58, -2, 1", "s_cselect_b32 s57, 0, s57", "s_lshl_b32 s59, s58, 15", "s_lshl_b32 s58, s58, 14"]
    xup = [f"v_add_u32 v{VXA+i}, s58, v{VXA+i}" for i in range(nxa)]
    wup = [f"v_add_u32 v{VWA+i}, s59, v{VWA+i}" for i in range(4)]
    extra = {}
    if shape == 32:
        extra[(0, 6)] = salu[:3]; extra[(0, 7)] = salu[3:]
        extra[(1, 6)] = xup[:2]; extra[(1, 7)] = xup[2:3]
        extra[(2, 6)] = xup[3:] + wup[:2]; extra[(2, 7)] = wup[2:]
        extra[(3, 7)] = []
        bar_gap = 0
    else:
        for i, x_ in enumerate(salu): extra[(0, 20 + i)] = [x_]
        for i, x_ in enumerate(xup + wup): extra[(0, 26 + i)] = [x_]
        bar_gap = 0
    a.lds_q = []
    a("s_barrier")
    stamp(a, cfg, 1)
    cyc(a, cfg, 0)
    for ins, tag in readlist(0): a.lds(ins, tag)
    if len(a.lds_q) > 15: a.wait_lds([("w", 0, 1)])
    entry_q = list(a.lds_q)
    a(".p2align 3\nL_FLOOP:")
    for st in range(nstep):
        rl = readlist(st + 1); pg = list(per_gap)
        last = st == nstep - 1
        for p in range(nA):
            for t in range(nB):
                gap = p * nB + t
                if t == 0 and p in waits:
                    a.wait_lds([("w", st, pp) for pp in range(waits[p] + 1)] + [("x", st, tt) for tt in range(nB)])
                if not cfg.get('nomfma'): a(mfma(st, p, t))
                if last and gap == bar_gap:
                    a.wait_lds_all(); a("s_cmp_ge_u32 s56, 6\ns_cbranch_scc1 L_SOFT\ns_barrier\nL_SOFTB:")
                if (not last or gap > bar_gap) and pg:
                    for _ in range(pg.pop(0)):
                        ins, tag = rl.pop(0); a.lds(ins, tag)
                for x_ in extra.get((st, gap), []): a(x_)
                if last and gap == G - 2: a("s_add_u32 s56, s56, 1\ns_cmp_lt_u32 s56, 8")
        assert not rl
    if len(a.lds_q) > len(entry_q): a.wait_lds([("w", 0, 1)])
    assert a.lds_q == entry_q, (a.lds_q, entry_q)
    a("s_cbranch_scc1 L_FLOOP")
    a.lds_q = []
    stamp(a, cfg, 2)
    cyc(a, cfg, 1)
    ST, CS, T, O = (16, 32, 72, 80) if shape == 32 else (16, 48, 72, 80)
    SL = 96
    a(f"s_setprio {cfg.get('pe', 0)}\ns_waitcnt lgkmcnt(0)")
    nst = 2 if shape == 32 else 4
    a(f"""
    s_mov_b32 s44, 0
L_CB8:
    ds_read_b32 v120, v122 offset:4
    s_add_u32 s44, s44, 1
    s_waitcnt lgkmcnt(0)
    v_readfirstlane_b32 s45, v120
    s_cmp_ge_u32 s44, {SPIN_MAX*16}
    s_cbranch_scc1 L_CB8_OK
    s_cmp_lt_u32 s45, 8
    s_cbranch_scc1 L_CB8
L_CB8_OK:
    """)
    a.lds("ds_read_b96 v[120:122], v118", "st")
    for t in range(nst):
        for q in range(2): a.lds(f"ds_read_b128 {v(ST+t*8+q*4,4)}, v{VST} offset:{t*(1024 if shape == 32 else 512) + q*16}", "st")
    alt = []
    def store2(ins):
        k = len(alt)
        a(f"s_cbranch_vccz L_SA{k}\n{ins}\nL_SB{k}:")
        alt.append(ins)
    def flag(j):
        a(f"s_add_u32 s40, s77, {(128 if cfg.get('p2d') else 4)*j}\ns_mov_b64 exec, 1")
        store2("buffer_store_dword v121, v119, s[32:35], s40 offen")
        a("s_mov_b64 exec, -1")
    def flag2(j):
        a(f"s_add_u32 s41, s77, {4*j}\ns_mov_b64 exec, 1")
        store2("buffer_store_dwordx2 v[120:121], v119, s[32:35], s41 offen")
        a("s_mov_b64 exec, -1")
    def rd_cs(j):
        if shape == 32:
            for q in range(4): a.lds(f"ds_read_b128 {v(CS+(j&1)*16+q*4,4)}, v{VCS} offset:{j*128+q*16}", ("cs", j))
        else:
            for m in range(2): a.lds(f"ds_read_b128 {v(CS+(j&1)*8+m*4,4)}, v{VCS} offset:{j*128+m*64}", ("cs", j))
    rd_cs(0)
    a(f"s_lshl_b32 s77, s79, {7 if cfg.get('p2d') else 2}\ns_add_u32 s77, s77, s78")
    a.wait_lds(["st"])
    a("v_cmp_ne_u32 vcc, 0, v120\nv_readfirstlane_b32 s92, v121\nv_readfirstlane_b32 s93, v122")
    if cfg.get("prof"): a("v_readfirstlane_b32 s66, v120")
    a("v_mov_b32 v120, v121")
    stamp(a, cfg, 3)
    cyc(a, cfg, 0, 8)
    hm = cfg.get("hm", 1)
    grp = cfg.get("grp", 1)
    st_ = (lambda x_: a(x_ + " sc1")) if hm == 1 else store2
    def hstore(OO, hf, so):
        if shape == 32: st_(f"buffer_store_dwordx4 {v(OO+hf*4,4)}, v{VH+hf}, s[32:35], {so} offen")
        else:
            st_(f"buffer_store_dwordx2 {v(OO+hf*4,2)}, v{VH+2*hf}, s[32:35], {so} offen")
            st_(f"buffer_store_dwordx2 {v(OO+hf*4+2,2)}, v{VH+2*hf+1}, s[32:35], {so} offen")
    for j in range(4):
        if j + 1 < 4: rd_cs(j + 1)
        a.wait_lds([("cs", j)])
        if j == 2: a(f"s_cmp_ge_u32 s79, 84\ns_cbranch_scc1 L_MTAIL")
        so_ = "s76" if j == 3 else "s39"
        a(f"s_add_u32 {so_}, s79, {j}\ns_lshl_b32 {so_}, {so_}, 10")
        OO = O + (j & 1) * 8
        for hf in range(2):
            if shape == 32:
                c = ACC + (j * 2 + hf) * 16
                geglu(a, [(c + 2*p, c + 8 + 2*p, CS + (j&1)*16 + 2*p, CS + (j&1)*16 + 8 + 2*p, ST + hf*8) for p in range(4)], T, OO + hf*4)
            else:
                items = []
                for t in (2 * hf, 2 * hf + 1):
                    cg_, cu_ = ACC + ((2*j) * 4 + t) * 4, ACC + ((2*j+1) * 4 + t) * 4
                    for p in range(2): items.append((cg_ + 2*p, cu_ + 2*p, CS + 8*(j&1) + 2*p, CS + 8*(j&1) + 4 + 2*p, ST + t*8))
                geglu(a, items, T, OO + hf*4)
            if j < 2: hstore(OO, hf, "s39")
    a.lds_q = []
    cyc(a, cfg, 1, 8)
    a("s_waitcnt vmcnt(0)")
    flag2(0)
    for hf in range(2): hstore(O, hf, "s39")
    for hf in range(2): hstore(O + 8, hf, "s76")
    stamp(a, cfg, 4)
    a("s_waitcnt vmcnt(0)")
    flag2(2)
    a("L_MDONE:")
    stamp(a, cfg, 5)
    final(a, cfg)
    a("L_MTAIL:\ns_waitcnt vmcnt(0)")
    flag2(0)
    stamp(a, cfg, 4)
    a("s_branch L_MDONE")
    a(f"""
L_SOFT:
    s_mov_b64 exec, 1
    ds_add_u32 v122, v124
    s_mov_b64 exec, -1
    s_cmp_eq_u32 s56, 6
    s_cbranch_scc0 L_SOFTB
    s_mov_b32 s44, 0
L_SOFT1:
    ds_read_b32 v120, v122 offset:4
    s_add_u32 s44, s44, 1
    s_waitcnt lgkmcnt(0)
    v_readfirstlane_b32 s45, v120
    s_cmp_ge_u32 s44, {SPIN_MAX*16}
    s_cbranch_scc1 L_SOFTB
    s_cmp_lt_u32 s45, 4
    s_cbranch_scc1 L_SOFT1
    s_branch L_SOFTB
    """)
    for k, ins in enumerate(alt): a(f"L_SA{k}:\n{ins} sc1\ns_branch L_SB{k}")

def mma_dft(a, cfg):
    ACC, OUT, FF, BF = 128, 192, 64, 96
    VXA, VWA = 8, 12
    XF, WF = 16, 32
    if cfg.get("warmlate"): warm(a, cfg, "D")
    a(f"""
    s_lshr_b32 s38, s23, 1
    s_and_b32 s39, s23, 1
    s_lshl_b32 s39, s39, 5
    s_add_u32 s38, s38, s39
    s_lshl_b32 s39, s22, 1
    s_add_u32 s38, s38, s39
    s_lshl_b32 s39, s20, 9
    s_add_u32 s38, s38, s39
    s_lshl_b32 s38, s38, 10
    v_lshrrev_b32 v2, 3, v0
    v_and_b32 v3, 7, v0
    v_lshlrev_b32 v4, 16, v2
    v_lshl_add_u32 v4, v3, 4, v4
    v_mov_b32 v5, 0
    """)
    for c in range(8): a(f"buffer_load_dwordx4 {v(16+4*c,4)}, v4, s[24:27], s38 offen offset:{c*128}")
    a("buffer_load_dwordx2 v[6:7], v5, s[88:91], 0 offen sc1")
    a(f"s_lshl_b32 s53, s22, 2\ns_add_u32 s53, s53, s23\ns_lshl_b32 s53, s53, 7\ns_add_u32 s53, s53, {FL_OFF}\nbuffer_load_dword v59, v5, s[32:35], s53 offen")
    a(f"""
    s_getpc_b64 s[44:45]
L_PC:
    s_add_u32 s44, s44, L_CSTAB-L_PC
    s_addc_u32 s45, s45, 0
    s_lshl_b32 s39, s23, 6
    s_lshl_b32 s40, s37, 5
    s_add_u32 s79, s39, s40           ; e base
    v_and_b32 v1, 31, v0
    v_add_u32 v60, s79, v1
    v_lshlrev_b32 v60, 2, v60
    global_load_dword v62, v60, s[44:45]
    global_load_dword v63, v60, s[44:45] offset:1024
    """)
    a(f"""
    v_lshrrev_b32 v61, 5, v0          ; h
    s_lshl_b32 s78, s22, 1
    s_add_u32 s78, s78, s36           ; s0
    v_cvt_f32_u32 v56, v1
    v_mul_f32 v56, {fhex(1/2048)}, v56
    v_lshlrev_b32 v57, 8, v61
    v_add_u32 v57, s78, v57
    v_cvt_f32_u32 v57, v57
    v_mul_f32 v57, v57, v56
    v_cmp_eq_u32 vcc, 0, v1
    """)
    def fgen(q, d):
        for e in range(2):
            i = 2 * d + e
            k = 32 * (q >> 1) + 64 * (16 * (q & 1) + 8 * (i >> 2) + (i & 3))
            a(f"v_fmamk_f32 v{48+e}, v56, {fhex(float(k))}, v57")
        a(f"""v_cos_f32 v50, v48
        v_cos_f32 v51, v49
        v_sin_f32 v52, v48
        v_sin_f32 v53, v49
        v_cvt_pk_bf16_f32 v{FF+q*4+d}, v50, v51
        v_mov_b32 v54, {'0x3f803f80' if q < 2 else '0xbf80bf80'}
        v_cvt_pk_bf16_f32 v55, v52, v53
        v_cndmask_b32 v{FF+16+q*4+d}, v55, v54, vcc""")
    for q in range(4):
        for d in range(4): fgen(q, d)
    for i in range(64): a(f"v_mov_b32 v{ACC+i}, 0")
    a("s_mov_b32 s48, 0xffff0000\nv_mov_b32 v48, 0\nv_mov_b32 v49, 0\nv_mov_b32 v50, 0\nv_mov_b32 v51, 0")
    for c in range(8):
        a(f"s_waitcnt vmcnt({11 - c})")
        for i in range(4):
            d = 16 + 4 * c + i
            a(f"""v_and_b32 v52, s48, v{d}
            v_lshlrev_b32 v53, 16, v{d}
            v_add_f32 v48, v48, v52
            v_add_f32 v49, v49, v53
            v_fmac_f32 v50, v52, v52
            v_fmac_f32 v51, v53, v53""")
    a(f"""
    v_add_f32 v48, v48, v49
    v_add_f32 v50, v50, v51
    s_nop 1
    v_add_f32_dpp v48, v48, v48 quad_perm:[1,0,3,2] row_mask:0xf bank_mask:0xf
    v_add_f32_dpp v50, v50, v50 quad_perm:[1,0,3,2] row_mask:0xf bank_mask:0xf
    s_nop 1
    v_add_f32_dpp v48, v48, v48 quad_perm:[2,3,0,1] row_mask:0xf bank_mask:0xf
    v_add_f32_dpp v50, v50, v50 quad_perm:[2,3,0,1] row_mask:0xf bank_mask:0xf
    s_nop 1
    v_add_f32_dpp v48, v48, v48 row_half_mirror row_mask:0xf bank_mask:0xf
    v_add_f32_dpp v50, v50, v50 row_half_mirror row_mask:0xf bank_mask:0xf
    v_mul_f32 v48, {fhex(1/512)}, v48          ; mean
    v_mul_f32 v50, {fhex(1/512)}, v50
    v_fma_f32 v50, -v48, v48, v50              ; var
    v_max_f32 v50, 0, v50
    v_cvt_pk_bf16_f32 v52, -v48, v50
    v_lshlrev_b32 v16, 16, v52                 ; -bf16(mean)
    v_and_b32 v50, s48, v52                    ; bf16(var)
    v_add_f32 v50, {fhex(1e-5)}, v50
    v_cvt_pk_bf16_f32 v50, v50, v50
    v_and_b32 v50, s48, v50
    v_sqrt_f32 v50, v50
    s_lshl_b32 s38, s22, 7
    s_lshl_b32 s39, s23, 5
    s_add_u32 s38, s38, s39
    s_lshl_b32 s39, s20, 3
    s_add_u32 s38, s38, s39
    s_lshl_b32 s38, s38, 4
    s_add_u32 s38, s38, {ST_OFF}
    v_cvt_pk_bf16_f32 v50, v50, v50
    v_and_b32 v17, s48, v50                    ; sd
    v_lshlrev_b32 v4, 4, v2
    s_mov_b32 s56, 0
    s_waitcnt vmcnt(0)
L_DN:
    v_readfirstlane_b32 s92, v6
    s_add_u32 s56, s56, 1
    """)
    fresh(a, "L_DN_OK", "L_DN_RE")
    a(f"""
L_DN_RE:
    buffer_load_dwordx2 v[6:7], v5, s[88:91], 0 offen sc1
    s_waitcnt vmcnt(0)
    s_branch L_DN
L_DN_OK:
    v_mov_b32 v18, v6
    v_mov_b32 v19, v7
    s_mov_b32 exec_lo, 0x01010101
    s_mov_b32 exec_hi, 0x01010101
    buffer_store_dwordx4 v[16:19], v4, s[32:35], s38 offen sc1
    s_mov_b64 exec, -1
    """)
    stamp(a, cfg, 6)
    a("v_readfirstlane_b32 s93, v7")
    a(f"""
    v_bfe_u32 v3, v0, 1, 3
    v_xor_b32 v3, v3, v61
    v_lshlrev_b32 v3, 4, v3
    v_lshl_add_u32 v3, v1, 7, v3
    s_lshl_b32 s38, s36, 13
    v_add_u32 v{VXA}, s38, v3
    s_lshl_b32 s38, s37, 12
    s_add_u32 s38, s38, {LDS_W}
    v_add_u32 v{VWA}, s38, v3
    """)
    for i in range(1, 4): a(f"v_xor_b32 v{VXA+i}, {32*i}, v{VXA}\nv_xor_b32 v{VWA+i}, {32*i}, v{VWA}")
    a("s_mov_b32 s56, 0\ns_mov_b32 s57, 0")
    stamp(a, cfg, 0)
    if cfg.get("dw"):
        a(f"""
        s_lshr_b32 s76, s2, 3
        s_sub_u32 s76, s76, 22
        s_lshl_b32 s76, s76, 2
        s_add_u32 s76, s76, s20
        s_mul_i32 s76, s76, {344*128}
        v_min_u32 v58, 42, v0
        v_lshlrev_b32 v58, 7, v58
        s_mov_b32 s84, s18
        s_mov_b32 s85, s19
        s_mov_b32 s86, 1409024
        s_mov_b32 s87, 0x00020000
        """)
    def FS(st): return (16 if (st & 3) < 2 else 96) + (st & 1) * 16
    def rdl(st):
        s_ = st % 4; b = FS(st)
        return [(f"ds_read_b128 {v(b,4)}, v{VXA+s_}", ("x", s_, 0)), (f"ds_read_b128 {v(b+8,4)}, v{VWA+s_}", ("w", s_, 0)),
                (f"ds_read_b128 {v(b+12,4)}, v{VWA+s_} offset:8192", ("w", s_, 1)), (f"ds_read_b128 {v(b+4,4)}, v{VXA+s_} offset:4096", ("x", s_, 1))]
    a.lds_q = []
    a("s_barrier")
    stamp(a, cfg, 1)
    for st in (0, 1):
        for ins, tag in rdl(st): a.lds(ins, tag)
    entry_q = list(a.lds_q)
    a(".p2align 3\nL_DLOOP:")
    salu = ["s_add_u32 s57, s57, 1\ns_cmp_eq_u32 s57, 3\ns_cselect_b32 s58, -2, 1", "s_cselect_b32 s57, 0, s57\ns_lshl_b32 s58, s58, 14"]
    for st in range(4):
        rl = rdl(st + 2); b = FS(st)
        for n, (rt, cs) in enumerate([(0, 0), (0, 1), (1, 0), (1, 1)]):
            if n == 0: a.wait_lds([("x", st, 0), ("x", st, 1), ("w", st, 0), ("w", st, 1)])
            c = ACC + (rt * 2 + cs) * 16
            if not cfg.get('nomfma'): a(f"v_mfma_f32_32x32x16_bf16 {v(c,16)}, {v(b+rt*4,4)}, {v(b+8+cs*4,4)}, {v(c,16)}")
            if st == 2 and n == 0:
                a.wait_lds_all(); a("s_barrier")
            if st < 2 or st == 3 or n > 0:
                k = 1 if not (st == 2 and n == 1) else 2
                for _ in range(k):
                    ins, tag = rl.pop(0); a.lds(ins, tag)
            if st == 0 and n < 2: a(salu[n])
            if st == 0 and n >= 2: a(f"v_add_u32 v{VXA+n-2}, s58, v{VXA+n-2}\nv_add_u32 v{VWA+n-2}, s58, v{VWA+n-2}")
            if st == 2 and n >= 2: a(f"v_add_u32 v{VXA+n}, s58, v{VXA+n}\nv_add_u32 v{VWA+n}, s58, v{VWA+n}")
            if st == 1 and n == 0 and cfg.get("dw"): a(f"buffer_load_dword v59, v58, s[84:87], s76 offen\ns_add_u32 s76, s76, {43*128}")
            if st == 3 and n == 2: a("s_add_u32 s56, s56, 1\ns_cmp_lt_u32 s56, 8")
        assert not rl
    assert a.lds_q == entry_q, (a.lds_q, entry_q)
    a("s_cbranch_scc1 L_DLOOP")
    a.lds_q = []
    stamp(a, cfg, 2)
    a(f"""
    s_waitcnt lgkmcnt(0)
    s_lshl_b32 s39, s36, 8
    s_add_u32 s39, s39, {LDS_AUX}
    v_lshlrev_b32 v3, 4, v61
    v_add_u32 v3, s39, v3
    v_mov_b32 v4, v62
    v_mov_b32 v5, v62
    v_mov_b32 v6, v63
    v_mov_b32 v7, v63
    v_cmp_eq_u32 vcc, 0, v1
    """)
    for rt in range(2):
        for Q in range(4): a(f"ds_read_b128 {v(16+Q*4,4)}, v3 offset:{rt*128 + Q*32}")
        for Q in range(4): a(f"ds_read_b128 {v(32+Q*4,4)}, v3 offset:{512 + rt*128 + Q*32}")
        a("s_waitcnt lgkmcnt(0)")
        for cs in range(2):
            c = ACC + (rt * 2 + cs) * 16
            for p in range(8): a(f"v_pk_fma_f32 {v(c+2*p,2)}, {v(16+2*p,2)}, {v(4+2*cs,2)}, {v(c+2*p,2)}")
            for p in range(8): a(f"v_pk_mul_f32 {v(c+2*p,2)}, {v(c+2*p,2)}, {v(32+2*p,2)}")
            for p in range(8): a(f"v_cvt_pk_bf16_f32 v{BF + cs*16 + rt*8 + p}, v{c+2*p}, v{c+2*p+1}")
    a("s_nop 1")
    for q in range(4):
        for CN in range(2):
            for ab in range(2):
                c = OUT + (CN * 2 + ab) * 16
                a(f"v_mfma_f32_32x32x16_bf16 {v(c,16)}, {v(FF+CN*16+q*4,4)}, {v(BF+ab*16+q*4,4)}, {'0' if q == 0 else v(c,16)}")
    P, R, T, Q = OUT, OUT + 16, OUT + 32, OUT + 48
    a(f"""
    v_add_u32 v8, s79, v1             ; e
    v_cmp_eq_u32 vcc, 0, v8
    v_mov_b32 v11, -1
    v_and_b32 v12, 0xfffffffc, v8
    v_and_b32 v10, 3, v0
    v_cndmask_b32_e64 v11, v11, 0, vcc
    v_lshl_add_u32 v10, v61, 2, v10
    v_lshlrev_b32 v10, 11, v10
    v_lshl_add_u32 v12, v12, 2, v10
    v_lshlrev_b32 v8, 2, v8
    v_cvt_f32_u32 v10, v61
    s_mul_i32 s38, s78, {33*ZROW}
    s_add_u32 s38, s38, {Z_OFF}
    s_add_u32 s39, s38, {32*ZROW}
    s_mov_b32 s44, 0x55555555
    s_mov_b32 s45, s44
    s_mov_b32 s46, 0x33333333
    s_mov_b32 s47, s46
    v_cvt_pk_bf16_f32 v14, v{T}, v{Q}
    v_cvt_pk_bf16_f32 v15, v{T}, -v{Q}
    v_mul_f32 v{T}, v{T}, v10
    v_mul_f32 v{Q}, v{Q}, v10
    v_and_b32 v14, v14, v11
    s_mov_b32 exec_hi, 0
    buffer_store_dword v14, v8, s[32:35], s39 offen sc1
    buffer_store_dword v15, v8, s[32:35], s39 offen offset:1024 sc1
    s_mov_b64 exec, -1
    """)
    O1, O2, TT = 16, 32, 128
    for p in range(8):
        r0 = 2 * p
        a(f"""v_pk_add_f32 v[48:49], {v(P+r0,2)}, {v(Q+r0,2)}
        v_pk_add_f32 v[50:51], {v(R+r0,2)}, {v(T+r0,2)} neg_lo:[0,1] neg_hi:[0,1]
        v_pk_add_f32 v[52:53], {v(P+r0,2)}, {v(Q+r0,2)} neg_lo:[0,1] neg_hi:[0,1]
        v_pk_add_f32 v[54:55], {v(R+r0,2)}, {v(T+r0,2)} neg_lo:[1,1] neg_hi:[1,1]
        v_cvt_pk_bf16_f32 v{O1+r0}, v48, v50
        v_cvt_pk_bf16_f32 v{O1+r0+1}, v49, v51
        v_cvt_pk_bf16_f32 v{O2+r0}, v52, v54
        v_cvt_pk_bf16_f32 v{O2+r0+1}, v53, v55""")
    for r in range(16): a(f"v_and_b32 v{O1+r}, v{O1+r}, v11")
    def dpp(perm): return f"quad_perm:{perm} row_mask:0xf bank_mask:0xf"
    a("s_mov_b64 vcc, s[44:45]\ns_nop 0")
    for r in range(0, 32, 2): a(f"v_cndmask_b32_dpp v{TT+r}, v{O1+r+1}, v{O1+r}, vcc {dpp('[1,0,3,2]')}")
    a("s_not_b64 vcc, vcc")
    for r in range(0, 32, 2): a(f"v_cndmask_b32_dpp v{TT+r+1}, v{O1+r}, v{O1+r+1}, vcc {dpp('[1,0,3,2]')}")
    def dst(b, j): return O1 + b * 4 + j
    a("s_mov_b64 vcc, s[46:47]")
    for b in range(8):
        for j in range(2): a(f"v_cndmask_b32_dpp v{dst(b,j)}, v{TT+b*4+j+2}, v{TT+b*4+j}, vcc {dpp('[2,3,0,1]')}")
    a("s_not_b64 vcc, vcc")
    for b in range(8):
        for j in range(2): a(f"v_cndmask_b32_dpp v{dst(b,j+2)}, v{TT+b*4+j}, v{TT+b*4+j+2}, vcc {dpp('[2,3,0,1]')}")
    for Qd in range(4):
        a(f"""s_add_u32 s39, s38, {Qd*8*ZROW}
        buffer_store_dwordx4 {v(O1+Qd*4,4)}, v12, s[32:35], s39 offen sc1
        buffer_store_dwordx4 {v(O2+Qd*4,4)}, v12, s[32:35], s39 offen offset:1024 sc1""")
    stamp(a, cfg, 4)
    a(f"""
    v_mov_b32 v48, {LDS_AUX + LDS_CNT_OFF}
    v_mov_b32 v49, 1
    s_lshl_b32 s53, s22, 2
    s_add_u32 s53, s53, s23
    s_lshl_b32 s53, s53, 7
    s_add_u32 s53, s53, {FL_OFF}
    s_mov_b64 exec, 1
    s_waitcnt vmcnt(0)
    ds_add_rtn_u32 v18, v48, v49
    v_mov_b32 v20, s92
    v_mov_b32 v21, s93
    v_mov_b32 v22, 0
    s_waitcnt lgkmcnt(0)
    v_readfirstlane_b32 s54, v18
    s_nop 3
    s_cmp_eq_u32 s54, 3
    s_cselect_b32 s53, s53, {OOB}
    buffer_store_dwordx2 v[20:21], v22, s[32:35], s53 offen sc1
    s_mov_b64 exec, -1
    """)
    stamp(a, cfg, 5)
    a("s_branch L_FIN")

def warm(a, cfg, sfx=""):
    if cfg.get("nowarm"): return
    a(f"""
    s_cmp_lt_u32 s20, 2
    s_cbranch_scc0 L_WARM2
    s_mul_i32 s40, s3, {15*128}
    s_add_u32 s40, s40, {96*2752}
    v_min_u32 v125, 14, v0
    v_lshlrev_b32 v125, 7, v125
    s_cmp_eq_u32 s20, 1
    s_cselect_b32 s44, s14, s12
    s_cselect_b32 s45, s15, s13
    s_mov_b32 s46, 1409024
    s_mov_b32 s47, 0x00020000
    buffer_load_dword v126, v125, s[44:47], s40 offen
    s_branch L_WARMED
L_WARM2:
    s_mov_b32 s40, s3
    s_cmp_eq_u32 s20, 2
    s_cbranch_scc0 L_WARM3
    ; x: 9 rows per workgroup, lines 2,3
    s_mul_i32 s40, s3, 9
    v_min_u32 v125, 17, v0
    v_and_b32 v126, 1, v125
    v_lshrrev_b32 v125, 1, v125
    v_add_u32 v125, s40, v125
    v_min_u32 v125, 2047, v125
    v_lshlrev_b32 v126, 7, v126
    v_and_b32 v127, 31, v125
    v_lshl_add_u32 v126, v127, 16, v126
    v_bfe_u32 v127, v125, 5, 1
    v_lshl_add_u32 v126, v127, 15, v126
    v_lshrrev_b32 v127, 6, v125
    v_lshl_add_u32 v125, v127, 10, v126
    buffer_load_dword v126, v125, s[24:27], 0 offen offset:256
    s_branch L_WARMED
L_WARM3:
    ; hidden DFT matrices: rows 2j, 2j+1 (j < 129), lines 2,3
    s_lshl_b32 s41, s40, 11
    s_add_u32 s41, s41, 256
    s_cmp_lt_u32 s40, 129
    s_cselect_b32 s40, s41, {OOB}
    v_and_b32 v125, 1, v0
    v_lshlrev_b32 v125, 7, v125
    v_bfe_u32 v126, v0, 1, 1
    v_lshl_add_u32 v125, v126, 10, v125
    s_mov_b32 s44, s8
    s_mov_b32 s45, s9
    s_mov_b32 s46, 524288
    s_mov_b32 s47, 0x00020000
    s_mov_b32 s48, s10
    s_mov_b32 s49, s11
    s_mov_b32 s50, 524288
    s_mov_b32 s51, 0x00020000
    buffer_load_dword v126, v125, s[44:47], s40 offen
    buffer_load_dword v127, v125, s[48:51], s40 offen
L_WARMED:
    """.replace("L_WARM", "L_WARM" + sfx))

def gen(cfg):
    a = Asm()
    entry(a, cfg)
    helper(a, cfg)
    colsum(a, cfg)
    a("L_MMA:\ns_lshr_b32 s36, s20, 1\ns_and_b32 s37, s20, 1\ns_waitcnt lgkmcnt(0)")
    common_srds(a)
    a("s_cmp_eq_u32 s21, 2\ns_cbranch_scc0 L_MMA2")
    get_nonce(a, "L_MI_N", 4)
    a("s_branch L_FIN\nL_MMA2:")
    if not cfg.get("warmlate"): warm(a, cfg)
    a("s_cmp_eq_u32 s21, 0\ns_cbranch_scc0 L_MMA_DFT")
    mma_ffn(a, dict(cfg, inm=1))
    a("L_MMA_DFT:")
    mma_dft(a, dict(cfg, inm=1))
    a("L_END:\ns_endpgm")
    cs = np.load("cs_table.npy")
    tab = ".p2align 8\n.type L_CSTAB,@object\nL_CSTAB:\n" + "\n".join(".long " + ", ".join("0x%08x" % x for x in cs[i:i+8].view(np.uint32)) for i in range(0, 512, 8)) + "\n.size L_CSTAB, 2048\n"
    HEAD = open("recurrent_scan__spectral_fnet__geglu_ffn__prompt.s.ref").read().split("; Override launch")[0]
    s = HEAD + f"; @launch grid=(256,1,1) block=(512,1,1) lds={LDS_TOTAL}\n" + '.amdgcn_target "amdgcn-amd-amdhsa--gfx950"\n'
    return s + kernel(KN, a.text() + tab, 256)

if __name__ == "__main__":
    import sys
    cfg = {"shape": 32}
    for kv in sys.argv[2:]:
        k, val = kv.split("="); cfg[k] = int(val, 0)
    open(sys.argv[1], "w").write(gen(cfg))
```
